```python
import torch

def _softmax(x, axis=-1):
    return torch.softmax(x, dim=axis)
def _gelu(x):
    return torch.nn.functional.gelu(x, approximate="tanh")
def _silu(x):
    return torch.nn.functional.silu(x)
def _sigmoid(x):
    return torch.sigmoid(x)
def _layernorm(x, axis=-1, eps=1e-5):
    m = x.mean(dim=axis, keepdim=True)
    v = x.var(dim=axis, keepdim=True, unbiased=False)
    return (x - m) / torch.sqrt(v + eps)
def _scatter_add(tgt, idx, src, axis=0):
    return tgt.clone().index_add_(axis, idx, src)
def _segment_sum(src, seg, n):
    out = torch.zeros((n,) + src.shape[1:], dtype=src.dtype)
    return out.index_add_(0, seg, src)
def _pad(x, pw):
    flat = tuple(v for pair in reversed(pw) for v in pair)
    return torch.nn.functional.pad(x, flat)

kernel_name = 'parallel_sum__gqa_block_cached__dense_activation_squared_relu__decode'

def setup_inputs():

    _w = (lambda a: (lambda t: t.to(torch.bfloat16) if t.is_floating_point() else t)(torch.as_tensor(a)))
    def _A_setup():
        B, Sq, D = 2, 1, 576
        Hq, Hkv, Sk, Dh = 32, 16, 32768, 128
        assert Hq % Hkv == 0, (Hq, Hkv)
        return {
            "x": _w((lambda *s: torch.randn(*s, dtype=torch.bfloat16) * 0.05)(B, Sq, D)),
            "k_cache": _w((lambda *s: torch.randn(*s, dtype=torch.bfloat16) * 3.2)(B, Hkv, Sk, Dh)),
            "v_cache": _w((lambda *s: torch.randn(*s, dtype=torch.bfloat16) * 1.6)(B, Hkv, Sk, Dh)),
            "wq": _w((lambda *s: torch.randn(*s, dtype=torch.bfloat16) * 3.2)(D, Hq * Dh) * (D ** -0.5)),
            "wo": _w((lambda *s: torch.randn(*s, dtype=torch.bfloat16) * 1.6)(Hq * Dh, D) * ((Hq * Dh) ** -0.5)),
        }
    _A_in = _A_setup()

    def _B_setup():
        B, S, D, F = 2, 1, 576, 4608
        return {
            "x": _w((lambda *s: torch.randn(*s, dtype=torch.bfloat16) * 0.05)(B, S, D)),
            "w1": _w((lambda *s: torch.randn(*s, dtype=torch.bfloat16) * 0.05)(D, F)),
            "b1": _w((lambda *s: torch.randn(*s, dtype=torch.bfloat16) * 0.05)(F)),
            "w2": _w((lambda *s: torch.randn(*s, dtype=torch.bfloat16) * 0.05)(F, D)),
            "b2": _w((lambda *s: torch.randn(*s, dtype=torch.bfloat16) * 0.05)(D)),
        }
    _B_in = _B_setup()

    return {
        "A_x": _A_in["x"],
        "A_k_cache": _A_in["k_cache"],
        "A_v_cache": _A_in["v_cache"],
        "A_wq": _A_in["wq"],
        "A_wo": _A_in["wo"],
        "B_x": _B_in["x"],
        "B_w1": _B_in["w1"],
        "B_b1": _B_in["b1"],
        "B_w2": _B_in["w2"],
        "B_b2": _B_in["b2"],
    }

def reference(A_x, A_k_cache, A_v_cache, A_wq, A_wo, B_x, B_w1, B_b1, B_w2, B_b2):
    def _A_ref(x, k_cache, v_cache, wq, wo):
        B, Sq, D = x.shape
        Hq, Dh = 32, 128
        Hkv = k_cache.shape[1]
        rep = Hq // Hkv
        q = (lambda x, *d: x.permute(*d))((x @ wq).reshape(B, Sq, Hq, Dh), 0, 2, 1, 3)
        k = (lambda x, n, axis: torch.repeat_interleave(x, n, dim=axis))(k_cache, rep, axis=1)
        v = (lambda x, n, axis: torch.repeat_interleave(x, n, dim=axis))(v_cache, rep, axis=1)
        scores = torch.einsum("bhqd,bhkd->bhqk", q, k) * (Dh ** -0.5)
        p = _softmax(scores, axis=-1)
        o = torch.einsum("bhqk,bhkd->bhqd", p, v)
        return (lambda x, *d: x.permute(*d))(o, 0, 2, 1, 3).reshape(B, Sq, Hq * Dh) @ wo

    def _B_ref(x, w1, b1, w2, b2):
        h = torch.einsum("bsd,df->bsf", x, w1) + b1
        zero = torch.zeros_like(h)
        r = torch.where(h > zero, h, zero)
        h = r * r
        out = torch.einsum("bsf,fd->bsd", h, w2) + b2
        return out

    x = A_x
    xn = _layernorm(x, axis=-1)
    return x + _A_ref(xn, A_k_cache, A_v_cache, A_wq, A_wo) + _B_ref(xn, B_w1, B_b1, B_w2, B_b2)
```

```python
import sys, argparse
NAME = "parallel_sum__gqa_block_cached__dense_activation_squared_relu__decode"

DEFAULTS = dict(TL=4, NB=2, KVPOL="nt", WPOL="", ORDER="kv_first", DEBUG=0, SLEEP=2, SPIN=20000)

WS_EPOCH = 0
WS_HG    = 0x1000
WS_MLG   = 0x14000
WS_OG    = 0x20000
WS_YG    = 0xA0000
WS_DBG   = 0x100000
WS_SIZE  = 0x200000
L_W1  = 0
L_WW  = 49152
L_OP  = 139264
L_HP  = 147456
L_QB  = 149504
L_MLP = 150016
L_VAL = 150144
L_VALH = L_VAL + 512
L_YP  = 151296
L_END = L_YP + 4096

LOG2E = 0x3FB8AA3B
SCALE = 0x3DB504F3

class A:
    def __init__(s): s.L = []
    def e(s, x): s.L.append("  " + x)
    def lab(s, x): s.L.append(x + ":")
    def c(s, x): s.L.append("  ; " + x)
    def raw(s, x): s.L.append(x)

def vr(a, n): return f"v[{a}:{a+n-1}]"
def sr(a, n): return f"s[{a}:{a+n-1}]"

def gen(**kw):
    P = dict(DEFAULTS); P.update(kw)
    TL, NB, KVPOL, WPOL, DEBUG = P["TL"], P["NB"], P["KVPOL"], P["WPOL"], P["DEBUG"]
    NW = 8
    tile_bytes = TL * 1024
    ntiles = (1 << 20) // tile_bytes // NW
    assert ntiles % NB == 0
    a = A(); e = a.e; c = a.c
    a.raw(f"; params: {P}")
    a.raw(f"; @launch grid=(256,1,1) block=(512,1,1) lds={(L_END + 255)//256*256}")
    a.raw('.amdgcn_target "amdgcn-amd-amdhsa--gfx950"')
    a.raw(".text")
    a.raw(f".globl {NAME}_kernel")
    a.raw(".p2align 8")
    a.raw(f".type {NAME}_kernel,@function")
    a.lab(f"{NAME}_kernel")

    pX, pK, pV, pWQ = 8, 10, 12, 14
    pWO, pOUT = 16, 18
    pW1, pB1, pW2, pB2 = 20, 22, 24, 26
    pWS = 28
    sB, sHKV, sS, sPAIR, sW, sTAG = 30, 31, 32, 33, 34, 35
    rK, rV, rWS, rA, rB, rC = 36, 40, 44, 48, 52, 56
    sTOFF, sCNT = 60, 61
    t0, t1, t2, t3 = 62, 63, 64, 65
    sEQ = [66, 68, 70, 72]
    sX1 = 74
    sHX = [76, 78, 80]
    sWT = 82
    sSPIN = 90
    sL2E, sSCL = 91, 92
    sEX = 94
    t4, t5 = 96, 97

    vLANE, vKOFF, vVOFF = 1, 2, 3
    BK = 4; MASK = 8
    vM, vL, vML = 12, 13, 14
    vt = [15, 16, 17, 18, 19]
    ACC = 20
    DB = 24
    SREG = DB + 4 * TL
    KV0 = (SREG + TL + 3) // 4 * 4
    KV0 = max(KV0, 48)
    def kreg(b, j): return KV0 + b * (8 * TL) + j * 4
    def vreg(b, j): return KV0 + b * (8 * TL) + 4 * TL + j * 4
    NPRE = min(NB, (112 - KV0) // (8 * TL))
    assert NPRE >= 1
    WQ0 = 112
    assert KV0 + NB * 8 * TL <= 256
    XP = 24
    SELQ = 33
    SELH = 41
    vWQOFF, vB1, vMISC = 45, 46, 47
    BJ = [4, 8]
    QACC = [12, 16]
    HACC = 20

    def srd(r, lo, hi_carry_from=None, size=None):
        pass

    def mk_srd(r, ptr, off_s=None, off_imm=None, size=None, size_s=None):
        if off_s is not None:
            e(f"s_add_u32 s{r}, s{ptr}, s{off_s}"); e(f"s_addc_u32 s{r+1}, s{ptr+1}, 0")
            e(f"s_and_b32 s{r+1}, s{r+1}, 0xffff")
        elif off_imm:
            e(f"s_add_u32 s{r}, s{ptr}, {off_imm}"); e(f"s_addc_u32 s{r+1}, s{ptr+1}, 0")
            e(f"s_and_b32 s{r+1}, s{r+1}, 0xffff")
        else:
            e(f"s_mov_b32 s{r}, s{ptr}"); e(f"s_and_b32 s{r+1}, s{ptr+1}, 0xffff")
        if size_s is not None: e(f"s_mov_b32 s{r+2}, s{size_s}")
        else: e(f"s_mov_b32 s{r+2}, {size}")
        e(f"s_mov_b32 s{r+3}, 0x20000")

    def bf16r(d, s_):
        e(f"v_cvt_pk_bf16_f32 v{d}, 0, v{s_}")

    def wave_reduce(x, y, op):
        for pat in ["quad_perm:[1,0,3,2]", "quad_perm:[2,3,0,1]", "row_half_mirror", "row_mirror"]:
            e("s_nop 1")
            e(f"{op}_dpp v{x}, v{x}, v{x} {pat} row_mask:0xf bank_mask:0xf")
        cross_rows(x, y, op)

    def cross_rows(x, y, op):
        e(f"v_mov_b32 v{y}, v{x}"); e("s_nop 1")
        e(f"v_permlane16_swap_b32 v{x}, v{y}"); e("s_nop 0")
        e(f"{op} v{x}, v{x}, v{y}")
        e(f"v_mov_b32 v{y}, v{x}"); e("s_nop 1")
        e(f"v_permlane32_swap_b32 v{x}, v{y}"); e("s_nop 0")
        e(f"{op} v{x}, v{x}, v{y}")

    c("---- phase 0: ids, pointers")
    e("s_cmp_ge_u32 s2, 256")
    e("s_cbranch_scc1 L_end")
    e(f"s_load_dwordx8 {sr(8,8)}, s[0:1], 0")
    e(f"s_load_dwordx2 {sr(pWO,2)}, s[0:1], 32")
    e(f"s_load_dwordx8 {sr(20,8)}, s[0:1], 48")
    e(f"s_load_dwordx2 {sr(pOUT,2)}, s[0:1], 80")
    e(f"s_load_dwordx2 {sr(pWS,2)}, s[0:1], 96")
    e(f"s_and_b32 s{t0}, s2, 7")
    e(f"s_lshr_b32 s{t1}, s2, 3")
    e(f"s_and_b32 s{sS}, s{t1}, 7")
    e(f"s_bfe_u32 s{t2}, s{t1}, 0x10003")
    e(f"s_lshr_b32 s{sB}, s{t1}, 4")
    e(f"s_lshl_b32 s{t2}, s{t2}, 3")
    e(f"s_or_b32 s{sHKV}, s{t0}, s{t2}")
    e(f"s_lshl_b32 s{sPAIR}, s{sB}, 4")
    e(f"s_or_b32 s{sPAIR}, s{sPAIR}, s{sHKV}")
    e(f"v_and_b32 v{vLANE}, 63, v0")
    e(f"v_lshrrev_b32 v{vt[0]}, 6, v0")
    e(f"s_mov_b32 s{sL2E}, {LOG2E:#x}")
    e(f"v_readfirstlane_b32 s{sW}, v{vt[0]}")
    vG, vR = vt[1], vt[2]
    e(f"v_lshrrev_b32 v{vG}, 4, v{vLANE}")
    e(f"v_and_b32 v{vR}, 15, v{vLANE}")
    e(f"v_lshrrev_b32 v{vt[3]}, 2, v{vR}")
    e(f"v_lshlrev_b32 v{vt[3]}, 8, v{vt[3]}")
    e(f"v_lshl_add_u32 v{vt[3]}, v{vG}, 6, v{vt[3]}")
    e(f"v_and_b32 v{vt[4]}, 3, v{vR}")
    e(f"v_lshl_add_u32 v{vKOFF}, v{vt[4]}, 4, v{vt[3]}")
    e(f"v_lshlrev_b32 v{vVOFF}, 4, v{vLANE}")
    e(f"s_mov_b32 s{t4}, 147456")
    e(f"v_mul_lo_u32 v{vWQOFF}, v{vG}, s{t4}")
    e(f"v_lshl_add_u32 v{vWQOFF}, v{vR}, 4, v{vWQOFF}")
    e(f"v_mul_u32_u24 v{vMISC}, 36, v{vG}")
    e(f"v_lshlrev_b32 v{vt[3]}, 2, v{vLANE}")
    e(f"s_mov_b32 s{sSCL}, {SCALE:#x}")
    e("s_waitcnt lgkmcnt(0)")
    e(f"s_lshl_b32 s{t3}, s{sB}, 8")
    e(f"s_load_dword s{sTAG}, {sr(pWS,2)}, s{t3}")
    e(f"s_mul_i32 s{t0}, s{sB}, 1152")
    mk_srd(rA, pX, off_s=t0, size=1152)
    e(f"s_mul_i32 s{t1}, s{sW}, 144")
    for i in range(5):
        e(f"buffer_load_dword v{4+i}, v{vt[3]}, {sr(rA,4)}, 0 offen offset:{256*i}")
    e(f"buffer_load_dwordx4 {vr(XP,4)}, v{vMISC}, {sr(rA,4)}, s{t1} offen")
    e(f"buffer_load_dwordx4 {vr(XP+4,4)}, v{vMISC}, {sr(rA,4)}, s{t1} offen offset:16")
    e(f"buffer_load_dword v{XP+8}, v{vMISC}, {sr(rA,4)}, s{t1} offen offset:32")
    nX = 8
    e(f"s_lshl_b32 s{t0}, s{sPAIR}, 3")
    e(f"s_or_b32 s{t0}, s{t0}, s{sS}")
    e(f"s_lshl_b32 s{t0}, s{t0}, 20")
    mk_srd(rK, pK, off_s=t0, size=1 << 20)
    mk_srd(rV, pV, off_s=t0, size=1 << 20)
    e(f"s_mul_i32 s{sTOFF}, s{sW}, {tile_bytes}")

    def issue_k(b):
        for j in range(TL):
            if j == 4: e(f"s_add_u32 s{t5}, s{sTOFF}, 4096")
            so = sTOFF if j < 4 else t5
            e(f"buffer_load_dwordx4 {vr(kreg(b,j),4)}, v{vKOFF}, {sr(rK,4)}, s{so} offen offset:{(j%4)*1024} {KVPOL}")
    def issue_v(b):
        for j in range(TL):
            if j == 4: e(f"s_add_u32 s{t5}, s{sTOFF}, 4096")
            so = sTOFF if j < 4 else t5
            e(f"buffer_load_dwordx4 {vr(vreg(b,j),4)}, v{vVOFF}, {sr(rV,4)}, s{so} offen offset:{(j%4)*1024} {KVPOL}")
        e(f"s_add_u32 s{sTOFF}, s{sTOFF}, {tile_bytes*NW}")
    def issue_kv_pre():
        for b in range(NPRE):
            issue_k(b); issue_v(b)
    def issue_wq():
        e(f"s_lshl_b32 s{t0}, s{sHKV}, 9")
        e(f"s_sub_u32 s{t1}, {576*8192}, s{t0}")
        mk_srd(rB, pWQ, off_s=t0, size_s=t1)
        e(f"s_mul_i32 s{t2}, s{sW}, {72*8192}")
        for j in range(18):
            for h in range(2):
                r = WQ0 + (j * 2 + h) * 4
                e(f"buffer_load_dwordx4 {vr(r,4)}, v{vWQOFF}, {sr(rB,4)}, s{t2} offen offset:{h*256} {WPOL}")
            if j < 17: e(f"s_add_u32 s{t2}, s{t2}, 8192")
    nKV = NPRE * 2 * TL
    if P["ORDER"] == "kv_first":
        issue_kv_pre(); issue_wq(); after_wq = 0
    else:
        issue_wq(); issue_kv_pre(); after_wq = nKV
    e(f"s_mul_i32 s{t0}, s{sHKV}, 288")
    e(f"s_mul_i32 s{t1}, s{sS}, 36")
    e(f"s_add_u32 s{t0}, s{t0}, s{t1}")
    e(f"s_lshl_b32 s{t0}, s{t0}, 1")
    mk_srd(rC, pB1, None, None, size=4608*2)
    e(f"v_lshlrev_b32 v{vt[4]}, 1, v{vLANE}")
    e(f"buffer_load_ushort v{vB1}, v{vt[4]}, {sr(rC,4)}, s{t0} offen")
    after_wq += 1
    total_after_x = nKV + 36 + 1

    c("---- LayerNorm statistics (every wave, redundantly)")
    e(f"v_and_b32 v{vt[0]}, 7, v{vLANE}")
    e(f"v_lshrrev_b32 v{vt[1]}, 1, v{vt[0]}")
    for k in range(4):
        e(f"v_cmp_eq_u32 {sr(sEQ[k],2)}, {k}, v{vt[1]}")
    e(f"v_bfe_u32 v{vt[1]}, v{vLANE}, 3, 1")
    e(f"v_cmp_eq_u32 {sr(sX1,2)}, 1, v{vt[1]}")
    e(f"v_bfe_u32 v{vt[1]}, v{vLANE}, 2, 2")
    for k in range(3):
        e(f"v_cmp_eq_u32 {sr(sHX[k],2)}, {k+1}, v{vt[1]}")
    e(f"s_waitcnt vmcnt({total_after_x})")
    for i in range(5):
        e(f"v_lshlrev_b32 v{9+i}, 16, v{4+i}")
        e(f"v_and_b32 v{4+i}, 0xffff0000, v{4+i}")
    e("v_add_f32 v14, v4, v9")
    for i in range(1, 5):
        e(f"v_add_f32 v14, v14, v{4+i}"); e(f"v_add_f32 v14, v14, v{9+i}")
    wave_reduce(14, 15, "v_add_f32")
    e(f"v_mul_f32 v14, {0x3AE38E39:#x}, v14")
    e(f"v_cmp_gt_u32 vcc, 32, v{vLANE}")
    for i in range(5):
        e(f"v_sub_f32 v{4+i}, v{4+i}, v14"); e(f"v_sub_f32 v{9+i}, v{9+i}, v14")
    e("v_cndmask_b32 v8, 0, v8, vcc"); e("v_cndmask_b32 v13, 0, v13, vcc")
    e("v_mul_f32 v16, v4, v4")
    for i in [9, 5, 10, 6, 11, 7, 12, 8, 13]:
        e(f"v_fmac_f32 v16, v{i}, v{i}")
    wave_reduce(16, 15, "v_add_f32")
    e(f"v_mul_f32 v16, {0x3AE38E39:#x}, v16")
    bf16r(16, 16)
    e(f"v_add_f32 v16, {0x3727C5AC:#x}, v16")
    bf16r(16, 16)
    e("v_sqrt_f32 v16, v16"); e("s_nop 0")
    bf16r(16, 16)
    e("v_rcp_f32 v16, v16")
    bf16r(14, 14)
    c("xn pairs")
    for t in range(9):
        e(f"v_lshlrev_b32 v4, 16, v{XP+t}")
        e(f"v_and_b32 v5, 0xffff0000, v{XP+t}")
        e("v_sub_f32 v4, v4, v14"); e("v_sub_f32 v5, v5, v14")
        bf16r(4, 4); bf16r(5, 5)
        e("v_mul_f32 v4, v4, v16"); e("v_mul_f32 v5, v5, v16")
        e(f"v_cvt_pk_bf16_f32 v{XP+t}, v4, v5")

    def make_selq(SEL, ta, tb, tc):
        e(f"v_and_b32 v{ta}, 1, v{vLANE}")
        e(f"v_cmp_eq_u32 vcc, 1, v{ta}")
        e(f"v_mov_b32 v{ta}, 0x0c0c0100"); e(f"v_mov_b32 v{tb}, 0x01000c0c")
        e(f"v_cndmask_b32 v{ta}, v{ta}, v{tb}, vcc")
        e(f"v_mov_b32 v{tb}, 0x0c0c0302"); e(f"v_mov_b32 v{tc}, 0x03020c0c")
        e(f"v_cndmask_b32 v{tb}, v{tb}, v{tc}, vcc")
        e(f"v_mov_b32 v{tc}, 0x0c0c0c0c")
        for k in range(4):
            e(f"v_cndmask_b32 v{SEL+k}, v{tc}, v{ta}, {sr(sEQ[k],2)}")
            e(f"v_cndmask_b32 v{SEL+4+k}, v{tc}, v{tb}, {sr(sEQ[k],2)}")
    make_selq(SELQ, 4, 5, 6)
    e(f"v_bfe_u32 v7, v{vLANE}, 1, 1")
    e("v_cmp_eq_u32 vcc, 1, v7"); e("s_nop 1")
    e(f"v_cndmask_b32 v{SELH+0}, v4, v6, vcc"); e(f"v_cndmask_b32 v{SELH+1}, v6, v4, vcc")
    e(f"v_cndmask_b32 v{SELH+2}, v5, v6, vcc"); e(f"v_cndmask_b32 v{SELH+3}, v6, v5, vcc")

    c("---- DMA w1 slice (6 x 1KB per wave) and wo/w2 slice (9..11 x 1KB per wave) into LDS")
    e(f"s_waitcnt vmcnt({63 - 17})")
    e(f"s_mul_i32 s{t0}, s{sHKV}, 576"); e(f"s_mul_i32 s{t1}, s{sS}, 72"); e(f"s_add_u32 s{t0}, s{t0}, s{t1}")
    e(f"s_and_b32 s{t3}, s{t0}, 15")
    e(f"s_andn2_b32 s{t0}, s{t0}, 15")
    e(f"s_mul_i32 s{t1}, s{sW}, {72*9216}")
    e(f"s_add_u32 s{t0}, s{t0}, s{t1}")
    mk_srd(rC, pW1, None, None, size=576*9216)
    e(f"s_mul_i32 s{t1}, s{sW}, 6144")
    e(f"s_add_u32 s{t1}, s{t1}, {L_W1}")
    for t in range(6):
        e(f"v_add_u32 v4, {64*t}, v{vLANE}")
        e(f"v_mul_u32_u24 v5, 13108, v4"); e("v_lshrrev_b32 v5, 16, v5")
        e(f"v_mul_u32_u24 v5, {9216-80}, v5")
        e(f"v_lshl_add_u32 v5, v4, 4, v5")
        e(f"s_mov_b32 m0, s{t1}")
        e(f"s_add_u32 s{t1}, s{t1}, 1024")
        e(f"buffer_load_dwordx4 v5, {sr(rC,4)}, s{t0} offen {WPOL} lds")
    e(f"s_cmp_lt_u32 s{sW}, 4")
    e(f"s_cselect_b32 s{rC}, s{pWO}, s{pW2}")
    e(f"s_cselect_b32 s{rC+1}, s{pWO+1}, s{pW2+1}")
    e(f"s_mov_b32 s{t4}, {4096*1152}")
    e(f"s_cselect_b32 s{rC+2}, s{t4}, {4608*1152}")
    e(f"s_and_b32 s{rC+1}, s{rC+1}, 0xffff")
    e(f"s_mov_b32 s{rC+3}, 0x20000")
    e(f"s_lshl_b32 s{t0}, s{sHKV}, 8"); e(f"s_lshl_b32 s{t1}, s{sW}, 6"); e(f"s_add_u32 s{t0}, s{t0}, s{t1}")
    e(f"s_mul_i32 s{t1}, s{sHKV}, 288"); e(f"s_mul_i32 s{t2}, s{sW}, 72"); e(f"s_add_u32 s{t1}, s{t1}, s{t2}")
    e(f"s_sub_u32 s{t1}, s{t1}, 288")
    e(f"s_cmp_lt_u32 s{sW}, 4")
    e(f"s_cselect_b32 s{t0}, s{t0}, s{t1}")
    e(f"s_mul_i32 s{t0}, s{t0}, 1152"); e(f"s_mul_i32 s{t1}, s{sS}, 144"); e(f"s_add_u32 s{t0}, s{t0}, s{t1}")
    e(f"s_mul_i32 s{t1}, s{sW}, 11264"); e(f"s_add_u32 s{t1}, s{t1}, {L_WW}")
    for t in range(11):
        if t == 9:
            e(f"s_cmp_lt_u32 s{sW}, 4"); e("s_cbranch_scc1 L_dma_done")
        e(f"v_add_u32 v4, {64*t}, v{vLANE}")
        e(f"v_mul_u32_u24 v5, 7282, v4"); e("v_lshrrev_b32 v5, 16, v5")
        e(f"v_mul_u32_u24 v5, 1008, v5")
        e(f"v_lshl_add_u32 v5, v4, 4, v5")
        e(f"s_mov_b32 m0, s{t1}")
        e(f"s_add_u32 s{t1}, s{t1}, 1024")
        e(f"buffer_load_dwordx4 v5, {sr(rC,4)}, s{t0} offen {WPOL} lds")
    a.lab("L_dma_done")
    younger = after_wq + 6 + 9

    c("---- q projection: 18 x 2 MFMAs")
    def build_bj(j):
        for k in range(4):
            e(f"v_perm_b32 v{BJ[j&1]+k}, v{XP+(j>>1)}, v{XP+(j>>1)}, v{SELQ+(j&1)*4+k}")
    build_bj(0)
    for j in range(18):
        if j + 1 < 18: build_bj(j + 1)
        else: e("s_nop 1")
        e(f"s_waitcnt vmcnt({min(63, younger + 2*(17-j))})")
        for h in range(2):
            r = WQ0 + (j * 2 + h) * 4
            cc = "0" if j == 0 else vr(QACC[h], 4)
            e(f"v_mfma_f32_16x16x32_bf16 {vr(QACC[h],4)}, {vr(r,4)}, {vr(BJ[j&1],4)}, {cc}")
    c("---- hidden slice: 18 MFMAs 16x16x16")
    e(f"s_waitcnt vmcnt(9)")
    e(f"v_lshrrev_b32 v4, 4, v{vLANE}"); e("v_mul_u32_u24 v4, 1440, v4")
    e(f"v_and_b32 v5, 15, v{vLANE}"); e("v_min_u32 v5, 8, v5"); e("v_lshl_add_u32 v4, v5, 3, v4")
    e(f"s_mul_i32 s{t0}, s{sW}, 6144"); e(f"s_add_u32 s{t0}, s{t0}, s{t3}"); e(f"s_add_u32 s{t0}, s{t0}, {L_W1}")
    e(f"v_add_u32 v4, s{t0}, v4")
    for j in range(18):
        e(f"ds_read_b64 {vr(WQ0+2*j,2)}, v4 offset:{80*j}")
    HB = WQ0 + 40
    for j in range(18):
        for k in range(2):
            e(f"v_perm_b32 v{HB+2*j+k}, v{XP+(j>>1)}, v{XP+(j>>1)}, v{SELH+(j&1)*2+k}")
    e("s_waitcnt lgkmcnt(0)")
    for j in range(18):
        cc = "0" if j == 0 else vr(HACC, 4)
        e(f"v_mfma_f32_16x16x16_bf16 {vr(HACC,4)}, {vr(WQ0+2*j,2)}, {vr(HB+2*j,2)}, {cc}")
    c("write q partials: lanes x=0 -> head0, x=1 -> head1")
    e(f"v_bfe_u32 v4, v{vLANE}, 3, 1"); e("v_lshlrev_b32 v4, 9, v4")
    e(f"v_lshrrev_b32 v5, 4, v{vLANE}"); e("v_lshl_add_u32 v4, v5, 7, v4")
    e(f"v_and_b32 v5, 7, v{vLANE}"); e("v_lshl_add_u32 v4, v5, 2, v4")
    e(f"s_lshl_b32 s{t0}, s{sW}, 10"); e(f"s_add_u32 s{t0}, s{t0}, {L_OP}")
    e(f"v_add_u32 v4, s{t0}, v4")
    for v in range(4):
        e(f"v_cndmask_b32 v{5+v}, v{QACC[0]+v}, v{QACC[1]+v}, {sr(sX1,2)}")
    for v in range(4):
        e(f"ds_write_b32 v4, v{5+v} offset:{32*v}")
    c("write h partials: HP[w][lane] = HACC[(lane>>2)&3]")
    e("s_nop 7")
    e(f"v_cndmask_b32 v9, v{HACC}, v{HACC+1}, {sr(sHX[0],2)}")
    e(f"v_cndmask_b32 v9, v9, v{HACC+2}, {sr(sHX[1],2)}")
    e(f"v_cndmask_b32 v9, v9, v{HACC+3}, {sr(sHX[2],2)}")
    e(f"s_lshl_b32 s{t0}, s{sW}, 8"); e(f"s_add_u32 s{t0}, s{t0}, {L_HP}")
    e(f"v_lshlrev_b32 v10, 2, v{vLANE}"); e(f"v_add_u32 v10, s{t0}, v10")
    e("ds_write_b32 v10, v9")
    mk_srd(rWS, pWS, None, None, size=WS_SIZE)
    e("s_waitcnt lgkmcnt(0)")
    e(f"s_mul_i32 s{sTAG}, s{sTAG}, 1664525"); e(f"s_add_u32 s{sTAG}, s{sTAG}, 1013904223")
    e("s_barrier")
    e(f"s_cmp_lt_u32 s{sW}, 4"); e("s_cbranch_scc0 L_hred")
    c("waves 0-3: reduce q")
    e(f"v_lshlrev_b32 v4, 2, v0"); e(f"v_add_u32 v4, {L_OP}, v4")
    for w in range(8):
        e(f"ds_read_b32 v{5+w}, v4 offset:{1024*w}")
    e("s_waitcnt lgkmcnt(0)")
    for w in range(1, 8): e(f"v_add_f32 v5, v5, v{5+w}")
    e("v_cvt_pk_bf16_f32 v5, v5, v5")
    e(f"v_lshlrev_b32 v4, 1, v0"); e(f"v_add_u32 v4, {L_QB}, v4")
    e("ds_write_b16 v4, v5")
    if DEBUG:
        e(f"v_lshlrev_b32 v6, 16, v5")
        e(f"s_lshl_b32 s{t0}, s2, 10"); e(f"s_add_u32 s{t0}, s{t0}, {WS_DBG}")
        e("v_lshlrev_b32 v7, 2, v0")
        e(f"buffer_store_dword v6, v7, {sr(rWS,4)}, s{t0} offen")
    e("s_branch L_pro_join")
    a.lab("L_hred")
    e(f"s_cmp_eq_u32 s{sW}, 4"); e("s_cbranch_scc0 L_pro_join")
    e(f"v_lshlrev_b32 v4, 2, v{vLANE}"); e(f"v_add_u32 v4, {L_HP}, v4")
    for w in range(8):
        e(f"ds_read_b32 v{5+w}, v4 offset:{256*w}")
    e("s_waitcnt lgkmcnt(0)")
    for w in range(1, 8): e(f"v_add_f32 v5, v5, v{5+w}")
    bf16r(5, 5)
    e(f"v_lshlrev_b32 v6, 16, v{vB1}")
    e("v_add_f32 v5, v5, v6"); bf16r(5, 5)
    e("v_max_f32 v5, 0, v5"); e("v_mul_f32 v4, v5, v5"); bf16r(4, 4)
    e(f"v_mov_b32 v5, s{sTAG}")
    e(f"s_mul_i32 s{t0}, s{sPAIR}, 288"); e(f"s_mul_i32 s{t1}, s{sS}, 36"); e(f"s_add_u32 s{t0}, s{t0}, s{t1}")
    e(f"s_lshl_b32 s{t0}, s{t0}, 3"); e(f"s_add_u32 s{t0}, s{t0}, {WS_HG}")
    e(f"v_lshlrev_b32 v6, 3, v{vLANE}")
    e(f"v_cmp_gt_u32 vcc, 36, v{vLANE}")
    e(f"s_and_saveexec_b64 {sr(sEX,2)}, vcc")
    e(f"buffer_store_dwordx2 v[4:5], v6, {sr(rWS,4)}, s{t0} offen sc1")
    e(f"s_mov_b64 exec, {sr(sEX,2)}")
    a.lab("L_pro_join")
    e("s_waitcnt lgkmcnt(0)")
    e("s_barrier")
    c("BK operand: QB + h*256 + (a+4g)*16")
    e(f"v_bfe_u32 v15, v{vLANE}, 3, 1"); e("v_lshlrev_b32 v15, 8, v15")
    e(f"v_lshrrev_b32 v16, 4, v{vLANE}"); e("v_lshl_add_u32 v15, v16, 6, v15")
    e(f"v_and_b32 v16, 3, v{vLANE}"); e("v_lshl_add_u32 v15, v16, 4, v15")
    e(f"v_add_u32 v15, {L_QB}, v15")
    e(f"ds_read_b128 {vr(BK,4)}, v15")
    e(f"v_and_b32 v16, 1, v{vLANE}"); e("v_cmp_eq_u32 vcc, 1, v16")
    e("v_mov_b32 v16, 0xffff"); e("v_mov_b32 v17, 0xffff0000")
    e("v_cndmask_b32 v16, v16, v17, vcc")
    for k in range(4):
        e(f"v_cndmask_b32 v{MASK+k}, 0, v16, {sr(sEQ[k],2)}")
    e(f"v_mov_b32 v{vM}, 0xff800000"); e(f"v_mov_b32 v{vML}, 0xff800000"); e(f"v_mov_b32 v{vL}, 0")
    for v in range(4): e(f"v_mov_b32 v{ACC+v}, 0")
    for b in range(NPRE, NB):
        issue_k(b); issue_v(b)
    e(f"s_mov_b32 s{sCNT}, {ntiles // NB}")
    e("s_waitcnt lgkmcnt(0)")

    c("---- main loop")
    NOUT = 2 * TL * NB - TL
    a.raw(".p2align 6")
    a.lab("L_loop")
    for b in range(NB):
        e(f"s_waitcnt vmcnt({NOUT})")
        for j in range(TL):
            e(f"v_mfma_f32_16x16x32_bf16 {vr(DB+4*j,4)}, {vr(kreg(b,j),4)}, {vr(BK,4)}, 0")
        issue_k(b)
        nfill = TL - 1 + TL + (1 if TL > 4 else 0)
        if nfill < 8: e(f"s_nop {8 - nfill - 1}")
        for j in range(TL):
            e(f"v_mov_b32_dpp v{SREG+j}, v{DB+4*j} quad_perm:[0,0,0,0] row_mask:0xf bank_mask:0xf")
        for q in range(1, 4):
            for j in range(TL):
                e(f"v_add_f32_dpp v{SREG+j}, v{DB+4*j+q}, v{SREG+j} quad_perm:[{q},{q},{q},{q}] row_mask:0xf bank_mask:0xf")
        for j in range(TL): bf16r(SREG+j, SREG+j)
        for j in range(TL): e(f"v_mul_f32 v{SREG+j}, s{sSCL}, v{SREG+j}")
        for j in range(TL): bf16r(SREG+j, SREG+j)
        m2 = vt[0]
        e(f"v_max3_f32 v{m2}, v{vM}, v{SREG}, v{SREG+1}")
        j = 2
        while j < TL:
            e(f"v_max3_f32 v{m2}, v{m2}, v{SREG+j}, v{SREG+j+1}"); j += 2
        cross_rows(m2, vt[1], "v_max_f32")
        e(f"v_mov_b32 v{vM}, v{m2}")
        e(f"v_mul_f32 v{vt[1]}, s{sL2E}, v{m2}")
        e(f"v_sub_f32 v{vt[2]}, v{vML}, v{vt[1]}")
        e(f"v_exp_f32 v{vt[2]}, v{vt[2]}")
        e(f"v_mov_b32 v{vML}, v{vt[1]}")
        for j in range(TL):
            e(f"v_fma_f32 v{SREG+j}, v{SREG+j}, s{sL2E}, -v{vML}")
        for j in range(TL):
            e(f"v_exp_f32 v{SREG+j}, v{SREG+j}")
        e(f"v_mul_f32 v{vL}, v{vL}, v{vt[2]}")
        for v in range(4): e(f"v_mul_f32 v{ACC+v}, v{ACC+v}, v{vt[2]}")
        for j in range(TL): e(f"v_add_f32 v{vL}, v{vL}, v{SREG+j}")
        for j in range(TL): e(f"v_cvt_pk_bf16_f32 v{SREG+j}, v{SREG+j}, v{SREG+j}")
        for j in range(TL):
            for k in range(4):
                e(f"v_and_b32 v{DB+4*j+k}, v{SREG+j}, v{MASK+k}")
        e(f"s_waitcnt vmcnt({NOUT})")
        for j in range(TL):
            e(f"v_mfma_f32_16x16x32_bf16 {vr(ACC,4)}, {vr(vreg(b,j),4)}, {vr(DB+4*j,4)}, {vr(ACC,4)}")
        issue_v(b)
    e(f"s_sub_u32 s{sCNT}, s{sCNT}, 1")
    e(f"s_cmp_lg_u32 s{sCNT}, 0")
    e("s_cbranch_scc1 L_loop")

    c("---- T1: combine the 8 waves of the workgroup")
    e("s_waitcnt vmcnt(0)")
    cross_rows(vL, vt[0], "v_add_f32")
    e(f"v_bfe_u32 v24, v{vLANE}, 3, 1"); e("v_lshlrev_b32 v24, 9, v24")
    e(f"v_lshrrev_b32 v25, 4, v{vLANE}"); e("v_lshl_add_u32 v24, v25, 7, v24")
    e(f"v_and_b32 v25, 7, v{vLANE}"); e("v_lshl_add_u32 v24, v25, 2, v24")
    e(f"s_lshl_b32 s{t0}, s{sW}, 10"); e(f"s_add_u32 s{t0}, s{t0}, {L_OP}")
    e(f"v_add_u32 v24, s{t0}, v24")
    for v in range(4):
        e(f"ds_write_b32 v24, v{ACC+v} offset:{32*v}")
    e(f"v_bfe_u32 v25, v{vLANE}, 3, 1"); e("v_lshlrev_b32 v25, 3, v25")
    e(f"s_lshl_b32 s{t0}, s{sW}, 4"); e(f"s_add_u32 s{t0}, s{t0}, {L_MLP}")
    e(f"v_add_u32 v25, s{t0}, v25")
    e(f"v_mov_b32 v26, v{vM}"); e(f"v_mov_b32 v27, v{vL}")
    e("s_mov_b64 exec, 0x101")
    e("ds_write_b64 v25, v[26:27]")
    e("s_mov_b64 exec, -1")
    e("s_waitcnt lgkmcnt(0)")
    e("s_barrier")
    e(f"s_mov_b32 s{sSPIN}, {P['SPIN']}")
    e(f"s_cmp_lt_u32 s{sW}, 4"); e("s_cbranch_scc0 L_hgather")
    c("waves 0-3: WG partial for (h = w>>1, t)")
    e(f"s_lshr_b32 s{t0}, s{sW}, 1")
    e(f"s_lshl_b32 s{t1}, s{t0}, 3"); e(f"s_add_u32 s{t1}, s{t1}, {L_MLP}")
    e(f"v_mov_b32 v24, s{t1}")
    for w in range(8):
        e(f"ds_read_b64 {vr(28+2*w,2)}, v24 offset:{16*w}")
    e(f"v_lshlrev_b32 v25, 2, v0"); e(f"v_add_u32 v25, {L_OP}, v25")
    for w in range(8):
        e(f"ds_read_b32 v{44+w}, v25 offset:{1024*w}")
    e("s_waitcnt lgkmcnt(8)")
    e("v_max3_f32 v26, v28, v30, v32"); e("v_max3_f32 v26, v26, v34, v36"); e("v_max3_f32 v26, v26, v38, v40"); e("v_max_f32 v26, v26, v42")
    for w in range(8):
        e(f"v_sub_f32 v{28+2*w}, v{28+2*w}, v26")
    for w in range(8):
        e(f"v_mul_f32 v{28+2*w}, s{sL2E}, v{28+2*w}")
    for w in range(8):
        e(f"v_exp_f32 v{28+2*w}, v{28+2*w}")
    e("s_waitcnt lgkmcnt(0)")
    e("v_mul_f32 v52, v28, v44"); e("v_mul_f32 v27, v28, v29")
    for w in range(1, 8):
        e(f"v_fmac_f32 v52, v{28+2*w}, v{44+w}"); e(f"v_fmac_f32 v27, v{28+2*w}, v{29+2*w}")
    e(f"v_mov_b32 v53, s{sTAG}")
    e(f"s_lshl_b32 s{t1}, s{sPAIR}, 3"); e(f"s_or_b32 s{t1}, s{t1}, s{sS}")
    e(f"s_lshl_b32 s{t2}, s{t1}, 11"); e(f"s_add_u32 s{t2}, s{t2}, {WS_OG}")
    e("v_lshlrev_b32 v54, 3, v0")
    e(f"buffer_store_dwordx2 v[52:53], v54, {sr(rWS,4)}, s{t2} offen sc1")
    e(f"s_and_b32 s{t2}, s{sW}, 1"); e(f"s_cmp_eq_u32 s{t2}, 0"); e("s_cbranch_scc0 L_ml_done")
    e(f"v_cmp_eq_u32 vcc, 1, v{vLANE}"); e("s_nop 1")
    e("v_cndmask_b32 v56, v26, v27, vcc"); e(f"v_mov_b32 v57, s{sTAG}")
    e(f"s_lshl_b32 s{t2}, s{t1}, 5"); e(f"s_lshl_b32 s{t3}, s{t0}, 3"); e(f"s_add_u32 s{t2}, s{t2}, s{t3}"); e(f"s_add_u32 s{t2}, s{t2}, {WS_MLG}")
    e(f"v_lshlrev_b32 v58, 4, v{vLANE}")
    e("s_mov_b64 exec, 3")
    e(f"buffer_store_dwordx2 v[56:57], v58, {sr(rWS,4)}, s{t2} offen sc1")
    e("s_mov_b64 exec, -1")
    a.lab("L_ml_done")
    c("T4: poll ML granules of the group for head h")
    e(f"v_and_b32 v24, 7, v{vLANE}"); e("v_lshlrev_b32 v24, 5, v24")
    e(f"v_bfe_u32 v25, v{vLANE}, 3, 1"); e("v_lshl_add_u32 v24, v25, 4, v24")
    e(f"s_lshl_b32 s{t2}, s{sPAIR}, 8"); e(f"s_lshl_b32 s{t3}, s{t0}, 3"); e(f"s_add_u32 s{t2}, s{t2}, s{t3}"); e(f"s_add_u32 s{t2}, s{t2}, {WS_MLG}")
    a.lab("L_poll_ml")
    e(f"buffer_load_dwordx2 v[26:27], v24, {sr(rWS,4)}, s{t2} offen sc1")
    e("s_waitcnt vmcnt(0)")
    e(f"v_cmp_ne_u32 vcc, s{sTAG}, v27")
    e("s_cbranch_vccz L_ml_ok")
    e(f"s_sub_u32 s{sSPIN}, s{sSPIN}, 1"); e(f"s_cmp_eq_u32 s{sSPIN}, 0"); e("s_cbranch_scc1 L_ml_ok")
    e(f"s_sleep {P['SLEEP']}")
    e("s_branch L_poll_ml")
    a.lab("L_ml_ok")
    e(f"s_lshl_b32 s{t3}, s{sPAIR}, 14"); e(f"s_add_u32 s{t3}, s{t3}, {WS_OG}")
    a.lab("L_gather_o")
    e(f"s_mov_b32 s{t2}, s{t3}")
    for s_ in range(8):
        e(f"buffer_load_dwordx2 {vr(28+2*s_,2)}, v54, {sr(rWS,4)}, s{t2} offen sc1")
        if s_ < 7: e(f"s_add_u32 s{t2}, s{t2}, 2048")
    e("v_mov_b32 v44, v26")
    e("s_nop 1")
    e("v_max_f32_dpp v44, v44, v44 quad_perm:[1,0,3,2] row_mask:0xf bank_mask:0xf"); e("s_nop 1")
    e("v_max_f32_dpp v44, v44, v44 quad_perm:[2,3,0,1] row_mask:0xf bank_mask:0xf"); e("s_nop 1")
    e("v_max_f32_dpp v44, v44, v44 row_half_mirror row_mask:0xf bank_mask:0xf")
    e("v_mov_b32_dpp v45, v26 row_ror:8 row_mask:0xf bank_mask:0xf")
    e("v_sub_f32 v46, v26, v44"); e(f"v_mul_f32 v46, s{sL2E}, v46"); e("v_exp_f32 v46, v46"); e("s_nop 0")
    e("v_mul_f32 v47, v46, v45")
    e("s_nop 1")
    e("v_add_f32_dpp v47, v47, v47 quad_perm:[1,0,3,2] row_mask:0xf bank_mask:0xf"); e("s_nop 1")
    e("v_add_f32_dpp v47, v47, v47 quad_perm:[2,3,0,1] row_mask:0xf bank_mask:0xf"); e("s_nop 1")
    e("v_add_f32_dpp v47, v47, v47 row_half_mirror row_mask:0xf bank_mask:0xf")
    e("v_rcp_f32 v47, v47"); e("s_nop 0")
    e("v_mul_f32 v46, v46, v47"); e("s_nop 0")
    for s_ in range(8):
        e(f"v_readlane_b32 s{sWT+s_}, v46, {s_}")
    e("s_waitcnt vmcnt(0)")
    e(f"v_xor_b32 v48, s{sTAG}, v29")
    for s_ in range(1, 8):
        e(f"v_xor_b32 v49, s{sTAG}, v{29+2*s_}"); e("v_or_b32 v48, v48, v49")
    e("v_cmp_ne_u32 vcc, 0, v48")
    e("s_cbranch_vccz L_o_ok")
    e(f"s_sub_u32 s{sSPIN}, s{sSPIN}, 1"); e(f"s_cmp_eq_u32 s{sSPIN}, 0"); e("s_cbranch_scc1 L_o_ok")
    e("s_branch L_gather_o")
    a.lab("L_o_ok")
    e(f"v_mul_f32 v48, s{sWT}, v28")
    for s_ in range(1, 8):
        e(f"v_fmac_f32 v48, s{sWT+s_}, v{28+2*s_}")
    e("v_cvt_pk_bf16_f32 v48, v48, v48")
    e(f"v_lshlrev_b32 v49, 1, v0"); e(f"v_add_u32 v49, {L_VAL}, v49")
    e("ds_write_b16 v49, v48")
    if DEBUG:
        e(f"v_lshlrev_b32 v50, 16, v48")
        e(f"s_lshl_b32 s{t0}, s2, 10"); e(f"s_add_u32 s{t0}, s{t0}, {WS_DBG + 0x40000}")
        e("v_lshlrev_b32 v51, 2, v0")
        e(f"buffer_store_dword v50, v51, {sr(rWS,4)}, s{t0} offen")
    e("s_branch L_t5")
    a.lab("L_hgather")
    c("waves 4-7: gather the 288 hidden values of the group")
    e(f"v_subrev_u32 v24, 256, v0")
    e("v_lshlrev_b32 v25, 3, v24")
    e("v_min_u32 v26, 31, v24"); e("v_lshlrev_b32 v26, 3, v26")
    e(f"s_mul_i32 s{t0}, s{sPAIR}, {288*8}"); e(f"s_add_u32 s{t0}, s{t0}, {WS_HG}")
    a.lab("L_gather_h")
    e(f"buffer_load_dwordx2 v[28:29], v25, {sr(rWS,4)}, s{t0} offen sc1")
    e(f"buffer_load_dwordx2 v[30:31], v26, {sr(rWS,4)}, s{t0} offen offset:2048 sc1")
    e("s_waitcnt vmcnt(0)")
    e(f"v_xor_b32 v32, s{sTAG}, v29"); e(f"v_xor_b32 v33, s{sTAG}, v31"); e("v_or_b32 v32, v32, v33")
    e("v_cmp_ne_u32 vcc, 0, v32")
    e("s_cbranch_vccz L_h_ok")
    e(f"s_sub_u32 s{sSPIN}, s{sSPIN}, 1"); e(f"s_cmp_eq_u32 s{sSPIN}, 0"); e("s_cbranch_scc1 L_h_ok")
    e(f"s_sleep {P['SLEEP']}")
    e("s_branch L_gather_h")
    a.lab("L_h_ok")
    e("v_lshlrev_b32 v32, 1, v24"); e(f"v_add_u32 v32, {L_VALH}, v32")
    e("ds_write_b16_d16_hi v32, v28")
    e("v_min_u32 v33, 31, v24"); e("v_lshlrev_b32 v33, 1, v33"); e(f"v_add_u32 v33, {L_VALH + 512}, v33")
    e("ds_write_b16_d16_hi v33, v30")
    a.lab("L_t5")
    e("s_waitcnt lgkmcnt(0)")
    e("s_barrier")
    c("---- T5: projection slice")
    SEL5 = 24
    make_selq(SEL5, 32, 33, 34)
    e(f"s_cmp_lt_u32 s{sW}, 4")
    e(f"s_cselect_b32 s{t0}, 16, 18")
    e(f"s_lshl_b32 s{t1}, s{sW}, 7"); e(f"s_add_u32 s{t1}, s{t1}, {L_VAL}")
    e(f"s_mul_i32 s{t2}, s{sW}, 144"); e(f"s_add_u32 s{t2}, s{t2}, {L_VALH - 576}")
    e(f"s_cmp_lt_u32 s{sW}, 4")
    e(f"s_cselect_b32 s{t1}, s{t1}, s{t2}")
    e(f"v_lshrrev_b32 v32, 4, v{vLANE}")
    e(f"v_mul_u32_u24 v32, s{t0}, v32")
    e(f"v_lshlrev_b32 v33, 1, v32"); e(f"v_add_u32 v33, s{t1}, v33")
    VP = 36
    for t in range(9):
        e(f"ds_read_b32 v{VP+t}, v33 offset:{4*t}")
    e("v_mul_u32_u24 v32, 9, v32")
    e(f"v_and_b32 v34, 15, v{vLANE}"); e("v_min_u32 v34, 8, v34"); e("v_add_u32 v32, v32, v34")
    e("v_lshlrev_b32 v32, 4, v32")
    e(f"s_mul_i32 s{t2}, s{sW}, 11264"); e(f"s_add_u32 s{t2}, s{t2}, {L_WW}")
    e(f"v_add_u32 v32, s{t2}, v32")
    WT = 48
    for j in range(18):
        e(f"ds_read_b128 {vr(WT+4*j,4)}, v32 offset:{144*j}")
    e("s_waitcnt lgkmcnt(0)")
    B5 = 120
    for j in range(18):
        for k in range(4):
            e(f"v_perm_b32 v{B5+4*j+k}, v{VP+(j>>1)}, v{VP+(j>>1)}, v{SEL5+(j&1)*4+k}")
    YACC = 20
    for j in range(18):
        if j == 16:
            e(f"s_cmp_lt_u32 s{sW}, 4"); e("s_cbranch_scc1 L_t5_done")
        cc = "0" if j == 0 else vr(YACC, 4)
        e(f"v_mfma_f32_16x16x32_bf16 {vr(YACC,4)}, {vr(WT+4*j,4)}, {vr(B5+4*j,4)}, {cc}")
    a.lab("L_t5_done")
    e(f"v_lshrrev_b32 v32, 4, v{vLANE}"); e("v_lshlrev_b32 v32, 7, v32")
    e(f"v_bfe_u32 v33, v{vLANE}, 3, 1"); e("v_lshl_add_u32 v32, v33, 6, v32")
    e(f"v_and_b32 v33, 7, v{vLANE}"); e("v_lshl_add_u32 v32, v33, 2, v32")
    e(f"s_lshl_b32 s{t0}, s{sW}, 9"); e(f"s_add_u32 s{t0}, s{t0}, {L_YP}")
    e(f"v_add_u32 v32, s{t0}, v32")
    e("s_nop 3")
    e(f"v_cndmask_b32 v33, v{YACC}, v{YACC+2}, {sr(sX1,2)}")
    e(f"v_cndmask_b32 v34, v{YACC+1}, v{YACC+3}, {sr(sX1,2)}")
    e("ds_write_b32 v32, v33"); e("ds_write_b32 v32, v34 offset:32")
    e("s_waitcnt lgkmcnt(0)")
    e("s_barrier")
    e(f"s_cmp_lt_u32 s{sW}, 3"); e("s_cbranch_scc0 L_end")
    c("threads j<144: kind=j&1, col=j>>1 : sum 4 partials, publish")
    e("v_min_u32 v24, 143, v0")
    e("v_and_b32 v25, 1, v24"); e("v_lshrrev_b32 v26, 1, v24")
    e("v_lshlrev_b32 v27, 11, v25"); e("v_lshl_add_u32 v27, v26, 2, v27"); e(f"v_add_u32 v27, {L_YP}, v27")
    for w in range(4):
        e(f"ds_read_b32 v{28+w}, v27 offset:{512*w}")
    e(f"s_mul_i32 s{t0}, s{sB}, 1152"); e(f"s_mul_i32 s{t1}, s{sS}, 144"); e(f"s_add_u32 s{t0}, s{t0}, s{t1}")
    mk_srd(rA, pX, None, None, size=2304)
    mk_srd(rB, pB2, None, None, size=1152)
    e("v_lshlrev_b32 v40, 1, v26")
    e(f"buffer_load_ushort v41, v40, {sr(rA,4)}, s{t0} offen")
    e(f"buffer_load_ushort v42, v40, {sr(rB,4)}, s{t1} offen")
    e("s_waitcnt lgkmcnt(0)")
    e("v_add_f32 v28, v28, v29"); e("v_add_f32 v30, v30, v31"); e("v_add_f32 v28, v28, v30")
    e(f"v_mov_b32 v29, s{sTAG}")
    e(f"s_lshl_b32 s{t2}, s{sB}, 3"); e(f"s_or_b32 s{t2}, s{t2}, s{sS}"); e(f"s_lshl_b32 s{t2}, s{t2}, 4")
    e(f"s_mul_i32 s{t3}, s{t2}, 1152"); e(f"s_add_u32 s{t3}, s{t3}, {WS_YG}")
    e(f"s_mul_i32 s{t2}, s{sHKV}, 1152"); e(f"s_add_u32 s{t2}, s{t2}, s{t3}")
    e("v_lshlrev_b32 v30, 3, v24")
    e("v_cmp_gt_u32 vcc, 144, v0")
    e(f"s_and_saveexec_b64 {sr(sEX,2)}, vcc")
    e(f"buffer_store_dwordx2 v[28:29], v30, {sr(rWS,4)}, s{t2} offen sc1")
    e(f"s_mov_b64 exec, {sr(sEX,2)}")
    e(f"s_cmp_eq_u32 s{sHKV}, s{sS}"); e("s_cbranch_scc0 L_end")
    c("---- T6: final reducer for (b, s)")
    G6 = 48
    a.lab("L_gather_y")
    e(f"s_mov_b32 s{t2}, s{t3}")
    for k in range(16):
        e(f"buffer_load_dwordx2 {vr(G6+2*k,2)}, v30, {sr(rWS,4)}, s{t2} offen sc1")
        if k < 15: e(f"s_add_u32 s{t2}, s{t2}, 1152")
    e("s_waitcnt vmcnt(0)")
    e(f"v_xor_b32 v32, s{sTAG}, v{G6+1}")
    for k in range(1, 16):
        e(f"v_xor_b32 v33, s{sTAG}, v{G6+2*k+1}"); e("v_or_b32 v32, v32, v33")
    e("v_cmp_ne_u32 vcc, 0, v32")
    e("s_cbranch_vccz L_y_ok")
    e(f"s_sub_u32 s{sSPIN}, s{sSPIN}, 1"); e(f"s_cmp_eq_u32 s{sSPIN}, 0"); e("s_cbranch_scc1 L_y_ok")
    e("s_branch L_gather_y")
    a.lab("L_y_ok")
    idx = [G6 + 2*k for k in range(16)]
    while len(idx) > 1:
        nxt = []
        for i in range(0, len(idx), 2):
            e(f"v_add_f32 v{idx[i]}, v{idx[i]}, v{idx[i+1]}"); nxt.append(idx[i])
        idx = nxt
    bf16r(32, G6)
    e("s_nop 1")
    e("v_mov_b32_dpp v33, v32 quad_perm:[1,0,3,2] row_mask:0xf bank_mask:0xf")
    e("v_lshlrev_b32 v41, 16, v41"); e("v_lshlrev_b32 v42, 16, v42")
    e("v_add_f32 v32, v41, v32"); bf16r(32, 32)
    e("v_add_f32 v33, v33, v42"); bf16r(33, 33)
    e("v_add_f32 v32, v32, v33"); e("v_cvt_pk_bf16_f32 v32, v32, v32")
    mk_srd(rA, pOUT, None, None, size=2304)
    e("v_and_b32 v33, 1, v0"); e("v_cmp_eq_u32 vcc, 0, v33")
    e(f"s_mov_b64 {sr(t4,2)}, vcc")
    e("v_cmp_gt_u32 vcc, 144, v0")
    e(f"s_and_b64 vcc, vcc, {sr(t4,2)}")
    e(f"s_and_saveexec_b64 {sr(sEX,2)}, vcc")
    e(f"buffer_store_short v32, v40, {sr(rA,4)}, s{t0} offen")
    e(f"s_mov_b64 exec, {sr(sEX,2)}")
    e(f"s_or_b32 s{t1}, s{sS}, s{sW}"); e(f"s_cmp_eq_u32 s{t1}, 0"); e("s_cbranch_scc0 L_end")
    e(f"s_lshl_b32 s{t1}, s{sB}, 8")
    e(f"v_mov_b32 v33, s{sTAG}"); e("v_mov_b32 v34, 0")
    e("s_mov_b64 exec, 1")
    e(f"buffer_store_dword v33, v34, {sr(rWS,4)}, s{t1} offen sc1")
    a.lab("L_end")
    e("s_endpgm")
    a.raw('.section .rodata,"a"')
    a.raw(".p2align 6")
    a.raw(f".amdhsa_kernel {NAME}_kernel")
    a.raw("  .amdhsa_next_free_vgpr 256")
    a.raw("  .amdhsa_next_free_sgpr 100")
    a.raw("  .amdhsa_accum_offset 256")
    a.raw("  .amdhsa_group_segment_fixed_size 0")
    a.raw("  .amdhsa_kernarg_size 104")
    a.raw("  .amdhsa_user_sgpr_count 2")
    a.raw("  .amdhsa_user_sgpr_kernarg_segment_ptr 1")
    a.raw("  .amdhsa_system_sgpr_workgroup_id_x 1")
    a.raw("  .amdhsa_float_denorm_mode_32 3")
    a.raw(".end_amdhsa_kernel")
    return "\n".join(x for x in a.L if x is not None) + "\n"

if __name__ == "__main__":
    out = sys.argv[1]
    kw = {}
    for arg in sys.argv[2:]:
        k, v = arg.split("=")
        kw[k] = int(v) if v.lstrip("-").isdigit() else v
    open(out, "w").write(gen(**kw))
```

```python
import re
RV = re.compile(r'^v(\d+)$'); RVR = re.compile(r'^v\[(\d+):(\d+)\]$')
RS = re.compile(r'^s(\d+)$'); RSR = re.compile(r'^s\[(\d+):(\d+)\]$')
TRANS = ("v_exp_", "v_log_", "v_rcp_", "v_rsq_", "v_sqrt_", "v_sin_", "v_cos_")
def regs(tok):
    tok = tok.strip()
    neg = tok.lstrip('-')
    if neg.startswith("abs(") or neg.startswith("|"): neg = neg.strip("abs()|")
    m = RV.match(neg)
    if m: return [("v", int(m.group(1)))]
    m = RVR.match(neg)
    if m: return [("v", i) for i in range(int(m.group(1)), int(m.group(2)) + 1)]
    m = RS.match(neg)
    if m: return [("s", int(m.group(1)))]
    m = RSR.match(neg)
    if m: return [("s", i) for i in range(int(m.group(1)), int(m.group(2)) + 1)]
    if neg == "vcc": return [("s", 106), ("s", 107)]
    if neg == "exec": return [("s", 126), ("s", 127)]
    if neg == "m0": return [("s", 124)]
    return []
class I:
    def __init__(s, line):
        s.line = line
        t = line.split(";")[0].strip()
        s.text = t
        s.label = t.endswith(":")
        s.isinst = bool(t) and not s.label and not t.startswith(".")
        s.op = ""; s.dst = []; s.src = []; s.ws = 0
        if not s.isinst: return
        parts = t.split(None, 1)
        s.op = parts[0]
        rest = parts[1] if len(parts) > 1 else ""
        ops = []; depth = 0; cur = ""
        for ch in rest:
            if ch in "[(": depth += 1
            if ch in "])": depth -= 1
            if ch == "," and depth == 0: ops.append(cur); cur = ""
            else: cur += ch
        ops.append(cur)
        toks = []
        for i, o in enumerate(ops):
            o = o.strip()
            if not o: continue
            toks.append(o.split()[0] if not o.startswith("quad_perm") else "")
        s.mods = rest
        op = s.op
        s.valu = op.startswith("v_") and not op.startswith("v_mfma")
        s.mfma = op.startswith("v_mfma")
        s.trans = op.startswith(TRANS)
        s.dpp = ("_dpp" in op) or ("quad_perm" in rest) or ("row_" in rest)
        s.perml = op.startswith("v_permlane")
        s.vmem = op.startswith(("buffer_", "global_", "flat_"))
        s.ds = op.startswith("ds_")
        s.salu = op.startswith("s_")
        s.ws = 1
        if op == "s_nop": s.ws = int(toks[0], 0) + 1
        R = [regs(x) for x in toks]
        flat = lambda L: [r for x in L for r in x]
        if s.mfma:
            s.dst = R[0]; s.A = R[1]; s.B = R[2]; s.C = R[3] if len(R) > 3 else []
            s.src = s.A + s.B + s.C
        elif s.valu:
            if op.startswith("v_cmp"):
                s.dst = R[0]; s.src = flat(R[1:])
            elif s.perml:
                s.dst = R[0] + R[1]; s.src = R[0] + R[1]
            elif op.startswith(("v_add_co", "v_sub_co", "v_addc_co", "v_subb_co")):
                s.dst = R[0] + R[1]; s.src = flat(R[2:])
            else:
                s.dst = R[0]; s.src = flat(R[1:])
                if op.startswith(("v_fmac", "v_dot2c", "v_writelane")): s.src += R[0]
                if op.startswith("v_cndmask") and len(R) == 3: s.src += regs("vcc")
                if op.startswith("v_cndmask") and "_e32" in op: s.src += regs("vcc")
        elif s.vmem:
            islds = " lds" in (" " + rest)
            if "load" in op and not islds: s.dst = R[0]; s.src = flat(R[1:])
            elif "atomic" in op and "sc0" in rest and op.startswith("buffer"): s.dst = R[0]; s.src = flat(R)
            else: s.src = flat(R)
            s.islds = islds
            s.store_wide = ("store" in op and ("x4" in op or "x3" in op))
            s.data = R[0] if "store" in op else []
        elif s.ds:
            if op.startswith("ds_read") or "rtn" in op or op.startswith(("ds_bpermute", "ds_swizzle", "ds_permute")): s.dst = R[0]; s.src = flat(R[1:])
            else: s.src = flat(R)
        elif s.salu:
            if op.startswith(("s_cmp", "s_cbranch", "s_branch", "s_waitcnt", "s_barrier", "s_nop", "s_sleep", "s_endpgm", "s_setprio")):
                s.src = flat(R)
            else:
                s.dst = R[0] if R else []; s.src = flat(R[1:])
def passes(op):
    if "32x32x16" in op: return 8
    if "16x16x32" in op or "16x16x16" in op: return 4
    return 16
def need(prev, cur):
    n = 0
    pd = set(prev.dst); cs = set(cur.src); cd = set(cur.dst)
    if prev.valu:
        vw = {r for r in pd if r[0] == "v"}; sw = {r for r in pd if r[0] == "s"}
        if cur.valu and cur.dpp and vw & cs: n = max(n, 2)
        if cur.valu and cur.perml and vw & cs: n = max(n, 2)
        if cur.mfma and vw & cs: n = max(n, 2)
        if prev.trans and cur.valu and not cur.trans and vw & cs: n = max(n, 1)
        if prev.trans and (cur.mfma or cur.vmem or cur.ds) and vw & cs: n = max(n, 1)
        if cur.valu and cur.op.startswith(("v_readlane", "v_readfirstlane")) and vw & cs: n = max(n, 1)
        if sw:
            if cur.valu and sw & cs: n = max(n, 4 if cur.op.startswith(("v_readlane", "v_writelane")) else 2)
            if cur.vmem and sw & cs: n = max(n, 5)
            if cur.salu and sw & cs: n = max(n, 1)
            if cur.valu and cur.dpp and (("s",126) in sw): n = max(n, 5)
    if prev.mfma:
        p = passes(prev.op); tbl = {2: 5, 4: 8, 8: 12, 16: 20}[p]
        if cur.mfma:
            if pd & (set(cur.A) | set(cur.B)): n = max(n, tbl)
            if pd & set(cur.C):
                if not (cur.C == prev.dst and passes(cur.op) == p): n = max(n, {2: 4, 4: 6, 8: 10, 16: 18}[p])
        elif (cur.valu or cur.vmem or cur.ds) and pd & (cs | cd): n = max(n, tbl)
        if cur.valu and set(prev.C) & cd and not (pd & cd): n = max(n, {2: 1, 4: 3, 8: 7, 16: 15}[p])
    if prev.salu and ("s", 124) in pd and cur.vmem and getattr(cur, "islds", False): n = max(n, 1)
    if prev.vmem and getattr(prev, "store_wide", False) and set(prev.data) & cd: n = max(n, 2)
    return n
def fix(lines, verbose=False, window=24):
    out = []; hist = []
    nins = 0
    for ln in lines:
        cur = I(ln)
        if not cur.isinst:
            out.append(ln); continue
        dist = 0; req = 0
        for prev in reversed(hist[-window:]):
            n = need(prev, cur)
            if n > dist: req = max(req, n - dist)
            dist += prev.ws
            if dist >= 20: break
        if req > 0:
            k = req
            while k > 0:
                c = min(k, 16)
                nop = f"  s_nop {c-1}"
                out.append(nop + "   ; hazard"); hist.append(I(nop)); k -= c
            nins += 1
            if verbose: print("hazard: inserted", req, "before:", cur.text)
        out.append(ln); hist.append(cur)
    return out, nins
```

```python
import sys
sys.path.insert(0, "gen")
import hazard
NAME = "parallel_sum__gqa_block_cached__dense_activation_squared_relu__decode"

DEFAULTS = dict(TL=2, NB=1, KVPOL="nt", WPOL="", DEBUG=0, SLEEP=1, SPIN=20000, PROF=0)

WS_EPOCH = 0
WS_HG    = 0x1000
WS_MLG   = 0x14000
WS_OG    = 0x20000
WS_YG    = 0xA0000
WS_QG    = 0xF0000
WS_DBG   = 0x100000
WS_PROF  = 0x1C0000
WS_SIZE  = 0x200000

L_W1  = 0
L_WW  = 49152
L_OP  = 139264
L_HP  = 147456
L_QB  = 149504
L_MLP = 150016
L_VAL = 150144
L_VALH = L_VAL + 512
L_YP  = 151296
L_END = L_YP + 4096

LOG2E = 0x3FB8AA3B
SCALE = 0x3DB504F3

class A:
    def __init__(s): s.L = []
    def e(s, x): s.L.append("  " + x)
    def lab(s, x): s.L.append(x + ":")
    def c(s, x): s.L.append("  ; " + x)
    def raw(s, x): s.L.append(x)
def vr(a, n): return f"v[{a}:{a+n-1}]"
def sr(a, n): return f"s[{a}:{a+n-1}]"

def gen(**kw):
    P = dict(DEFAULTS); P.update(kw)
    TL, NB, KVPOL, WPOL, DEBUG = P["TL"], P["NB"], P["KVPOL"], P["WPOL"], P["DEBUG"]
    NW = 8
    tile_bytes = TL * 1024
    ntiles = (1 << 20) // tile_bytes // NW
    assert ntiles % NB == 0 and TL in (1, 2, 4)
    a = A(); e = a.e; c = a.c
    hdr = []
    hdr.append(f"; params: {P}")
    hdr.append(f"; @launch grid=(256,1,1) block=(512,1,1) lds={(L_END + 255)//256*256}")
    a.raw('.amdgcn_target "amdgcn-amd-amdhsa--gfx950"')
    a.raw(".text"); a.raw(f".globl {NAME}_kernel"); a.raw(".p2align 8"); a.raw(f".type {NAME}_kernel,@function")
    a.lab(f"{NAME}_kernel")

    pX, pK, pV, pWQ = 8, 10, 12, 14
    pWO, pOUT = 16, 18
    pW1, pB1, pW2, pB2 = 20, 22, 24, 26
    pWS = 28
    sB, sHKV, sS, sPAIR, sW, sTAG = 30, 31, 32, 33, 34, 35
    rK, rV, rWS, rA, rB, rC = 36, 40, 44, 48, 52, 56
    sTOFF, sCNT = 60, 61
    t0, t1, t2, t3 = 62, 63, 64, 65
    sEQ = [66, 68, 70, 72]
    sX1 = 74
    sHX = [76, 78, 80]
    sWT = 82
    sSPIN = 90
    sL2E, sSCL = 91, 92
    sEX = 94
    t4, t5 = 96, 97
    vLANE, vKOFF, vVOFF = 1, 2, 3
    BK = 4; MASK = 8
    vM, vL, vML = 12, 13, 14
    vt = [15, 16, 17, 18, 19]
    ACC = 20
    DB = 24
    SREG = 40
    KV0 = 48
    def kreg(b, j): return KV0 + b * (8 * TL) + j * 4
    def vreg(b, j): return KV0 + b * (8 * TL) + 4 * TL + j * 4
    PR0 = KV0 + NB * 8 * TL
    assert PR0 + 100 <= 256
    WQT = PR0
    XP = PR0 + 20
    SELQ = PR0 + 30
    SELX = PR0 + 38
    SELH = PR0 + 42
    HA = PR0 + 46
    HB = PR0 + 82
    NV = PR0 + 100
    vB1, vMISC = 44, 45
    D1, D2, HACC = 24, 28, 32
    BQ = [4, 8]

    def mk_srd(r, ptr, off_s=None, size=None, size_s=None):
        if off_s is not None:
            e(f"s_add_u32 s{r}, s{ptr}, s{off_s}"); e(f"s_addc_u32 s{r+1}, s{ptr+1}, 0")
            e(f"s_and_b32 s{r+1}, s{r+1}, 0xffff")
        else:
            e(f"s_mov_b32 s{r}, s{ptr}"); e(f"s_and_b32 s{r+1}, s{ptr+1}, 0xffff")
        if size_s is not None: e(f"s_mov_b32 s{r+2}, s{size_s}")
        else: e(f"s_mov_b32 s{r+2}, {size}")
        e(f"s_mov_b32 s{r+3}, 0x20000")
    def bf16r(d, s_): e(f"v_cvt_pk_bf16_f32 v{d}, 0, v{s_}")
    def cross_rows(x, y, op):
        e(f"v_mov_b32 v{y}, v{x}")
        e(f"v_permlane16_swap_b32 v{x}, v{y}"); e("s_nop 0")
        e(f"{op} v{x}, v{x}, v{y}")
        e(f"v_mov_b32 v{y}, v{x}")
        e(f"v_permlane32_swap_b32 v{x}, v{y}"); e("s_nop 0")
        e(f"{op} v{x}, v{x}, v{y}")
    def wave_reduce(x, y, op):
        for pat in ["quad_perm:[1,0,3,2]", "quad_perm:[2,3,0,1]", "row_half_mirror", "row_mirror"]:
            e(f"{op}_dpp v{x}, v{x}, v{x} {pat} row_mask:0xf bank_mask:0xf")
        cross_rows(x, y, op)
    STAMPS = [3, 6, 7, 98, 99, 10, 11, 12, 13, 14, 15, 20]
    def stamp(i):
        if not P["PROF"]: return
        e("s_memrealtime s[4:5]"); e("s_waitcnt lgkmcnt(0)"); e(f"s_mov_b32 s{STAMPS[i]}, s4")
    def spin_check(okl):
        e(f"s_sub_u32 s{sSPIN}, s{sSPIN}, 1"); e(f"s_cmp_eq_u32 s{sSPIN}, 0"); e(f"s_cbranch_scc1 {okl}")

    c("---- phase 0: ids, pointers")
    e("s_cmp_ge_u32 s2, 256")
    e("s_cbranch_scc1 L_exit")
    stamp(0)
    e(f"s_load_dwordx8 {sr(8,8)}, s[0:1], 0")
    e(f"s_load_dwordx2 {sr(pWS,2)}, s[0:1], 96")
    e(f"s_load_dwordx8 {sr(20,8)}, s[0:1], 48")
    e(f"s_load_dwordx2 {sr(pWO,2)}, s[0:1], 32")
    e(f"s_load_dwordx2 {sr(pOUT,2)}, s[0:1], 80")
    e(f"s_and_b32 s{t0}, s2, 7")
    e(f"s_lshr_b32 s{t1}, s2, 3")
    e(f"s_and_b32 s{sS}, s{t1}, 7")
    e(f"s_bfe_u32 s{t2}, s{t1}, 0x10003")
    e(f"s_lshr_b32 s{sB}, s{t1}, 4")
    e(f"s_lshl_b32 s{t2}, s{t2}, 3")
    e(f"s_or_b32 s{sHKV}, s{t0}, s{t2}")
    e(f"s_lshl_b32 s{sPAIR}, s{sB}, 4")
    e(f"s_or_b32 s{sPAIR}, s{sPAIR}, s{sHKV}")
    e(f"v_and_b32 v{vLANE}, 63, v0")
    e(f"v_lshrrev_b32 v{vt[0]}, 6, v0")
    e(f"s_mov_b32 s{sL2E}, {LOG2E:#x}")
    e(f"v_readfirstlane_b32 s{sW}, v{vt[0]}")
    vG, vR = vt[1], vt[2]
    e(f"v_lshrrev_b32 v{vG}, 4, v{vLANE}")
    e(f"v_and_b32 v{vR}, 15, v{vLANE}")
    e(f"v_lshrrev_b32 v{vt[3]}, 2, v{vR}")
    e(f"v_mul_u32_u24 v4, 18, v{vG}"); e(f"v_add_u32 v4, v4, v{vt[3]}"); e("v_lshlrev_b32 v4, 13, v4")
    e(f"v_and_b32 v{vt[4]}, 3, v{vR}")
    e(f"v_lshl_add_u32 v4, v{vt[4]}, 4, v4")
    e(f"v_lshlrev_b32 v{vt[3]}, 8, v{vt[3]}")
    e(f"v_lshl_add_u32 v{vt[3]}, v{vG}, 6, v{vt[3]}")
    e(f"v_lshl_add_u32 v{vKOFF}, v{vt[4]}, 4, v{vt[3]}")
    e(f"v_lshlrev_b32 v{vVOFF}, 4, v{vLANE}")
    e(f"v_mul_u32_u24 v{vMISC}, 36, v{vG}")
    e(f"v_lshlrev_b32 v5, 2, v{vLANE}")
    e(f"s_mov_b32 s{sSCL}, {SCALE:#x}")
    e(f"s_mul_i32 s{t0}, s{sB}, 1152")
    e(f"s_mul_i32 s{t1}, s{sW}, 144")
    e(f"s_lshl_b32 s{t3}, s{sB}, 8")
    e("s_waitcnt lgkmcnt(0)")
    e(f"s_load_dword s{sTAG}, {sr(pWS,2)}, s{t3}")
    mk_srd(rA, pX, off_s=t0, size=1152)
    XS = 24
    for i in range(5):
        e(f"buffer_load_dword v{XS+i}, v5, {sr(rA,4)}, 0 offen offset:{256*i}")
    e(f"buffer_load_dwordx4 {vr(XP,4)}, v{vMISC}, {sr(rA,4)}, s{t1} offen")
    e(f"buffer_load_dwordx4 {vr(XP+4,4)}, v{vMISC}, {sr(rA,4)}, s{t1} offen offset:16")
    e(f"buffer_load_dword v{XP+8}, v{vMISC}, {sr(rA,4)}, s{t1} offen offset:32")
    e(f"s_lshl_b32 s{t0}, s{sHKV}, 9"); e(f"s_lshl_b32 s{t1}, s{sS}, 6"); e(f"s_add_u32 s{t0}, s{t0}, s{t1}")
    e(f"s_sub_u32 s{t1}, {576*8192}, s{t0}")
    mk_srd(rB, pWQ, off_s=t0, size_s=t1)
    e(f"s_mul_i32 s{t2}, s{sW}, {72*8192}")
    for t in range(5):
        e(f"buffer_load_dwordx4 {vr(WQT+4*t,4)}, v4, {sr(rB,4)}, s{t2} offen {WPOL}")
        if t < 4: e(f"s_add_u32 s{t2}, s{t2}, {4*8192}")
    e(f"s_lshl_b32 s{t0}, s{sPAIR}, 3"); e(f"s_or_b32 s{t0}, s{t0}, s{sS}"); e(f"s_lshl_b32 s{t0}, s{t0}, 20")
    mk_srd(rK, pK, off_s=t0, size=1 << 20)
    mk_srd(rV, pV, off_s=t0, size=1 << 20)
    e(f"s_mul_i32 s{sTOFF}, s{sW}, {tile_bytes}")
    def issue_k(b):
        for j in range(TL):
            e(f"buffer_load_dwordx4 {vr(kreg(b,j),4)}, v{vKOFF}, {sr(rK,4)}, s{sTOFF} offen offset:{j*1024} {KVPOL}")
    def issue_v(b):
        for j in range(TL):
            e(f"buffer_load_dwordx4 {vr(vreg(b,j),4)}, v{vVOFF}, {sr(rV,4)}, s{sTOFF} offen offset:{j*1024} {KVPOL}")
        e(f"s_add_u32 s{sTOFF}, s{sTOFF}, {tile_bytes*NW}")
    for b in range(NB):
        issue_k(b); issue_v(b)
    nKV = NB * 2 * TL
    e(f"s_mul_i32 s{t0}, s{sHKV}, 576"); e(f"s_mul_i32 s{t1}, s{sS}, 72"); e(f"s_add_u32 s{t0}, s{t0}, s{t1}")
    mk_srd(rC, pB1, None, size=4608*2)
    e(f"v_lshlrev_b32 v6, 1, v{vLANE}")
    e(f"buffer_load_ushort v{vB1}, v6, {sr(rC,4)}, s{t0} offen")
    e(f"s_and_b32 s{t3}, s{t0}, 15")
    e(f"s_andn2_b32 s{t0}, s{t0}, 15")
    e(f"s_mul_i32 s{t1}, s{sW}, {72*9216}")
    e(f"s_add_u32 s{t0}, s{t0}, s{t1}")
    mk_srd(rC, pW1, None, size=576*9216)
    e(f"s_mul_i32 s{t1}, s{sW}, 6144")
    if L_W1: e(f"s_add_u32 s{t1}, s{t1}, {L_W1}")
    for t in range(6):
        e(f"v_add_u32 v6, {64*t}, v{vLANE}")
        e(f"v_mul_u32_u24 v7, 13108, v6"); e("v_lshrrev_b32 v7, 16, v7")
        e(f"v_mul_u32_u24 v7, {9216-80}, v7")
        e(f"v_lshl_add_u32 v7, v6, 4, v7")
        e(f"s_mov_b32 m0, s{t1}")
        e(f"s_add_u32 s{t1}, s{t1}, 1024")
        e(f"buffer_load_dwordx4 v7, {sr(rC,4)}, s{t0} offen {WPOL} lds")
    c("---- lane masks")
    e(f"v_and_b32 v{vt[0]}, 7, v{vLANE}")
    e(f"v_lshrrev_b32 v{vt[1]}, 1, v{vt[0]}")
    for k in range(4): e(f"v_cmp_eq_u32 {sr(sEQ[k],2)}, {k}, v{vt[1]}")
    e(f"v_bfe_u32 v{vt[1]}, v{vLANE}, 3, 1")
    e(f"v_cmp_eq_u32 {sr(sX1,2)}, 1, v{vt[1]}")
    e(f"v_bfe_u32 v{vt[1]}, v{vLANE}, 2, 2")
    for k in range(3): e(f"v_cmp_eq_u32 {sr(sHX[k],2)}, {k+1}, v{vt[1]}")
    def make_selq(SEL, ta, tb, tc):
        e(f"v_and_b32 v{ta}, 1, v{vLANE}")
        e(f"v_cmp_eq_u32 vcc, 1, v{ta}")
        e(f"v_mov_b32 v{ta}, 0x0c0c0100"); e(f"v_mov_b32 v{tb}, 0x01000c0c")
        e(f"v_cndmask_b32 v{ta}, v{ta}, v{tb}, vcc")
        e(f"v_mov_b32 v{tb}, 0x0c0c0302"); e(f"v_mov_b32 v{tc}, 0x03020c0c")
        e(f"v_cndmask_b32 v{tb}, v{tb}, v{tc}, vcc")
        e(f"v_mov_b32 v{tc}, 0x0c0c0c0c")
        for k in range(4):
            e(f"v_cndmask_b32 v{SEL+k}, v{tc}, v{ta}, {sr(sEQ[k],2)}")
            e(f"v_cndmask_b32 v{SEL+4+k}, v{tc}, v{tb}, {sr(sEQ[k],2)}")
    make_selq(SELQ, 6, 7, 8)
    for k in range(4):
        e(f"v_cndmask_b32 v{SELX+k}, v{SELQ+k}, v{SELQ+4+k}, {sr(sX1,2)}")
    e(f"v_bfe_u32 v9, v{vLANE}, 1, 1")
    e("v_cmp_eq_u32 vcc, 1, v9")
    e(f"v_cndmask_b32 v{SELH+0}, v6, v8, vcc"); e(f"v_cndmask_b32 v{SELH+1}, v8, v6, vcc")
    e(f"v_cndmask_b32 v{SELH+2}, v7, v8, vcc"); e(f"v_cndmask_b32 v{SELH+3}, v8, v7, vcc")
    c("---- LayerNorm statistics")
    e(f"s_waitcnt vmcnt({5 + nKV + 1 + 6})")
    stamp(1)
    LO = 29
    for i in range(5):
        e(f"v_lshlrev_b32 v{LO+i}, 16, v{XS+i}")
        e(f"v_and_b32 v{XS+i}, 0xffff0000, v{XS+i}")
    e(f"v_add_f32 v14, v{XS}, v{LO}")
    for i in range(1, 5):
        e(f"v_add_f32 v15, v{XS+i}, v{LO+i}"); e("v_add_f32 v14, v14, v15")
    wave_reduce(14, 15, "v_add_f32")
    e(f"v_mul_f32 v14, {0x3AE38E39:#x}, v14")
    e(f"v_cmp_gt_u32 vcc, 32, v{vLANE}")
    for i in range(5):
        e(f"v_sub_f32 v{XS+i}, v{XS+i}, v14"); e(f"v_sub_f32 v{LO+i}, v{LO+i}, v14")
    e(f"v_cndmask_b32 v{XS+4}, 0, v{XS+4}, vcc"); e(f"v_cndmask_b32 v{LO+4}, 0, v{LO+4}, vcc")
    e(f"v_mul_f32 v16, v{XS}, v{XS}"); e(f"v_mul_f32 v17, v{LO}, v{LO}")
    for i in range(1, 5):
        e(f"v_fmac_f32 v16, v{XS+i}, v{XS+i}"); e(f"v_fmac_f32 v17, v{LO+i}, v{LO+i}")
    e("v_add_f32 v16, v16, v17")
    wave_reduce(16, 15, "v_add_f32")
    e(f"v_mul_f32 v16, {0x3AE38E39:#x}, v16")
    bf16r(16, 16)
    e(f"v_add_f32 v16, {0x3727C5AC:#x}, v16")
    bf16r(16, 16)
    e("v_sqrt_f32 v16, v16")
    bf16r(16, 16)
    e("v_rcp_f32 v16, v16")
    bf16r(14, 14)
    for t in range(9):
        ta, tb = (XS + 2 * (t % 2), XS + 2 * (t % 2) + 1)
        e(f"v_lshlrev_b32 v{ta}, 16, v{XP+t}")
        e(f"v_and_b32 v{tb}, 0xffff0000, v{XP+t}")
        e(f"v_sub_f32 v{ta}, v{ta}, v14"); e(f"v_sub_f32 v{tb}, v{tb}, v14")
        bf16r(ta, ta); bf16r(tb, tb)
        e(f"v_mul_f32 v{ta}, v{ta}, v16"); e(f"v_mul_f32 v{tb}, v{tb}, v16")
        e(f"v_cvt_pk_bf16_f32 v{XP+t}, v{ta}, v{tb}")
    c("---- q slice: 32 columns, 9 MFMAs")
    def bq(setr, pair):
        for k in range(4): e(f"v_perm_b32 v{setr+k}, v{XP+pair}, v{XP+pair}, v{SELX+k}")
    bq(BQ[0], 0); bq(BQ[1], 1)
    e(f"s_waitcnt vmcnt({nKV + 7})")
    for t in range(5):
        cc = "0" if t == 0 else vr(D1, 4)
        e(f"v_mfma_f32_16x16x32_bf16 {vr(D1,4)}, {vr(WQT+4*t,4)}, {vr(BQ[0],4)}, {cc}")
        if t < 4:
            cc = "0" if t == 0 else vr(D2, 4)
            e(f"v_mfma_f32_16x16x32_bf16 {vr(D2,4)}, {vr(WQT+4*t,4)}, {vr(BQ[1],4)}, {cc}")
            bq(BQ[0], 2*t + 2)
            if t < 3: bq(BQ[1], 2*t + 3)
    stamp(2)
    e(f"v_lshrrev_b32 v4, 4, v{vLANE}"); e("v_lshlrev_b32 v4, 7, v4")
    e(f"v_and_b32 v5, 7, v{vLANE}"); e("v_lshl_add_u32 v4, v5, 2, v4")
    e(f"s_lshl_b32 s{t0}, s{sW}, 9"); e(f"s_add_u32 s{t0}, s{t0}, {L_OP}")
    e(f"v_add_u32 v4, s{t0}, v4")
    e(f"s_mov_b32 s{t4}, 0"); e(f"s_mov_b32 s{t5}, -1")
    for v in range(4):
        e(f"v_cndmask_b32 v{5+v}, v{D1+v}, v{D2+v}, {sr(t4,2)}")
    e(f"s_mov_b32 s{t4}, 0xff0000ff"); e(f"s_mov_b32 s{t5}, 0xff0000ff")
    e(f"s_mov_b64 exec, {sr(t4,2)}")
    for v in range(4):
        e(f"ds_write_b32 v4, v{5+v} offset:{32*v}")
    e("s_mov_b64 exec, -1")
    mk_srd(rWS, pWS, None, size=WS_SIZE)
    e("s_waitcnt lgkmcnt(0)")
    e(f"s_mul_i32 s{sTAG}, s{sTAG}, 1664525"); e(f"s_add_u32 s{sTAG}, s{sTAG}, 1013904223")
    e(f"s_mov_b32 s{sSPIN}, {P['SPIN']}")
    e("s_barrier")
    e(f"s_cmp_eq_u32 s{sW}, 0"); e("s_cbranch_scc0 L_notw0")
    c("wave 0: reduce + publish the q slice")
    e(f"v_lshrrev_b32 v4, 5, v{vLANE}"); e("v_lshlrev_b32 v4, 11, v4")
    e(f"v_and_b32 v5, 31, v{vLANE}"); e("v_lshl_add_u32 v4, v5, 2, v4"); e(f"v_add_u32 v4, {L_OP}, v4")
    for i in range(16): e(f"ds_read_b32 v{24+i}, v4 offset:{128*i}")
    e("s_waitcnt lgkmcnt(0)")
    idx = [24 + i for i in range(16)]
    while len(idx) > 1:
        nxt = []
        for i in range(0, len(idx), 2):
            e(f"v_add_f32 v{idx[i]}, v{idx[i]}, v{idx[i+1]}"); nxt.append(idx[i])
        idx = nxt
    e("v_mov_b32 v25, v24"); e("v_permlane32_swap_b32 v24, v25"); e("s_nop 0"); e("v_add_f32 v24, v24, v25")
    bf16r(24, 24)
    e(f"v_mov_b32 v25, s{sTAG}")
    e(f"s_lshl_b32 s{t0}, s{sPAIR}, 8"); e(f"s_lshl_b32 s{t1}, s{sS}, 5"); e(f"s_add_u32 s{t0}, s{t0}, s{t1}")
    e(f"s_lshl_b32 s{t0}, s{t0}, 3"); e(f"s_add_u32 s{t0}, s{t0}, {WS_QG}")
    e("v_lshlrev_b32 v5, 3, v5")
    e("s_mov_b32 exec_hi, 0")
    e(f"buffer_store_dwordx2 v[24:25], v5, {sr(rWS,4)}, s{t0} offen sc1")
    e("s_mov_b32 exec_hi, -1")
    e("s_waitcnt vmcnt(1)")
    e("s_branch L_hphase")
    a.lab("L_notw0")
    e("s_waitcnt vmcnt(0)")
    a.lab("L_hphase")
    c("---- hidden slice: 18 MFMAs 16x16x16")
    e(f"v_lshrrev_b32 v4, 4, v{vLANE}"); e("v_mul_u32_u24 v4, 1440, v4")
    e(f"v_and_b32 v5, 15, v{vLANE}"); e("v_min_u32 v5, 8, v5"); e("v_lshl_add_u32 v4, v5, 3, v4")
    e(f"s_mul_i32 s{t0}, s{sW}, 6144"); e(f"s_add_u32 s{t0}, s{t0}, s{t3}")
    if L_W1: e(f"s_add_u32 s{t0}, s{t0}, {L_W1}")
    e(f"v_add_u32 v4, s{t0}, v4")
    for j in range(18): e(f"ds_read_b64 {vr(HA+2*j,2)}, v4 offset:{80*j}")
    def hb(j):
        for k in range(2):
            e(f"v_perm_b32 v{HB+2*(j%4)+k}, v{XP+(j>>1)}, v{XP+(j>>1)}, v{SELH+(j&1)*2+k}")
    hb(0); hb(1); hb(2)
    e("s_waitcnt lgkmcnt(0)")
    for j in range(18):
        cc = "0" if j == 0 else vr(HACC, 4)
        e(f"v_mfma_f32_16x16x16_bf16 {vr(HACC,4)}, {vr(HA+2*j,2)}, {vr(HB+2*(j%4),2)}, {cc}")
        if j + 3 < 18: hb(j + 3)
    e(f"s_lshl_b32 s{t0}, s{sW}, 8"); e(f"s_add_u32 s{t0}, s{t0}, {L_HP}")
    e(f"v_lshlrev_b32 v10, 2, v{vLANE}"); e(f"v_add_u32 v10, s{t0}, v10")
    e(f"v_cndmask_b32 v9, v{HACC}, v{HACC+1}, {sr(sHX[0],2)}")
    e(f"v_cndmask_b32 v9, v9, v{HACC+2}, {sr(sHX[1],2)}")
    e(f"v_cndmask_b32 v9, v9, v{HACC+3}, {sr(sHX[2],2)}")
    e("ds_write_b32 v10, v9")
    e(f"s_cmp_lt_u32 s{sW}, 4"); e("s_cbranch_scc0 L_pro_join")
    c("waves 0-3: gather q of the group")
    e(f"s_lshl_b32 s{t0}, s{sPAIR}, 11"); e(f"s_add_u32 s{t0}, s{t0}, {WS_QG}")
    e("v_lshlrev_b32 v4, 3, v0")
    a.lab("L_gather_q")
    e(f"buffer_load_dwordx2 v[6:7], v4, {sr(rWS,4)}, s{t0} offen sc1")
    e("s_waitcnt vmcnt(0)")
    e(f"v_cmp_ne_u32 vcc, s{sTAG}, v7")
    e("s_cbranch_vccz L_q_ok")
    spin_check("L_q_ok")
    if P["SLEEP"]: e(f"s_sleep {P['SLEEP']}")
    e("s_branch L_gather_q")
    a.lab("L_q_ok")
    e(f"v_lshlrev_b32 v4, 1, v0"); e(f"v_add_u32 v4, {L_QB}, v4")
    e("ds_write_b16_d16_hi v4, v6")
    if DEBUG:
        e(f"s_lshl_b32 s{t0}, s2, 10"); e(f"s_add_u32 s{t0}, s{t0}, {WS_DBG}")
        e("v_lshlrev_b32 v7, 2, v0")
        e(f"buffer_store_dword v6, v7, {sr(rWS,4)}, s{t0} offen")
    a.lab("L_pro_join")
    e("s_waitcnt lgkmcnt(0)")
    e("s_barrier")
    c("BK operand: QB + h*256 + (a+4g)*16")
    e(f"v_bfe_u32 v15, v{vLANE}, 3, 1"); e("v_lshlrev_b32 v15, 8, v15")
    e(f"v_lshrrev_b32 v16, 4, v{vLANE}"); e("v_lshl_add_u32 v15, v16, 6, v15")
    e(f"v_and_b32 v16, 3, v{vLANE}"); e("v_lshl_add_u32 v15, v16, 4, v15")
    e(f"v_add_u32 v15, {L_QB}, v15")
    e(f"ds_read_b128 {vr(BK,4)}, v15")
    c("wo / w2 DMA")
    e(f"s_cmp_lt_u32 s{sW}, 4")
    e(f"s_cselect_b32 s{rC}, s{pWO}, s{pW2}")
    e(f"s_cselect_b32 s{rC+1}, s{pWO+1}, s{pW2+1}")
    e(f"s_mov_b32 s{t4}, {4096*1152}")
    e(f"s_cselect_b32 s{rC+2}, s{t4}, {4608*1152}")
    e(f"s_and_b32 s{rC+1}, s{rC+1}, 0xffff")
    e(f"s_mov_b32 s{rC+3}, 0x20000")
    e(f"s_lshl_b32 s{t0}, s{sHKV}, 8"); e(f"s_lshl_b32 s{t1}, s{sW}, 6"); e(f"s_add_u32 s{t0}, s{t0}, s{t1}")
    e(f"s_mul_i32 s{t1}, s{sHKV}, 288"); e(f"s_mul_i32 s{t2}, s{sW}, 72"); e(f"s_add_u32 s{t1}, s{t1}, s{t2}")
    e(f"s_sub_u32 s{t1}, s{t1}, 288")
    e(f"s_cmp_lt_u32 s{sW}, 4")
    e(f"s_cselect_b32 s{t0}, s{t0}, s{t1}")
    e(f"s_mul_i32 s{t0}, s{t0}, 1152"); e(f"s_mul_i32 s{t1}, s{sS}, 144"); e(f"s_add_u32 s{t0}, s{t0}, s{t1}")
    e(f"s_mul_i32 s{t1}, s{sW}, 11264"); e(f"s_add_u32 s{t1}, s{t1}, {L_WW}")
    for t in range(11):
        if t == 9:
            e(f"s_cmp_lt_u32 s{sW}, 4"); e("s_cbranch_scc1 L_dma_done")
        e(f"v_add_u32 v16, {64*t}, v{vLANE}")
        e(f"v_mul_u32_u24 v17, 7282, v16"); e("v_lshrrev_b32 v17, 16, v17")
        e(f"v_mul_u32_u24 v17, 1008, v17")
        e(f"v_lshl_add_u32 v17, v16, 4, v17")
        e(f"s_mov_b32 m0, s{t1}")
        e(f"s_add_u32 s{t1}, s{t1}, 1024")
        e(f"buffer_load_dwordx4 v17, {sr(rC,4)}, s{t0} offen {WPOL} lds")
    a.lab("L_dma_done")
    e(f"s_cmp_eq_u32 s{sW}, 4"); e("s_cbranch_scc0 L_noh")
    c("wave 4: reduce + publish hidden slice")
    e(f"v_lshlrev_b32 v24, 2, v{vLANE}"); e(f"v_add_u32 v24, {L_HP}, v24")
    for w in range(8): e(f"ds_read_b32 v{25+w}, v24 offset:{256*w}")
    e("s_waitcnt lgkmcnt(0)")
    for w in range(1, 8): e(f"v_add_f32 v25, v25, v{25+w}")
    bf16r(25, 25)
    e(f"v_lshlrev_b32 v26, 16, v{vB1}")
    e("v_add_f32 v25, v25, v26"); bf16r(25, 25)
    e("v_max_f32 v25, 0, v25"); e("v_mul_f32 v24, v25, v25"); bf16r(24, 24)
    e(f"v_mov_b32 v25, s{sTAG}")
    e(f"s_mul_i32 s{t0}, s{sPAIR}, 288"); e(f"s_mul_i32 s{t1}, s{sS}, 36"); e(f"s_add_u32 s{t0}, s{t0}, s{t1}")
    e(f"s_lshl_b32 s{t0}, s{t0}, 3"); e(f"s_add_u32 s{t0}, s{t0}, {WS_HG}")
    e(f"v_lshlrev_b32 v26, 3, v{vLANE}")
    e(f"v_cmp_gt_u32 vcc, 36, v{vLANE}")
    e(f"s_and_saveexec_b64 {sr(sEX,2)}, vcc")
    e(f"buffer_store_dwordx2 v[24:25], v26, {sr(rWS,4)}, s{t0} offen sc1")
    e(f"s_mov_b64 exec, {sr(sEX,2)}")
    a.lab("L_noh")
    e(f"v_and_b32 v16, 1, v{vLANE}"); e("v_cmp_eq_u32 vcc, 1, v16")
    e("v_mov_b32 v16, 0xffff"); e("v_mov_b32 v17, 0xffff0000")
    e("v_cndmask_b32 v16, v16, v17, vcc")
    for k in range(4): e(f"v_cndmask_b32 v{MASK+k}, 0, v16, {sr(sEQ[k],2)}")
    e(f"v_mov_b32 v{vM}, 0xff800000"); e(f"v_mov_b32 v{vML}, 0xff800000"); e(f"v_mov_b32 v{vL}, 0")
    for v in range(4): e(f"v_mov_b32 v{ACC+v}, 0")
    e(f"s_mov_b32 s{sCNT}, {ntiles // NB - 1}")
    e("s_waitcnt lgkmcnt(0)")
    stamp(3)

    NOUT = 2 * TL * NB - TL
    def tile(b, waits):
        if waits: e(f"s_waitcnt vmcnt({NOUT})")
        for j in range(TL):
            e(f"v_mfma_f32_16x16x32_bf16 {vr(DB+4*j,4)}, {vr(kreg(b,j),4)}, {vr(BK,4)}, 0")
        issue_k(b)
        U = [SREG + j for j in range(TL)]
        if TL == 4:
            for j in range(TL):
                e(f"v_mov_b32_dpp v{U[j]}, v{DB+4*j} quad_perm:[0,0,0,0] row_mask:0xf bank_mask:0xf")
            for q in range(1, 4):
                for j in range(TL):
                    e(f"v_add_f32_dpp v{U[j]}, v{DB+4*j+q}, v{U[j]} quad_perm:[{q},{q},{q},{q}] row_mask:0xf bank_mask:0xf")
        else:
            W = [SREG + 4 + j for j in range(TL)]
            for j in range(TL):
                e(f"v_mov_b32_dpp v{U[j]}, v{DB+4*j} quad_perm:[0,0,0,0] row_mask:0xf bank_mask:0xf")
            for j in range(TL):
                e(f"v_mov_b32_dpp v{W[j]}, v{DB+4*j+2} quad_perm:[2,2,2,2] row_mask:0xf bank_mask:0xf")
            for j in range(TL):
                e(f"v_add_f32_dpp v{U[j]}, v{DB+4*j+1}, v{U[j]} quad_perm:[1,1,1,1] row_mask:0xf bank_mask:0xf")
            for j in range(TL):
                e(f"v_add_f32_dpp v{W[j]}, v{DB+4*j+3}, v{W[j]} quad_perm:[3,3,3,3] row_mask:0xf bank_mask:0xf")
            for j in range(TL):
                e(f"v_add_f32 v{U[j]}, v{U[j]}, v{W[j]}")
        for j in range(TL): bf16r(U[j], U[j])
        for j in range(TL): e(f"v_mul_f32 v{U[j]}, s{sSCL}, v{U[j]}")
        for j in range(TL): bf16r(U[j], U[j])
        m2 = vt[0]
        if TL == 1: e(f"v_max_f32 v{m2}, v{vM}, v{U[0]}")
        else:
            e(f"v_max3_f32 v{m2}, v{vM}, v{U[0]}, v{U[1]}")
            j = 2
            while j < TL:
                e(f"v_max3_f32 v{m2}, v{m2}, v{U[j]}, v{U[j+1]}"); j += 2
        cross_rows(m2, vt[1], "v_max_f32")
        e(f"v_mul_f32 v{vt[1]}, s{sL2E}, v{m2}")
        e(f"v_mov_b32 v{vM}, v{m2}")
        e(f"v_sub_f32 v{vt[2]}, v{vML}, v{vt[1]}")
        for j in range(TL): e(f"v_fma_f32 v{U[j]}, v{U[j]}, s{sL2E}, -v{vt[1]}")
        e(f"v_exp_f32 v{vt[2]}, v{vt[2]}")
        for j in range(TL): e(f"v_exp_f32 v{U[j]}, v{U[j]}")
        e(f"v_mov_b32 v{vML}, v{vt[1]}")
        e(f"v_fma_f32 v{vL}, v{vL}, v{vt[2]}, v{U[0]}")
        for v in range(4): e(f"v_mul_f32 v{ACC+v}, v{ACC+v}, v{vt[2]}")
        for j in range(1, TL): e(f"v_add_f32 v{vL}, v{vL}, v{U[j]}")
        for j in range(TL): e(f"v_cvt_pk_bf16_f32 v{U[j]}, v{U[j]}, v{U[j]}")
        for j in range(TL):
            for k in range(4): e(f"v_and_b32 v{DB+4*j+k}, v{U[j]}, v{MASK+k}")
        if waits: e(f"s_waitcnt vmcnt({NOUT})")
        for j in range(TL):
            e(f"v_mfma_f32_16x16x32_bf16 {vr(ACC,4)}, {vr(vreg(b,j),4)}, {vr(DB+4*j,4)}, {vr(ACC,4)}")
        issue_v(b)
    c("---- peeled first tiles (data already landed)")
    for b in range(NB): tile(b, False)
    c("---- main loop")
    a.raw(".p2align 6")
    a.lab("L_loop")
    for b in range(NB): tile(b, True)
    e(f"s_sub_u32 s{sCNT}, s{sCNT}, 1")
    e(f"s_cmp_lg_u32 s{sCNT}, 0")
    e("s_cbranch_scc1 L_loop")

    c("---- T1: combine the 8 waves of the workgroup")
    e("s_waitcnt vmcnt(0)")
    stamp(4)
    cross_rows(vL, vt[0], "v_add_f32")
    e(f"v_bfe_u32 v24, v{vLANE}, 3, 1"); e("v_lshlrev_b32 v24, 9, v24")
    e(f"v_lshrrev_b32 v25, 4, v{vLANE}"); e("v_lshl_add_u32 v24, v25, 7, v24")
    e(f"v_and_b32 v25, 7, v{vLANE}"); e("v_lshl_add_u32 v24, v25, 2, v24")
    e(f"s_lshl_b32 s{t0}, s{sW}, 10"); e(f"s_add_u32 s{t0}, s{t0}, {L_OP}")
    e(f"v_add_u32 v24, s{t0}, v24")
    for v in range(4): e(f"ds_write_b32 v24, v{ACC+v} offset:{32*v}")
    e(f"v_bfe_u32 v25, v{vLANE}, 3, 1"); e("v_lshlrev_b32 v25, 3, v25")
    e(f"s_lshl_b32 s{t0}, s{sW}, 4"); e(f"s_add_u32 s{t0}, s{t0}, {L_MLP}")
    e(f"v_add_u32 v25, s{t0}, v25")
    e(f"v_mov_b32 v26, v{vM}"); e(f"v_mov_b32 v27, v{vL}")
    e("s_mov_b64 exec, 0x101")
    e("ds_write_b64 v25, v[26:27]")
    e("s_mov_b64 exec, -1")
    e("s_waitcnt lgkmcnt(0)")
    e("s_barrier")
    e(f"s_cmp_lt_u32 s{sW}, 4"); e("s_cbranch_scc0 L_hgather")
    c("waves 0-3: WG partial for (h = w>>1, t)")
    e(f"s_lshr_b32 s{t0}, s{sW}, 1")
    e(f"s_lshl_b32 s{t1}, s{t0}, 3"); e(f"s_add_u32 s{t1}, s{t1}, {L_MLP}")
    e(f"v_mov_b32 v24, s{t1}")
    for w in range(8): e(f"ds_read_b64 {vr(28+2*w,2)}, v24 offset:{16*w}")
    e(f"v_lshlrev_b32 v25, 2, v0"); e(f"v_add_u32 v25, {L_OP}, v25")
    for w in range(8): e(f"ds_read_b32 v{44+w}, v25 offset:{1024*w}")
    e("s_waitcnt lgkmcnt(8)")
    e("v_max3_f32 v26, v28, v30, v32"); e("v_max3_f32 v26, v26, v34, v36"); e("v_max3_f32 v26, v26, v38, v40"); e("v_max_f32 v26, v26, v42")
    for w in range(8): e(f"v_sub_f32 v{28+2*w}, v{28+2*w}, v26")
    for w in range(8): e(f"v_mul_f32 v{28+2*w}, s{sL2E}, v{28+2*w}")
    for w in range(8): e(f"v_exp_f32 v{28+2*w}, v{28+2*w}")
    e("s_waitcnt lgkmcnt(0)")
    e("v_mul_f32 v52, v28, v44"); e("v_mul_f32 v27, v28, v29")
    for w in range(1, 8):
        e(f"v_fmac_f32 v52, v{28+2*w}, v{44+w}"); e(f"v_fmac_f32 v27, v{28+2*w}, v{29+2*w}")
    e(f"v_mov_b32 v53, s{sTAG}")
    e(f"s_lshl_b32 s{t1}, s{sPAIR}, 3"); e(f"s_or_b32 s{t1}, s{t1}, s{sS}")
    e(f"s_lshl_b32 s{t2}, s{t1}, 11"); e(f"s_add_u32 s{t2}, s{t2}, {WS_OG}")
    e("v_lshlrev_b32 v54, 3, v0")
    e(f"buffer_store_dwordx2 v[52:53], v54, {sr(rWS,4)}, s{t2} offen sc1")
    e(f"s_and_b32 s{t2}, s{sW}, 1"); e(f"s_cmp_eq_u32 s{t2}, 0"); e("s_cbranch_scc0 L_ml_done")
    e(f"v_cmp_eq_u32 vcc, 1, v{vLANE}")
    e("v_cndmask_b32 v56, v26, v27, vcc"); e(f"v_mov_b32 v57, s{sTAG}")
    e(f"s_lshl_b32 s{t2}, s{t1}, 5"); e(f"s_lshl_b32 s{t3}, s{t0}, 3"); e(f"s_add_u32 s{t2}, s{t2}, s{t3}"); e(f"s_add_u32 s{t2}, s{t2}, {WS_MLG}")
    e(f"v_lshlrev_b32 v58, 4, v{vLANE}")
    e("s_mov_b64 exec, 3")
    e(f"buffer_store_dwordx2 v[56:57], v58, {sr(rWS,4)}, s{t2} offen sc1")
    e("s_mov_b64 exec, -1")
    a.lab("L_ml_done")
    stamp(5)
    c("T4: poll ML granules of the group for head h")
    e(f"v_and_b32 v24, 7, v{vLANE}"); e("v_lshlrev_b32 v24, 5, v24")
    e(f"v_bfe_u32 v25, v{vLANE}, 3, 1"); e("v_lshl_add_u32 v24, v25, 4, v24")
    e(f"s_lshl_b32 s{t2}, s{sPAIR}, 8"); e(f"s_lshl_b32 s{t3}, s{t0}, 3"); e(f"s_add_u32 s{t2}, s{t2}, s{t3}"); e(f"s_add_u32 s{t2}, s{t2}, {WS_MLG}")
    a.lab("L_poll_ml")
    e(f"buffer_load_dwordx2 v[26:27], v24, {sr(rWS,4)}, s{t2} offen sc1")
    e("s_waitcnt vmcnt(0)")
    e(f"v_cmp_ne_u32 vcc, s{sTAG}, v27")
    e("s_cbranch_vccz L_ml_ok")
    spin_check("L_ml_ok")
    if P["SLEEP"]: e(f"s_sleep {P['SLEEP']}")
    e("s_branch L_poll_ml")
    a.lab("L_ml_ok")
    stamp(6)
    e(f"s_lshl_b32 s{t3}, s{sPAIR}, 14"); e(f"s_add_u32 s{t3}, s{t3}, {WS_OG}")
    a.lab("L_gather_o")
    e(f"s_mov_b32 s{t2}, s{t3}")
    for s_ in range(8):
        e(f"buffer_load_dwordx2 {vr(28+2*s_,2)}, v54, {sr(rWS,4)}, s{t2} offen sc1")
        if s_ < 7: e(f"s_add_u32 s{t2}, s{t2}, 2048")
    e("v_mov_b32 v44, v26")
    e("v_max_f32_dpp v44, v44, v44 quad_perm:[1,0,3,2] row_mask:0xf bank_mask:0xf")
    e("v_max_f32_dpp v44, v44, v44 quad_perm:[2,3,0,1] row_mask:0xf bank_mask:0xf")
    e("v_max_f32_dpp v44, v44, v44 row_half_mirror row_mask:0xf bank_mask:0xf")
    e("v_mov_b32_dpp v45, v26 row_ror:8 row_mask:0xf bank_mask:0xf")
    e("v_sub_f32 v46, v26, v44"); e(f"v_mul_f32 v46, s{sL2E}, v46"); e("v_exp_f32 v46, v46")
    e("v_mul_f32 v47, v46, v45")
    e("v_add_f32_dpp v47, v47, v47 quad_perm:[1,0,3,2] row_mask:0xf bank_mask:0xf")
    e("v_add_f32_dpp v47, v47, v47 quad_perm:[2,3,0,1] row_mask:0xf bank_mask:0xf")
    e("v_add_f32_dpp v47, v47, v47 row_half_mirror row_mask:0xf bank_mask:0xf")
    e("v_rcp_f32 v47, v47")
    e("v_mul_f32 v46, v46, v47")
    for s_ in range(8): e(f"v_readlane_b32 s{sWT+s_}, v46, {s_}")
    e("s_waitcnt vmcnt(0)")
    e(f"v_xor_b32 v48, s{sTAG}, v29")
    for s_ in range(1, 8):
        e(f"v_xor_b32 v49, s{sTAG}, v{29+2*s_}"); e("v_or_b32 v48, v48, v49")
    e("v_cmp_ne_u32 vcc, 0, v48")
    e("s_cbranch_vccz L_o_ok")
    spin_check("L_o_ok")
    e("s_branch L_gather_o")
    a.lab("L_o_ok")
    e(f"v_mul_f32 v48, s{sWT}, v28")
    for s_ in range(1, 8): e(f"v_fmac_f32 v48, s{sWT+s_}, v{28+2*s_}")
    e("v_cvt_pk_bf16_f32 v48, v48, v48")
    e(f"v_lshlrev_b32 v49, 1, v0"); e(f"v_add_u32 v49, {L_VAL}, v49")
    e("ds_write_b16 v49, v48")
    if DEBUG:
        e(f"v_lshlrev_b32 v50, 16, v48")
        e(f"s_lshl_b32 s{t0}, s2, 10"); e(f"s_add_u32 s{t0}, s{t0}, {WS_DBG + 0x40000}")
        e("v_lshlrev_b32 v51, 2, v0")
        e(f"buffer_store_dword v50, v51, {sr(rWS,4)}, s{t0} offen")
    e("s_branch L_t5")
    a.lab("L_hgather")
    c("waves 4-7: gather the 288 hidden values of the group")
    e(f"v_subrev_u32 v24, 256, v0")
    e("v_lshlrev_b32 v25, 3, v24")
    e("v_min_u32 v26, 31, v24"); e("v_lshlrev_b32 v26, 3, v26")
    e(f"s_mul_i32 s{t0}, s{sPAIR}, {288*8}"); e(f"s_add_u32 s{t0}, s{t0}, {WS_HG}")
    a.lab("L_gather_h")
    e(f"buffer_load_dwordx2 v[28:29], v25, {sr(rWS,4)}, s{t0} offen sc1")
    e(f"buffer_load_dwordx2 v[30:31], v26, {sr(rWS,4)}, s{t0} offen offset:2048 sc1")
    e("s_waitcnt vmcnt(0)")
    e(f"v_xor_b32 v32, s{sTAG}, v29"); e(f"v_xor_b32 v33, s{sTAG}, v31"); e("v_or_b32 v32, v32, v33")
    e("v_cmp_ne_u32 vcc, 0, v32")
    e("s_cbranch_vccz L_h_ok")
    spin_check("L_h_ok")
    if P["SLEEP"]: e(f"s_sleep {P['SLEEP']}")
    e("s_branch L_gather_h")
    a.lab("L_h_ok")
    e("v_lshlrev_b32 v32, 1, v24"); e(f"v_add_u32 v32, {L_VALH}, v32")
    e("ds_write_b16_d16_hi v32, v28")
    e("v_min_u32 v33, 31, v24"); e("v_lshlrev_b32 v33, 1, v33"); e(f"v_add_u32 v33, {L_VALH + 512}, v33")
    e("ds_write_b16_d16_hi v33, v30")
    a.lab("L_t5")
    e("s_waitcnt lgkmcnt(0)")
    e("s_barrier")
    stamp(7)
    c("---- T5: projection slice")
    SEL5 = 24
    make_selq(SEL5, 32, 33, 34)
    e(f"s_cmp_lt_u32 s{sW}, 4")
    e(f"s_cselect_b32 s{t0}, 16, 18")
    e(f"s_lshl_b32 s{t1}, s{sW}, 7"); e(f"s_add_u32 s{t1}, s{t1}, {L_VAL}")
    e(f"s_mul_i32 s{t2}, s{sW}, 144"); e(f"s_add_u32 s{t2}, s{t2}, {L_VALH - 576}")
    e(f"s_cmp_lt_u32 s{sW}, 4")
    e(f"s_cselect_b32 s{t1}, s{t1}, s{t2}")
    e(f"v_lshrrev_b32 v32, 4, v{vLANE}")
    e(f"v_mul_u32_u24 v32, s{t0}, v32")
    e(f"v_lshlrev_b32 v33, 1, v32"); e(f"v_add_u32 v33, s{t1}, v33")
    VP = 36
    for t in range(9): e(f"ds_read_b32 v{VP+t}, v33 offset:{4*t}")
    e("v_mul_u32_u24 v32, 9, v32")
    e(f"v_and_b32 v34, 15, v{vLANE}"); e("v_min_u32 v34, 8, v34"); e("v_add_u32 v32, v32, v34")
    e("v_lshlrev_b32 v32, 4, v32")
    e(f"s_mul_i32 s{t2}, s{sW}, 11264"); e(f"s_add_u32 s{t2}, s{t2}, {L_WW}")
    e(f"v_add_u32 v32, s{t2}, v32")
    WT = 48
    assert WT + 72 + 16 <= NV
    for j in range(18): e(f"ds_read_b128 {vr(WT+4*j,4)}, v32 offset:{144*j}")
    B5 = WT + 72
    def b5(j):
        for k in range(4):
            e(f"v_perm_b32 v{B5+4*(j%4)+k}, v{VP+(j>>1)}, v{VP+(j>>1)}, v{SEL5+(j&1)*4+k}")
    e("s_waitcnt lgkmcnt(15)")
    e("s_waitcnt lgkmcnt(0)")
    b5(0); b5(1); b5(2)
    YACC = 20
    for j in range(18):
        if j == 16:
            e(f"s_cmp_lt_u32 s{sW}, 4"); e("s_cbranch_scc1 L_t5_done")
        cc = "0" if j == 0 else vr(YACC, 4)
        e(f"v_mfma_f32_16x16x32_bf16 {vr(YACC,4)}, {vr(WT+4*j,4)}, {vr(B5+4*(j%4),4)}, {cc}")
        if j + 3 < 18: b5(j + 3)
    a.lab("L_t5_done")
    e(f"v_lshrrev_b32 v32, 4, v{vLANE}"); e("v_lshlrev_b32 v32, 7, v32")
    e(f"v_bfe_u32 v33, v{vLANE}, 3, 1"); e("v_lshl_add_u32 v32, v33, 6, v32")
    e(f"v_and_b32 v33, 7, v{vLANE}"); e("v_lshl_add_u32 v32, v33, 2, v32")
    e(f"s_lshl_b32 s{t0}, s{sW}, 9"); e(f"s_add_u32 s{t0}, s{t0}, {L_YP}")
    e(f"v_add_u32 v32, s{t0}, v32")
    e("s_nop 3")
    e(f"v_cndmask_b32 v33, v{YACC}, v{YACC+2}, {sr(sX1,2)}")
    e(f"v_cndmask_b32 v34, v{YACC+1}, v{YACC+3}, {sr(sX1,2)}")
    e("ds_write_b32 v32, v33"); e("ds_write_b32 v32, v34 offset:32")
    e("s_waitcnt lgkmcnt(0)")
    e("s_barrier")
    e(f"s_cmp_lt_u32 s{sW}, 3"); e("s_cbranch_scc0 L_end")
    c("threads j<144: kind=j&1, col=j>>1 : sum 4 partials, publish")
    e("v_min_u32 v24, 143, v0")
    e("v_and_b32 v25, 1, v24"); e("v_lshrrev_b32 v26, 1, v24")
    e("v_lshlrev_b32 v27, 11, v25"); e("v_lshl_add_u32 v27, v26, 2, v27"); e(f"v_add_u32 v27, {L_YP}, v27")
    for w in range(4): e(f"ds_read_b32 v{28+w}, v27 offset:{512*w}")
    e(f"s_mul_i32 s{t0}, s{sB}, 1152"); e(f"s_mul_i32 s{t1}, s{sS}, 144"); e(f"s_add_u32 s{t0}, s{t0}, s{t1}")
    mk_srd(rA, pX, None, size=2304)
    mk_srd(rB, pB2, None, size=1152)
    e("v_lshlrev_b32 v40, 1, v26")
    e(f"buffer_load_ushort v41, v40, {sr(rA,4)}, s{t0} offen")
    e(f"buffer_load_ushort v42, v40, {sr(rB,4)}, s{t1} offen")
    e("s_waitcnt lgkmcnt(0)")
    e("v_add_f32 v28, v28, v29"); e("v_add_f32 v30, v30, v31"); e("v_add_f32 v28, v28, v30")
    e(f"v_mov_b32 v29, s{sTAG}")
    e(f"s_lshl_b32 s{t2}, s{sB}, 3"); e(f"s_or_b32 s{t2}, s{t2}, s{sS}"); e(f"s_lshl_b32 s{t2}, s{t2}, 4")
    e(f"s_mul_i32 s{t3}, s{t2}, 1152"); e(f"s_add_u32 s{t3}, s{t3}, {WS_YG}")
    e(f"s_mul_i32 s{t2}, s{sHKV}, 1152"); e(f"s_add_u32 s{t2}, s{t2}, s{t3}")
    e("v_lshlrev_b32 v30, 3, v24")
    e("v_cmp_gt_u32 vcc, 144, v0")
    e(f"s_and_saveexec_b64 {sr(sEX,2)}, vcc")
    e(f"buffer_store_dwordx2 v[28:29], v30, {sr(rWS,4)}, s{t2} offen sc1")
    e(f"s_mov_b64 exec, {sr(sEX,2)}")
    stamp(8)
    if P["PROF"]: e("s_mov_b32 s14, 0")
    e(f"s_cmp_eq_u32 s{sHKV}, s{sS}"); e("s_cbranch_scc0 L_end")
    c("---- T6: final reducer for (b, s)")
    G6 = 48
    a.lab("L_gather_y")
    e(f"s_mov_b32 s{t2}, s{t3}")
    for k in range(16):
        e(f"buffer_load_dwordx2 {vr(G6+2*k,2)}, v30, {sr(rWS,4)}, s{t2} offen sc1")
        if k < 15: e(f"s_add_u32 s{t2}, s{t2}, 1152")
    e("s_waitcnt vmcnt(0)")
    e(f"v_xor_b32 v32, s{sTAG}, v{G6+1}")
    for k in range(1, 16):
        e(f"v_xor_b32 v33, s{sTAG}, v{G6+2*k+1}"); e("v_or_b32 v32, v32, v33")
    e("v_cmp_ne_u32 vcc, 0, v32")
    e("s_cbranch_vccz L_y_ok")
    spin_check("L_y_ok")
    e("s_branch L_gather_y")
    a.lab("L_y_ok")
    stamp(9)
    idx = [G6 + 2*k for k in range(16)]
    while len(idx) > 1:
        nxt = []
        for i in range(0, len(idx), 2):
            e(f"v_add_f32 v{idx[i]}, v{idx[i]}, v{idx[i+1]}"); nxt.append(idx[i])
        idx = nxt
    bf16r(32, G6)
    e("v_mov_b32_dpp v33, v32 quad_perm:[1,0,3,2] row_mask:0xf bank_mask:0xf")
    e("v_lshlrev_b32 v41, 16, v41"); e("v_lshlrev_b32 v42, 16, v42")
    e("v_add_f32 v32, v41, v32"); bf16r(32, 32)
    e("v_add_f32 v33, v33, v42"); bf16r(33, 33)
    e("v_add_f32 v32, v32, v33"); e("v_cvt_pk_bf16_f32 v32, v32, v32")
    mk_srd(rA, pOUT, None, size=2304)
    e("v_and_b32 v33, 1, v0"); e("v_cmp_eq_u32 vcc, 0, v33")
    e(f"s_mov_b64 {sr(t4,2)}, vcc")
    e("v_cmp_gt_u32 vcc, 144, v0")
    e(f"s_and_b64 vcc, vcc, {sr(t4,2)}")
    e(f"s_and_saveexec_b64 {sr(sEX,2)}, vcc")
    e(f"buffer_store_short v32, v40, {sr(rA,4)}, s{t0} offen")
    e(f"s_mov_b64 exec, {sr(sEX,2)}")
    e(f"s_or_b32 s{t1}, s{sS}, s{sW}"); e(f"s_cmp_eq_u32 s{t1}, 0"); e("s_cbranch_scc0 L_end")
    e(f"s_lshl_b32 s{t1}, s{sB}, 8")
    e(f"v_mov_b32 v33, s{sTAG}"); e("v_mov_b32 v34, 0")
    e("s_mov_b64 exec, 1")
    e(f"buffer_store_dword v33, v34, {sr(rWS,4)}, s{t1} offen sc1")
    a.lab("L_end")
    if P["PROF"]:
        stamp(10)
        e("s_mov_b64 exec, 1")
        e(f"s_lshl_b32 s{t0}, s2, 3"); e(f"s_add_u32 s{t0}, s{t0}, s{sW}")
        e(f"s_lshl_b32 s{t0}, s{t0}, 6"); e(f"s_add_u32 s{t0}, s{t0}, {WS_PROF}")
        e("v_mov_b32 v1, 0")
        for i in range(11):
            e(f"v_mov_b32 v2, s{STAMPS[i]}")
            e(f"buffer_store_dword v2, v1, {sr(rWS,4)}, s{t0} offen offset:{4*i}")
            e("s_nop 0")
    a.lab("L_exit")
    e("s_endpgm")
    body, n = hazard.fix(a.L)
    nv = max(NV, 140)
    tail = ['.section .rodata,"a"', ".p2align 6", f".amdhsa_kernel {NAME}_kernel",
            f"  .amdhsa_next_free_vgpr {(nv+7)//8*8}", "  .amdhsa_next_free_sgpr 102", f"  .amdhsa_accum_offset {(nv+7)//8*8}",
            "  .amdhsa_group_segment_fixed_size 0", "  .amdhsa_kernarg_size 104", "  .amdhsa_user_sgpr_count 2",
            "  .amdhsa_user_sgpr_kernarg_segment_ptr 1", "  .amdhsa_system_sgpr_workgroup_id_x 1",
            "  .amdhsa_float_denorm_mode_32 3", ".end_amdhsa_kernel"]
    return "\n".join(hdr + body + tail) + "\n"

if __name__ == "__main__":
    out = sys.argv[1]
    kw = {}
    for arg in sys.argv[2:]:
        k, v = arg.split("=")
        kw[k] = int(v) if v.lstrip("-").isdigit() else v
    open(out, "w").write(gen(**kw))
```

```python
import sys
sys.path.insert(0, "gen")
import hazard
NAME = "parallel_sum__gqa_block_cached__dense_activation_squared_relu__decode"

DEFAULTS = dict(TL=2, NB=1, PRE=0, KVPOL="nt", WPOL="nt", DEBUG=0, SLEEP=1, SPIN=20000, PROF=0, CPF=1, PRIO=0, BAR0=1, PUBFRAC=4, DYN=1, SMAP=1)

WS_EPOCH = 0
WS_HG    = 0x1000
WS_MLG   = 0x14000
WS_OG    = 0x20000
WS_YG    = 0xA0000
WS_QG    = 0xF0000
WS_CTR   = 0x18000
WS_DBG   = 0x100000
WS_PROF  = 0x1C0000
WS_SIZE  = 0x200000

L_W1  = 0
L_WW  = 49152
L_OP  = 139264
L_HP  = 147456
L_QB  = 149504
L_MLP = 150016
L_VAL = 150144
L_VALH = L_VAL + 512
L_YP  = 151296
L_XN  = L_YP + 4096
L_END = L_XN + 1280

LOG2E = 0x3FB8AA3B
SCALE = 0x3DB504F3

class A:
    def __init__(s): s.L = []
    def e(s, x): s.L.append("  " + x)
    def lab(s, x): s.L.append(x + ":")
    def c(s, x): s.L.append("  ; " + x)
    def raw(s, x): s.L.append(x)
def vr(a, n): return f"v[{a}:{a+n-1}]"
def sr(a, n): return f"s[{a}:{a+n-1}]"

def gen(**kw):
    P = dict(DEFAULTS); P.update(kw)
    TL, NB, KVPOL, WPOL, DEBUG = P["TL"], P["NB"], P["KVPOL"], P["WPOL"], P["DEBUG"]
    NW = 8
    tile_bytes = TL * 1024
    ntiles = (1 << 20) // tile_bytes // NW
    assert ntiles % NB == 0 and TL in (1, 2, 4)
    a = A(); e = a.e; c = a.c
    hdr = []
    hdr.append(f"; params: {P}")
    hdr.append(f"; @launch grid=(256,1,1) block=(512,1,1) lds={(L_END + 255)//256*256}")
    a.raw('.amdgcn_target "amdgcn-amd-amdhsa--gfx950"')
    a.raw(".text"); a.raw(f".globl {NAME}_kernel"); a.raw(".p2align 8"); a.raw(f".type {NAME}_kernel,@function")
    a.lab(f"{NAME}_kernel")

    pX, pK, pV, pWQ = 8, 10, 12, 14
    pWO, pOUT = 16, 18
    pW1, pB1, pW2, pB2 = 20, 22, 24, 26
    pWS = 28
    sB, sHKV, sS, sPAIR, sW, sTAG = 30, 31, 32, 33, 34, 35
    rK, rV, rWS, rA, rB, rC = 36, 40, 44, 48, 52, 56
    sTOFF, sCNT = 60, 61
    t0, t1, t2, t3 = 62, 63, 64, 65
    sEQ = [66, 68, 70, 72]
    sX1 = 74
    sPS, sSS, sCUR, sNXT, sCTR = 76, 77, 78, 79, 80
    sWT = 82
    sSPIN = 90
    sL2E, sSCL = 91, 92
    sEX = 94
    t4, t5 = 96, 97
    sDOFF, sDLDS, sDM, sDP, sDELTA = 93, 100, 101, 5 if False else 7, 6
    vDQ = 46
    vLANE, vKOFF, vVOFF = 1, 2, 3
    BK = 4; MASK = 8
    vM, vL, vML = 12, 13, 14
    vt = [15, 16, 17, 18, 19]
    ACC = 20
    DB = 24
    SREG = 40
    KV0 = 48
    def kreg(b, j): return KV0 + b * (8 * TL) + j * 4
    def vreg(b, j): return KV0 + b * (8 * TL) + 4 * TL + j * 4
    PRE = P["PRE"]
    NBT = NB + PRE
    PR0 = KV0 + NBT * 8 * TL
    assert PR0 + 100 <= 256
    WQT = PR0
    XP = PR0 + 20
    SELQ = PR0 + 30
    SELX = PR0 + 38
    SELH = PR0 + 42
    HA = PR0 + 46
    HB = PR0 + 82
    NV = PR0 + 100
    vB1, vMISC = PR0 + 92, 45
    D1, D2, HACC = 24, 28, 32
    BQ = [4, 8]

    def mk_srd(r, ptr, off_s=None, size=None, size_s=None):
        if off_s is not None:
            e(f"s_add_u32 s{r}, s{ptr}, s{off_s}"); e(f"s_addc_u32 s{r+1}, s{ptr+1}, 0")
            e(f"s_and_b32 s{r+1}, s{r+1}, 0xffff")
        else:
            e(f"s_mov_b32 s{r}, s{ptr}"); e(f"s_and_b32 s{r+1}, s{ptr+1}, 0xffff")
        if size_s is not None: e(f"s_mov_b32 s{r+2}, s{size_s}")
        else: e(f"s_mov_b32 s{r+2}, {size}")
        e(f"s_mov_b32 s{r+3}, 0x20000")
    def bf16r(d, s_): e(f"v_cvt_pk_bf16_f32 v{d}, 0, v{s_}")
    def cross_rows(x, y, op):
        e(f"v_mov_b32 v{y}, v{x}")
        e(f"v_permlane16_swap_b32 v{x}, v{y}"); e("s_nop 0")
        e(f"{op} v{x}, v{x}, v{y}")
        e(f"v_mov_b32 v{y}, v{x}")
        e(f"v_permlane32_swap_b32 v{x}, v{y}"); e("s_nop 0")
        e(f"{op} v{x}, v{x}, v{y}")
    def wave_reduce(x, y, op):
        for pat in ["quad_perm:[1,0,3,2]", "quad_perm:[2,3,0,1]", "row_half_mirror", "row_mirror"]:
            e(f"{op}_dpp v{x}, v{x}, v{x} {pat} row_mask:0xf bank_mask:0xf")
        cross_rows(x, y, op)
    STAMPS = [3, 0, 1, 98, 99, 10, 11, 12, 13, 14, 15]
    def stamp(i, mode="all"):
        if not P["PROF"]: return
        if mode == "pro" and P["PROF"] != 2: return
        if mode == "tail" and P["PROF"] != 1: return
        e("s_memrealtime s[4:5]"); e("s_waitcnt lgkmcnt(0)"); e(f"s_mov_b32 s{STAMPS[i]}, s4")
    def spin_check(okl):
        e(f"s_sub_u32 s{sSPIN}, s{sSPIN}, 1"); e(f"s_cmp_eq_u32 s{sSPIN}, 0"); e(f"s_cbranch_scc1 {okl}")

    c("---- phase 0: ids, pointers")
    e("s_cmp_ge_u32 s2, 256")
    e("s_cbranch_scc1 L_exit")
    e(f"s_load_dwordx8 {sr(8,8)}, s[0:1], 0")
    e(f"s_load_dwordx2 {sr(pWS,2)}, s[0:1], 96")
    e(f"s_load_dwordx8 {sr(20,8)}, s[0:1], 48")
    e(f"s_load_dwordx2 {sr(pWO,2)}, s[0:1], 32")
    e(f"s_load_dwordx2 {sr(pOUT,2)}, s[0:1], 80")
    if P["CPF"]:
        c("pull the kernel's own code into L2 (read-only, speed only)")
        e("s_getpc_b64 s[4:5]")
        a.lab("L_pc")
        e("v_lshlrev_b32 v46, 7, v0")
        e("v_cmp_gt_u32 vcc, L_exit-L_pc, v46")
        e(f"s_and_saveexec_b64 {sr(sEX,2)}, vcc")
        e("s_cbranch_execz L_nocpf")
        e("global_load_dword v47, v46, s[4:5] nt")
        a.lab("L_nocpf")
        e(f"s_mov_b64 exec, {sr(sEX,2)}")
    stamp(0)
    e(f"s_and_b32 s{t0}, s2, 7")
    e(f"s_lshr_b32 s{t1}, s2, 3")
    e(f"s_and_b32 s{sS}, s{t1}, 7")
    e(f"s_bfe_u32 s{t2}, s{t1}, 0x10003")
    e(f"s_lshr_b32 s{sB}, s{t1}, 4")
    e(f"s_lshl_b32 s{t2}, s{t2}, 3")
    e(f"s_or_b32 s{sHKV}, s{t0}, s{t2}")
    e(f"s_lshl_b32 s{sPAIR}, s{sB}, 4")
    e(f"s_or_b32 s{sPAIR}, s{sPAIR}, s{sHKV}")
    if P["SMAP"]:
        e(f"s_lshr_b32 s{sPS}, s2, 3"); e(f"s_and_b32 s{sSS}, s2, 7")
    else:
        e(f"s_mov_b32 s{sPS}, s{sPAIR}"); e(f"s_mov_b32 s{sSS}, s{sS}")
    e(f"v_and_b32 v{vLANE}, 63, v0")
    e(f"v_lshrrev_b32 v{vt[0]}, 6, v0")
    e(f"v_mul_u32_u24 v5, 24, v{vLANE}")
    e(f"v_readfirstlane_b32 s{sW}, v{vt[0]}")
    vG, vR = vt[1], vt[2]
    e(f"v_lshrrev_b32 v{vG}, 4, v{vLANE}")
    e(f"v_and_b32 v{vR}, 15, v{vLANE}")
    e(f"v_lshrrev_b32 v{vt[3]}, 2, v{vR}")
    e(f"v_mul_u32_u24 v4, 18, v{vG}"); e(f"v_add_u32 v4, v4, v{vt[3]}"); e("v_lshlrev_b32 v4, 13, v4")
    e(f"v_and_b32 v{vt[4]}, 3, v{vR}")
    e(f"v_lshl_add_u32 v4, v{vt[4]}, 4, v4")
    e(f"s_mul_i32 s{t0}, s{sB}, 1152")
    e(f"s_lshl_b32 s{t3}, s{sB}, 8")
    e(f"s_lshl_b32 s{t1}, s{sHKV}, 9"); e(f"s_lshl_b32 s{t2}, s{sS}, 6"); e(f"s_add_u32 s{t1}, s{t1}, s{t2}")
    e(f"s_sub_u32 s{t4}, {576*8192}, s{t1}")
    e(f"s_mul_i32 s{t2}, s{sW}, {72*8192}")
    if P["PRIO"]:
        e(f"s_cmp_ge_u32 s{sW}, 4"); e("s_cbranch_scc0 L_noprio"); e("s_setprio 1"); a.lab("L_noprio")
    e("s_waitcnt lgkmcnt(0)")
    XS = 24
    mk_srd(rA, pX, off_s=t0, size=1152)
    e(f"s_cmp_eq_u32 s{sW}, 0"); e("s_cbranch_scc0 L_nox")
    e(f"buffer_load_dwordx4 {vr(XS,4)}, v5, {sr(rA,4)}, 0 offen nt")
    e(f"buffer_load_dwordx2 {vr(XS+4,2)}, v5, {sr(rA,4)}, 0 offen offset:16 nt")
    a.lab("L_nox")
    mk_srd(rB, pWQ, off_s=t1, size_s=t4)
    for t in range(5):
        e(f"buffer_load_dwordx4 {vr(WQT+4*t,4)}, v4, {sr(rB,4)}, s{t2} offen {WPOL}")
        if t < 4: e(f"s_add_u32 s{t2}, s{t2}, {4*8192}")
    e(f"s_load_dword s{sTAG}, {sr(pWS,2)}, s{t3}")
    stamp(1, "pro")
    c("---- lane constants / masks / selectors")
    e(f"s_mov_b32 s{sL2E}, {LOG2E:#x}")
    e(f"s_mov_b32 s{sSCL}, {SCALE:#x}")
    e(f"v_lshlrev_b32 v{vt[3]}, 8, v{vt[3]}")
    e(f"v_lshl_add_u32 v{vt[3]}, v{vG}, 6, v{vt[3]}")
    e(f"v_lshl_add_u32 v{vKOFF}, v{vt[4]}, 4, v{vt[3]}")
    e(f"v_lshlrev_b32 v{vVOFF}, 4, v{vLANE}")
    e(f"v_mul_u32_u24 v{vMISC}, 36, v{vG}")
    e(f"v_and_b32 v{vt[0]}, 7, v{vLANE}")
    e(f"v_lshrrev_b32 v{vt[1]}, 1, v{vt[0]}")
    for k in range(4): e(f"v_cmp_eq_u32 {sr(sEQ[k],2)}, {k}, v{vt[1]}")
    e(f"v_bfe_u32 v{vt[1]}, v{vLANE}, 3, 1")
    e(f"v_cmp_eq_u32 {sr(sX1,2)}, 1, v{vt[1]}")
    def make_selq(SEL, ta, tb, tc):
        e(f"v_and_b32 v{ta}, 1, v{vLANE}")
        e(f"v_cmp_eq_u32 vcc, 1, v{ta}")
        e(f"v_mov_b32 v{ta}, 0x0c0c0100"); e(f"v_mov_b32 v{tb}, 0x01000c0c")
        e(f"v_cndmask_b32 v{ta}, v{ta}, v{tb}, vcc")
        e(f"v_mov_b32 v{tb}, 0x0c0c0302"); e(f"v_mov_b32 v{tc}, 0x03020c0c")
        e(f"v_cndmask_b32 v{tb}, v{tb}, v{tc}, vcc")
        e(f"v_mov_b32 v{tc}, 0x0c0c0c0c")
        for k in range(4):
            e(f"v_cndmask_b32 v{SEL+k}, v{tc}, v{ta}, {sr(sEQ[k],2)}")
            e(f"v_cndmask_b32 v{SEL+4+k}, v{tc}, v{tb}, {sr(sEQ[k],2)}")
    make_selq(SELQ, 6, 7, 8)
    for k in range(4):
        e(f"v_cndmask_b32 v{SELX+k}, v{SELQ+k}, v{SELQ+4+k}, {sr(sX1,2)}")
    e(f"v_bfe_u32 v9, v{vLANE}, 1, 1")
    e("v_cmp_eq_u32 vcc, 1, v9")
    e(f"v_cndmask_b32 v{SELH+0}, v6, v8, vcc"); e(f"v_cndmask_b32 v{SELH+1}, v8, v6, vcc")
    e(f"v_cndmask_b32 v{SELH+2}, v7, v8, vcc"); e(f"v_cndmask_b32 v{SELH+3}, v8, v7, vcc")
    c("---- K/V tile 0 prefetch")
    e(f"s_lshl_b32 s{t0}, s{sPS}, 23")
    mk_srd(rK, pK, off_s=t0, size=1 << 23)
    mk_srd(rV, pV, off_s=t0, size=1 << 23)
    e(f"s_mul_i32 s{sTOFF}, s{sW}, {tile_bytes}"); e(f"s_lshl_b32 s{t0}, s{sSS}, 20"); e(f"s_add_u32 s{sTOFF}, s{sTOFF}, s{t0}")
    def issue_k(b, so=None):
        for j in range(TL):
            e(f"buffer_load_dwordx4 {vr(kreg(b,j),4)}, v{vKOFF}, {sr(rK,4)}, s{so or sTOFF} offen offset:{j*1024} {KVPOL}")
    def issue_v(b, so=None):
        for j in range(TL):
            e(f"buffer_load_dwordx4 {vr(vreg(b,j),4)}, v{vVOFF}, {sr(rV,4)}, s{so or sTOFF} offen offset:{j*1024} {KVPOL}")
        if so is None: e(f"s_add_u32 s{sTOFF}, s{sTOFF}, {tile_bytes*NW}")
    e("s_barrier")
    def issue_kv_all():
        for b in range(NB):
            issue_k(b); issue_v(b)
    def issue_kv_pre():
        for b in range(NB, NBT):
            issue_k(b); issue_v(b)
    nKV0 = NB * 2 * TL
    e(f"s_cmp_eq_u32 s{sW}, 0"); e("s_cbranch_scc1 L_ln")
    issue_kv_all()
    stamp(2, "pro")
    e("s_branch L_ln_done")
    a.lab("L_ln")
    c("---- LayerNorm by wave 0 (lanes < 48 hold 12 elements each)")
    e("s_waitcnt vmcnt(5)")
    stamp(5, "pro")
    XF = 30
    for i in range(6):
        e(f"v_lshlrev_b32 v{XF+2*i}, 16, v{XS+i}")
        e(f"v_and_b32 v{XF+2*i+1}, 0xffff0000, v{XS+i}")
    e(f"v_pk_add_f32 v[12:13], {vr(XF,2)}, {vr(XF+2,2)}")
    e(f"v_pk_add_f32 v[14:15], {vr(XF+4,2)}, {vr(XF+6,2)}")
    e(f"v_pk_add_f32 v[16:17], {vr(XF+8,2)}, {vr(XF+10,2)}")
    e("v_pk_add_f32 v[12:13], v[12:13], v[14:15]")
    e("v_pk_add_f32 v[12:13], v[12:13], v[16:17]")
    e("v_add_f32 v14, v12, v13")
    wave_reduce(14, 15, "v_add_f32")
    e(f"v_mul_f32 v14, {0xBAE38E39:#x}, v14")
    e("v_mov_b32 v15, v14")
    e(f"v_pk_add_f32 v[12:13], {vr(XF,2)}, v[14:15]")
    e("v_pk_mul_f32 v[16:17], v[12:13], v[12:13]")
    for i in range(1, 6):
        e(f"v_pk_add_f32 v[12:13], {vr(XF+2*i,2)}, v[14:15]")
        e("v_pk_fma_f32 v[16:17], v[12:13], v[12:13], v[16:17]")
    e("v_add_f32 v16, v16, v17")
    e(f"v_cmp_gt_u32 vcc, 48, v{vLANE}")
    e("v_cndmask_b32 v16, 0, v16, vcc")
    wave_reduce(16, 17, "v_add_f32")
    e(f"v_mul_f32 v16, {0x3AE38E39:#x}, v16")
    bf16r(16, 16)
    e(f"v_add_f32 v16, {0x3727C5AC:#x}, v16")
    bf16r(16, 16)
    e("v_sqrt_f32 v16, v16")
    bf16r(16, 16)
    e("v_rcp_f32 v16, v16")
    bf16r(14, 14)
    e("v_mov_b32 v15, v14")
    e("v_mov_b32 v17, v16")
    for i in range(6):
        e(f"v_pk_add_f32 {vr(XF+2*i,2)}, {vr(XF+2*i,2)}, v[14:15]")
    for i in range(6):
        e(f"v_cvt_pk_bf16_f32 v{XS+i}, v{XF+2*i}, v{XF+2*i+1}")
    for i in range(6):
        e(f"v_lshlrev_b32 v{XF+2*i}, 16, v{XS+i}")
        e(f"v_and_b32 v{XF+2*i+1}, 0xffff0000, v{XS+i}")
    for i in range(6):
        e(f"v_pk_mul_f32 {vr(XF+2*i,2)}, {vr(XF+2*i,2)}, v[16:17]")
    for i in range(6):
        e(f"v_cvt_pk_bf16_f32 v{XS+i}, v{XF+2*i}, v{XF+2*i+1}")
    e(f"v_add_u32 v5, {L_XN}, v5")
    e("s_mov_b32 exec_hi, 0xffff")
    for i in range(3): e(f"ds_write_b64 v5, {vr(XS+2*i,2)} offset:{8*i}")
    e("s_mov_b32 exec_hi, -1")
    issue_kv_all()
    e("s_waitcnt lgkmcnt(0)")
    a.lab("L_ln_done")
    e(f"s_mul_i32 s{t0}, s{sW}, 144"); e(f"s_add_u32 s{t0}, s{t0}, {L_XN}")
    e(f"v_add_u32 v{vMISC}, s{t0}, v{vMISC}")
    e("s_barrier")
    for i in range(4): e(f"ds_read2_b32 {vr(XP+2*i,2)}, v{vMISC} offset0:{2*i} offset1:{2*i+1}")
    e(f"ds_read_b32 v{XP+8}, v{vMISC} offset:32")
    e("s_waitcnt lgkmcnt(0)")
    stamp(6, "pro")
    c("---- q slice: 32 columns, 9 MFMAs")
    def bq(setr, pair):
        for k in range(4): e(f"v_perm_b32 v{setr+k}, v{XP+pair}, v{XP+pair}, v{SELX+k}")
    bq(BQ[0], 0); bq(BQ[1], 1)
    e(f"s_waitcnt vmcnt({nKV0})")
    for t in range(5):
        cc = "0" if t == 0 else vr(D1, 4)
        e(f"v_mfma_f32_16x16x32_bf16 {vr(D1,4)}, {vr(WQT+4*t,4)}, {vr(BQ[0],4)}, {cc}")
        if t < 4:
            cc = "0" if t == 0 else vr(D2, 4)
            e(f"v_mfma_f32_16x16x32_bf16 {vr(D2,4)}, {vr(WQT+4*t,4)}, {vr(BQ[1],4)}, {cc}")
            bq(BQ[0], 2*t + 2)
            if t < 3: bq(BQ[1], 2*t + 3)
    stamp(7, "pro")
    e(f"v_lshrrev_b32 v4, 4, v{vLANE}"); e("v_lshlrev_b32 v4, 7, v4")
    e(f"v_and_b32 v5, 7, v{vLANE}"); e("v_lshl_add_u32 v4, v5, 2, v4")
    e(f"s_lshl_b32 s{t0}, s{sW}, 9"); e(f"s_add_u32 s{t0}, s{t0}, {L_OP}")
    e(f"v_add_u32 v4, s{t0}, v4")
    e(f"s_mov_b32 s{t4}, 0"); e(f"s_mov_b32 s{t5}, -1")
    for v in range(4):
        e(f"v_cndmask_b32 v{5+v}, v{D1+v}, v{D2+v}, {sr(t4,2)}")
    e(f"s_mov_b32 s{t4}, 0xff0000ff"); e(f"s_mov_b32 s{t5}, 0xff0000ff")
    e(f"s_mov_b64 exec, {sr(t4,2)}")
    for v in range(4):
        e(f"ds_write_b32 v4, v{5+v} offset:{32*v}")
    e("s_mov_b64 exec, -1")
    mk_srd(rWS, pWS, None, size=WS_SIZE)
    e("s_waitcnt lgkmcnt(0)")
    e(f"s_mul_i32 s{sTAG}, s{sTAG}, 1664525"); e(f"s_add_u32 s{sTAG}, s{sTAG}, 1013904223")
    e(f"s_mov_b32 s{sSPIN}, {P['SPIN']}")
    e("s_barrier")
    stamp(8, "pro")
    e(f"s_cmp_eq_u32 s{sW}, 0"); e("s_cbranch_scc0 L_notw0")
    c("wave 0: reduce + publish the q slice")
    e(f"v_lshrrev_b32 v4, 5, v{vLANE}"); e("v_lshlrev_b32 v4, 11, v4")
    e(f"v_and_b32 v5, 31, v{vLANE}"); e("v_lshl_add_u32 v4, v5, 2, v4"); e(f"v_add_u32 v4, {L_OP}, v4")
    for i in range(16): e(f"ds_read_b32 v{24+i}, v4 offset:{128*i}")
    e("s_waitcnt lgkmcnt(0)")
    idx = [24 + i for i in range(16)]
    while len(idx) > 1:
        nxt = []
        for i in range(0, len(idx), 2):
            e(f"v_add_f32 v{idx[i]}, v{idx[i]}, v{idx[i+1]}"); nxt.append(idx[i])
        idx = nxt
    e("v_mov_b32 v25, v24"); e("v_permlane32_swap_b32 v24, v25"); e("s_nop 0"); e("v_add_f32 v24, v24, v25")
    bf16r(24, 24)
    e(f"v_mov_b32 v25, s{sTAG}")
    e(f"s_lshl_b32 s{t0}, s{sPAIR}, 8"); e(f"s_lshl_b32 s{t1}, s{sS}, 5"); e(f"s_add_u32 s{t0}, s{t0}, s{t1}")
    e(f"s_lshl_b32 s{t0}, s{t0}, 3"); e(f"s_add_u32 s{t0}, s{t0}, {WS_QG}")
    e("v_lshlrev_b32 v5, 3, v5")
    e("s_mov_b32 exec_hi, 0")
    e(f"buffer_store_dwordx2 v[24:25], v5, {sr(rWS,4)}, s{t0} offen sc1")
    e("s_mov_b32 exec_hi, -1")
    if P["DYN"]:
        e(f"s_cmp_eq_u32 s{sSS}, 0"); e("s_cbranch_scc0 L_notw0")
        e(f"s_lshl_b32 s{t0}, s{sPS}, 7"); e(f"s_add_u32 s{t0}, s{t0}, {WS_CTR}")
        e("v_mov_b32 v24, 0"); e(f"v_mov_b32 v26, 0"); e(f"v_mov_b32 v27, s{sTAG}")
        e("s_mov_b64 exec, 1")
        e(f"buffer_store_dwordx2 v[26:27], v24, {sr(rWS,4)}, s{t0} offen sc1")
        e("s_mov_b64 exec, -1")
    a.lab("L_notw0")
    issue_kv_pre()
    e(f"s_cmp_lt_u32 s{sW}, 4"); e("s_cbranch_scc0 L_pro_join")
    c("waves 0-3: gather q of the group")
    e(f"s_lshl_b32 s{t0}, s{sPS}, 11"); e(f"s_add_u32 s{t0}, s{t0}, {WS_QG}")
    e("v_lshlrev_b32 v4, 3, v0")
    a.lab("L_gather_q")
    e(f"buffer_load_dwordx2 v[6:7], v4, {sr(rWS,4)}, s{t0} offen sc1")
    e("s_waitcnt vmcnt(0)")
    e(f"v_cmp_ne_u32 vcc, s{sTAG}, v7")
    e("s_cbranch_vccz L_q_ok")
    spin_check("L_q_ok")
    if P["SLEEP"]: e(f"s_sleep {P['SLEEP']}")
    e("s_branch L_gather_q")
    a.lab("L_q_ok")
    e(f"v_lshlrev_b32 v4, 1, v0"); e(f"v_add_u32 v4, {L_QB}, v4")
    e("ds_write_b16_d16_hi v4, v6")
    if DEBUG:
        e(f"s_lshl_b32 s{t0}, s2, 10"); e(f"s_add_u32 s{t0}, s{t0}, {WS_DBG}")
        e("v_lshlrev_b32 v7, 2, v0")
        e(f"buffer_store_dword v6, v7, {sr(rWS,4)}, s{t0} offen")
    a.lab("L_pro_join")
    stamp(9, "pro")
    e("s_waitcnt lgkmcnt(0)")
    e("s_barrier")
    c("BK operand: QB + h*256 + (a+4g)*16")
    e(f"v_bfe_u32 v15, v{vLANE}, 3, 1"); e("v_lshlrev_b32 v15, 8, v15")
    e(f"v_lshrrev_b32 v16, 4, v{vLANE}"); e("v_lshl_add_u32 v15, v16, 6, v15")
    e(f"v_and_b32 v16, 3, v{vLANE}"); e("v_lshl_add_u32 v15, v16, 4, v15")
    e(f"v_add_u32 v15, {L_QB}, v15")
    e(f"ds_read_b128 {vr(BK,4)}, v15")
    c("DMA setup: phase 1 = w1 slice (6 steps), phase 2 = wo/w2 slice (11 steps)")
    e(f"s_mul_i32 s{t0}, s{sHKV}, 576"); e(f"s_mul_i32 s{t1}, s{sS}, 72"); e(f"s_add_u32 s{t0}, s{t0}, s{t1}")
    mk_srd(rA, pB1, None, size=4608*2)
    e(f"v_lshlrev_b32 v16, 1, v{vLANE}")
    e(f"buffer_load_ushort v{vB1}, v16, {sr(rA,4)}, s{t0} offen nt")
    e(f"s_and_b32 s{sDELTA}, s{t0}, 15")
    e(f"s_andn2_b32 s{t0}, s{t0}, 15")
    e(f"s_mul_i32 s{t1}, s{sW}, {72*9216}")
    e(f"s_add_u32 s{sDOFF}, s{t0}, s{t1}")
    mk_srd(rC, pW1, None, size=576*9216)
    e(f"s_mul_i32 s{sDLDS}, s{sW}, 6144")
    if L_W1: e(f"s_add_u32 s{sDLDS}, s{sDLDS}, {L_W1}")
    e(f"s_movk_i32 s{sDM}, 13108"); e(f"s_movk_i32 s{sDP}, {9216-80}")
    e(f"v_mov_b32 v{vDQ}, v{vLANE}")
    def dma_switch():
        e(f"s_cmp_lt_u32 s{sW}, 4")
        e(f"s_cselect_b32 s{rC}, s{pWO}, s{pW2}")
        e(f"s_cselect_b32 s{rC+1}, s{pWO+1}, s{pW2+1}")
        e(f"s_mov_b32 s{t4}, {4096*1152}")
        e(f"s_cselect_b32 s{rC+2}, s{t4}, {4608*1152}")
        e(f"s_and_b32 s{rC+1}, s{rC+1}, 0xffff")
        e(f"s_mov_b32 s{rC+3}, 0x20000")
        e(f"s_lshl_b32 s{t0}, s{sHKV}, 8"); e(f"s_lshl_b32 s{t1}, s{sW}, 6"); e(f"s_add_u32 s{t0}, s{t0}, s{t1}")
        e(f"s_mul_i32 s{t1}, s{sHKV}, 288"); e(f"s_mul_i32 s{t2}, s{sW}, 72"); e(f"s_add_u32 s{t1}, s{t1}, s{t2}")
        e(f"s_sub_u32 s{t1}, s{t1}, 288")
        e(f"s_cmp_lt_u32 s{sW}, 4")
        e(f"s_cselect_b32 s{t0}, s{t0}, s{t1}")
        e(f"s_mul_i32 s{t0}, s{t0}, 1152"); e(f"s_mul_i32 s{t1}, s{sS}, 144"); e(f"s_add_u32 s{sDOFF}, s{t0}, s{t1}")
        e(f"s_mul_i32 s{sDLDS}, s{sW}, 11264"); e(f"s_add_u32 s{sDLDS}, s{sDLDS}, {L_WW}")
        e(f"s_movk_i32 s{sDM}, 7282"); e(f"s_movk_i32 s{sDP}, 1008")
        e(f"v_mov_b32 v{vDQ}, v{vLANE}")
    def dma_step():
        e(f"v_mul_u32_u24 v47, s{sDM}, v{vDQ}"); e("v_lshrrev_b32 v47, 16, v47")
        e(f"v_mul_u32_u24 v47, s{sDP}, v47")
        e(f"v_lshl_add_u32 v47, v{vDQ}, 4, v47")
        e(f"s_mov_b32 m0, s{sDLDS}")
        e(f"v_add_u32 v{vDQ}, 64, v{vDQ}")
        e(f"buffer_load_dwordx4 v47, {sr(rC,4)}, s{sDOFF} offen {WPOL} lds")
        e(f"s_add_u32 s{sDLDS}, s{sDLDS}, 1024")
    e(f"v_and_b32 v16, 1, v{vLANE}"); e("v_cmp_eq_u32 vcc, 1, v16")
    e("v_mov_b32 v16, 0xffff"); e("v_mov_b32 v17, 0xffff0000")
    e("v_cndmask_b32 v16, v16, v17, vcc")
    for k in range(4): e(f"v_cndmask_b32 v{MASK+k}, 0, v16, {sr(sEQ[k],2)}")
    e(f"v_mov_b32 v{vM}, 0xff800000"); e(f"v_mov_b32 v{vML}, 0xff800000"); e(f"v_mov_b32 v{vL}, 0")
    for v in range(4): e(f"v_mov_b32 v{ACC+v}, 0")
    e("s_waitcnt lgkmcnt(0)")
    stamp(3)

    NOUT = 2 * TL * NB - TL
    vA = PR0 + 94
    RANGE = (1 << 20) // tile_bytes
    PUB = RANGE // P["PUBFRAC"] if P["DYN"] else 0
    PRIV = RANGE - PUB
    OOB = 1 << 23
    def issue_atomic():
        e(f"v_mov_b32 v{vA}, 1"); e(f"v_mov_b32 v{vA+1}, 0")
        e("s_mov_b64 exec, 1")
        e(f"buffer_atomic_add_x2 {vr(vA,2)}, v{vA+2}, {sr(rWS,4)}, s{sCTR} offen sc0")
        e("s_mov_b64 exec, -1")
    uid = [0]
    def tile(b, waits, dma=False, reissue=True, mode="S"):
        uid[0] += 1; u = uid[0]
        if waits: e(f"s_waitcnt vmcnt({NOUT})")
        for j in range(TL):
            e(f"v_mfma_f32_16x16x32_bf16 {vr(DB+4*j,4)}, {vr(kreg(b,j),4)}, {vr(BK,4)}, 0")
        if dma: dma_step()
        if mode == "D":
            e(f"v_readfirstlane_b32 s{t0}, v{vA}"); e(f"v_readfirstlane_b32 s{t1}, v{vA+1}")
            e(f"s_cmp_lg_u32 s{t1}, s{sTAG}"); e("s_cbranch_scc1 L_ctr_retry")
            a.lab("L_ctr_ok")
            lg = PUB.bit_length() - 1
            e(f"s_lshr_b32 s{t1}, s{t0}, {lg}"); e(f"s_and_b32 s{t2}, s{t0}, {PUB-1}")
            e(f"s_lshl_b32 s{t1}, s{t1}, 20"); e(f"s_add_u32 s{t2}, s{t2}, {PRIV}")
            e(f"s_mul_i32 s{t2}, s{t2}, {tile_bytes}"); e(f"s_add_u32 s{sNXT}, s{t1}, s{t2}")
            e(f"s_cmp_ge_u32 s{t0}, {8*PUB}")
            e(f"s_cselect_b32 s{sNXT}, {OOB}, s{sNXT}")
            e(f"s_cbranch_scc1 L_dskipk")
            issue_k(b, sNXT)
            issue_atomic()
            a.lab("L_dskipk")
        elif reissue:
            issue_k(b)
            if mode == "SA": issue_atomic()
        U = [SREG + j for j in range(TL)]
        if TL == 4:
            for j in range(TL):
                e(f"v_mov_b32_dpp v{U[j]}, v{DB+4*j} quad_perm:[0,0,0,0] row_mask:0xf bank_mask:0xf")
            for q in range(1, 4):
                for j in range(TL):
                    e(f"v_add_f32_dpp v{U[j]}, v{DB+4*j+q}, v{U[j]} quad_perm:[{q},{q},{q},{q}] row_mask:0xf bank_mask:0xf")
        else:
            W = [SREG + 4 + j for j in range(TL)]
            for j in range(TL):
                e(f"v_mov_b32_dpp v{U[j]}, v{DB+4*j} quad_perm:[0,0,0,0] row_mask:0xf bank_mask:0xf")
            for j in range(TL):
                e(f"v_mov_b32_dpp v{W[j]}, v{DB+4*j+2} quad_perm:[2,2,2,2] row_mask:0xf bank_mask:0xf")
            for j in range(TL):
                e(f"v_add_f32_dpp v{U[j]}, v{DB+4*j+1}, v{U[j]} quad_perm:[1,1,1,1] row_mask:0xf bank_mask:0xf")
            for j in range(TL):
                e(f"v_add_f32_dpp v{W[j]}, v{DB+4*j+3}, v{W[j]} quad_perm:[3,3,3,3] row_mask:0xf bank_mask:0xf")
            for j in range(TL):
                e(f"v_add_f32 v{U[j]}, v{U[j]}, v{W[j]}")
        for j in range(TL): bf16r(U[j], U[j])
        for j in range(TL): e(f"v_mul_f32 v{U[j]}, s{sSCL}, v{U[j]}")
        for j in range(TL): bf16r(U[j], U[j])
        m2 = vt[0]
        if TL == 1: e(f"v_max_f32 v{m2}, v{vM}, v{U[0]}")
        else:
            e(f"v_max3_f32 v{m2}, v{vM}, v{U[0]}, v{U[1]}")
            j = 2
            while j < TL:
                e(f"v_max3_f32 v{m2}, v{m2}, v{U[j]}, v{U[j+1]}"); j += 2
        cross_rows(m2, vt[1], "v_max_f32")
        e(f"v_mul_f32 v{vt[1]}, s{sL2E}, v{m2}")
        e(f"v_mov_b32 v{vM}, v{m2}")
        e(f"v_sub_f32 v{vt[2]}, v{vML}, v{vt[1]}")
        for j in range(TL): e(f"v_fma_f32 v{U[j]}, v{U[j]}, s{sL2E}, -v{vt[1]}")
        e(f"v_exp_f32 v{vt[2]}, v{vt[2]}")
        for j in range(TL): e(f"v_exp_f32 v{U[j]}, v{U[j]}")
        e(f"v_mov_b32 v{vML}, v{vt[1]}")
        e(f"v_fma_f32 v{vL}, v{vL}, v{vt[2]}, v{U[0]}")
        for v in range(4): e(f"v_mul_f32 v{ACC+v}, v{ACC+v}, v{vt[2]}")
        for j in range(1, TL): e(f"v_add_f32 v{vL}, v{vL}, v{U[j]}")
        for j in range(TL): e(f"v_cvt_pk_bf16_f32 v{U[j]}, v{U[j]}, v{U[j]}")
        for j in range(TL):
            for k in range(4): e(f"v_and_b32 v{DB+4*j+k}, v{U[j]}, v{MASK+k}")
        if mode == "D":
            e(f"s_cmp_ge_u32 s{sNXT}, {OOB}"); e("s_cbranch_scc1 L_dlast")
            e(f"s_waitcnt vmcnt({NOUT + 1})")
            for j in range(TL):
                e(f"v_mfma_f32_16x16x32_bf16 {vr(ACC,4)}, {vr(vreg(b,j),4)}, {vr(DB+4*j,4)}, {vr(ACC,4)}")
            issue_v(b, sNXT)
            e("s_branch L_loopD")
            a.lab("L_dlast")
            e("s_waitcnt vmcnt(0)")
            for j in range(TL):
                e(f"v_mfma_f32_16x16x32_bf16 {vr(ACC,4)}, {vr(vreg(b,j),4)}, {vr(DB+4*j,4)}, {vr(ACC,4)}")
            return
        if waits: e(f"s_waitcnt vmcnt({NOUT + (1 if mode == 'SA' else 0)})")
        for j in range(TL):
            e(f"v_mfma_f32_16x16x32_bf16 {vr(ACC,4)}, {vr(vreg(b,j),4)}, {vr(DB+4*j,4)}, {vr(ACC,4)}")
        if reissue: issue_v(b)
    c("---- peeled first tiles (landed: covered by earlier waits for waves 0-3; wait for the others)")
    e("s_waitcnt vmcnt(1)")
    for b in range(NB): tile(b, False)
    for b in range(NB, NBT): tile(b, False, reissue=False)
    N1, N2 = 6, 11
    assert NB == 1
    c("---- loop A: tiles + DMA of w1 (6 steps) then wo/w2 (11 steps)")
    e(f"s_mov_b32 s{sCNT}, {N1 + N2}")
    a.lab("L_loopA")
    e(f"s_cmp_eq_u32 s{sCNT}, {N2}"); e("s_cbranch_scc0 L_noswitch")
    dma_switch()
    a.lab("L_noswitch")
    tile(0, True, dma=True)
    e(f"s_sub_u32 s{sCNT}, s{sCNT}, 1"); e(f"s_cmp_lg_u32 s{sCNT}, 0"); e("s_cbranch_scc1 L_loopA")
    c("---- hidden slice: 18 MFMAs 16x16x16")
    e(f"v_lshrrev_b32 v24, 4, v{vLANE}"); e("v_mul_u32_u24 v24, 1440, v24")
    e(f"v_and_b32 v25, 15, v{vLANE}"); e("v_min_u32 v25, 8, v25"); e("v_lshl_add_u32 v24, v25, 3, v24")
    e(f"s_mul_i32 s{t0}, s{sW}, 6144"); e(f"s_add_u32 s{t0}, s{t0}, s{sDELTA}")
    if L_W1: e(f"s_add_u32 s{t0}, s{t0}, {L_W1}")
    e(f"v_add_u32 v24, s{t0}, v24")
    for j in range(18): e(f"ds_read_b64 {vr(HA+2*j,2)}, v24 offset:{80*j}")
    def hb(j):
        for k in range(2):
            e(f"v_perm_b32 v{HB+2*(j%4)+k}, v{XP+(j>>1)}, v{XP+(j>>1)}, v{SELH+(j&1)*2+k}")
    hb(0); hb(1); hb(2)
    e("s_waitcnt lgkmcnt(0)")
    for j in range(18):
        cc = "0" if j == 0 else vr(HACC, 4)
        e(f"v_mfma_f32_16x16x16_bf16 {vr(HACC,4)}, {vr(HA+2*j,2)}, {vr(HB+2*(j%4),2)}, {cc}")
        if j + 3 < 18: hb(j + 3)
    e(f"s_lshl_b32 s{t0}, s{sW}, 8"); e(f"s_add_u32 s{t0}, s{t0}, {L_HP}")
    e(f"v_lshlrev_b32 v26, 2, v{vLANE}"); e(f"v_add_u32 v26, s{t0}, v26")
    e(f"v_bfe_u32 v25, v{vLANE}, 2, 2")
    e(f"v_cmp_eq_u32 vcc, 1, v25"); e(f"v_cmp_eq_u32 {sr(t4,2)}, 2, v25"); e(f"v_cmp_eq_u32 {sr(sEX,2)}, 3, v25")
    e(f"v_cndmask_b32 v27, v{HACC}, v{HACC+1}, vcc")
    e(f"v_cndmask_b32 v27, v27, v{HACC+2}, {sr(t4,2)}")
    e(f"v_cndmask_b32 v27, v27, v{HACC+3}, {sr(sEX,2)}")
    e("ds_write_b32 v26, v27")
    e("s_waitcnt lgkmcnt(0)")
    e("s_barrier")
    e(f"s_cmp_eq_u32 s{sW}, 4"); e("s_cbranch_scc0 L_noh")
    c("wave 4: reduce + publish hidden slice")
    e(f"v_lshlrev_b32 v24, 2, v{vLANE}"); e(f"v_add_u32 v24, {L_HP}, v24")
    for w in range(8): e(f"ds_read_b32 v{25+w}, v24 offset:{256*w}")
    e("s_waitcnt lgkmcnt(0)")
    for w in range(1, 8): e(f"v_add_f32 v25, v25, v{25+w}")
    bf16r(25, 25)
    e(f"v_lshlrev_b32 v26, 16, v{vB1}")
    e("v_add_f32 v25, v25, v26"); bf16r(25, 25)
    e("v_max_f32 v25, 0, v25"); e("v_mul_f32 v24, v25, v25"); bf16r(24, 24)
    e(f"v_mov_b32 v25, s{sTAG}")
    e(f"s_mul_i32 s{t0}, s{sPAIR}, 288"); e(f"s_mul_i32 s{t1}, s{sS}, 36"); e(f"s_add_u32 s{t0}, s{t0}, s{t1}")
    e(f"s_lshl_b32 s{t0}, s{t0}, 3"); e(f"s_add_u32 s{t0}, s{t0}, {WS_HG}")
    e(f"v_lshlrev_b32 v26, 3, v{vLANE}")
    e(f"v_cmp_gt_u32 vcc, 36, v{vLANE}")
    e(f"s_and_saveexec_b64 {sr(sEX,2)}, vcc")
    e(f"buffer_store_dwordx2 v[24:25], v26, {sr(rWS,4)}, s{t0} offen sc1")
    e(f"s_mov_b64 exec, {sr(sEX,2)}")
    a.lab("L_noh")
    nA = N1 + N2
    c("---- main loop")
    NSTAT = PRIV // NW
    if P["DYN"]:
        nS = NSTAT - NBT - nA - 2
    else:
        nS = NSTAT - NBT - nA
    assert nS > 0
    e(f"s_mov_b32 s{sCNT}, {nS}")
    e(f"s_lshl_b32 s{sCTR}, s{sPS}, 7"); e(f"s_add_u32 s{sCTR}, s{sCTR}, {WS_CTR}")
    e(f"v_mov_b32 v{vA+2}, 0")
    a.raw(".p2align 6")
    a.lab("L_loop")
    tile(0, True)
    e(f"s_sub_u32 s{sCNT}, s{sCNT}, 1")
    e(f"s_cmp_lg_u32 s{sCNT}, 0")
    e("s_cbranch_scc1 L_loop")
    if P["DYN"]:
        tile(0, True, mode="SA")
        a.raw(".p2align 6")
        a.lab("L_loopD")
        tile(0, True, mode="D")
        e("s_branch L_stream_done")
        a.lab("L_ctr_retry")
        c("counter not initialised yet (tag mismatch): retry the grab")
        e("s_waitcnt vmcnt(0)")
        spin_check("L_ctr_giveup")
        if P["SLEEP"]: e(f"s_sleep {P['SLEEP']}")
        issue_atomic()
        e("s_waitcnt vmcnt(0)")
        e(f"v_readfirstlane_b32 s{t0}, v{vA}"); e(f"v_readfirstlane_b32 s{t1}, v{vA+1}")
        e(f"s_cmp_lg_u32 s{t1}, s{sTAG}"); e("s_cbranch_scc1 L_ctr_retry")
        e("s_branch L_ctr_ok")
        a.lab("L_ctr_giveup")
        e(f"s_mov_b32 s{t0}, {8*PUB}")
        e("s_branch L_ctr_ok")
        a.lab("L_stream_done")
    else:
        pass

    c("---- T1: combine the 8 waves of the workgroup")
    e("s_waitcnt vmcnt(0)")
    stamp(4)
    cross_rows(vL, vt[0], "v_add_f32")
    e(f"v_bfe_u32 v24, v{vLANE}, 3, 1"); e("v_lshlrev_b32 v24, 9, v24")
    e(f"v_lshrrev_b32 v25, 4, v{vLANE}"); e("v_lshl_add_u32 v24, v25, 7, v24")
    e(f"v_and_b32 v25, 7, v{vLANE}"); e("v_lshl_add_u32 v24, v25, 2, v24")
    e(f"s_lshl_b32 s{t0}, s{sW}, 10"); e(f"s_add_u32 s{t0}, s{t0}, {L_OP}")
    e(f"v_add_u32 v24, s{t0}, v24")
    for v in range(4): e(f"ds_write_b32 v24, v{ACC+v} offset:{32*v}")
    e(f"v_bfe_u32 v25, v{vLANE}, 3, 1"); e("v_lshlrev_b32 v25, 3, v25")
    e(f"s_lshl_b32 s{t0}, s{sW}, 4"); e(f"s_add_u32 s{t0}, s{t0}, {L_MLP}")
    e(f"v_add_u32 v25, s{t0}, v25")
    e(f"v_mov_b32 v26, v{vM}"); e(f"v_mov_b32 v27, v{vL}")
    e("s_mov_b64 exec, 0x101")
    e("ds_write_b64 v25, v[26:27]")
    e("s_mov_b64 exec, -1")
    e("s_waitcnt lgkmcnt(0)")
    e("s_barrier")
    e(f"s_cmp_lt_u32 s{sW}, 4"); e("s_cbranch_scc0 L_hgather")
    c("waves 0-3: WG partial for (h = w>>1, t)")
    e(f"s_lshr_b32 s{t0}, s{sW}, 1")
    e(f"s_lshl_b32 s{t1}, s{t0}, 3"); e(f"s_add_u32 s{t1}, s{t1}, {L_MLP}")
    e(f"v_mov_b32 v24, s{t1}")
    for w in range(8): e(f"ds_read_b64 {vr(28+2*w,2)}, v24 offset:{16*w}")
    e(f"v_lshlrev_b32 v25, 2, v0"); e(f"v_add_u32 v25, {L_OP}, v25")
    for w in range(8): e(f"ds_read_b32 v{44+w}, v25 offset:{1024*w}")
    e("s_waitcnt lgkmcnt(8)")
    e("v_max3_f32 v26, v28, v30, v32"); e("v_max3_f32 v26, v26, v34, v36"); e("v_max3_f32 v26, v26, v38, v40"); e("v_max_f32 v26, v26, v42")
    for w in range(8): e(f"v_sub_f32 v{28+2*w}, v{28+2*w}, v26")
    for w in range(8): e(f"v_mul_f32 v{28+2*w}, s{sL2E}, v{28+2*w}")
    for w in range(8): e(f"v_exp_f32 v{28+2*w}, v{28+2*w}")
    e("s_waitcnt lgkmcnt(0)")
    e("v_mul_f32 v52, v28, v44"); e("v_mul_f32 v27, v28, v29")
    for w in range(1, 8):
        e(f"v_fmac_f32 v52, v{28+2*w}, v{44+w}"); e(f"v_fmac_f32 v27, v{28+2*w}, v{29+2*w}")
    e(f"v_mov_b32 v53, s{sTAG}")
    e(f"s_lshl_b32 s{t1}, s{sPS}, 3"); e(f"s_or_b32 s{t1}, s{t1}, s{sSS}")
    e(f"s_lshl_b32 s{t2}, s{t1}, 11"); e(f"s_add_u32 s{t2}, s{t2}, {WS_OG}")
    e("v_lshlrev_b32 v54, 3, v0")
    e(f"buffer_store_dwordx2 v[52:53], v54, {sr(rWS,4)}, s{t2} offen sc1")
    e(f"s_and_b32 s{t2}, s{sW}, 1"); e(f"s_cmp_eq_u32 s{t2}, 0"); e("s_cbranch_scc0 L_ml_done")
    e(f"v_cmp_eq_u32 vcc, 1, v{vLANE}")
    e("v_cndmask_b32 v56, v26, v27, vcc"); e(f"v_mov_b32 v57, s{sTAG}")
    e(f"s_lshl_b32 s{t2}, s{t1}, 5"); e(f"s_lshl_b32 s{t3}, s{t0}, 3"); e(f"s_add_u32 s{t2}, s{t2}, s{t3}"); e(f"s_add_u32 s{t2}, s{t2}, {WS_MLG}")
    e(f"v_lshlrev_b32 v58, 4, v{vLANE}")
    e("s_mov_b64 exec, 3")
    e(f"buffer_store_dwordx2 v[56:57], v58, {sr(rWS,4)}, s{t2} offen sc1")
    e("s_mov_b64 exec, -1")
    a.lab("L_ml_done")
    stamp(5, "tail")
    c("T4: poll ML granules of the group for head h")
    e(f"v_and_b32 v24, 7, v{vLANE}"); e("v_lshlrev_b32 v24, 5, v24")
    e(f"v_bfe_u32 v25, v{vLANE}, 3, 1"); e("v_lshl_add_u32 v24, v25, 4, v24")
    e(f"s_lshl_b32 s{t2}, s{sPAIR}, 8"); e(f"s_lshl_b32 s{t3}, s{t0}, 3"); e(f"s_add_u32 s{t2}, s{t2}, s{t3}"); e(f"s_add_u32 s{t2}, s{t2}, {WS_MLG}")
    a.lab("L_poll_ml")
    e(f"buffer_load_dwordx2 v[26:27], v24, {sr(rWS,4)}, s{t2} offen sc1")
    e("s_waitcnt vmcnt(0)")
    e(f"v_cmp_ne_u32 vcc, s{sTAG}, v27")
    e("s_cbranch_vccz L_ml_ok")
    spin_check("L_ml_ok")
    if P["SLEEP"]: e(f"s_sleep {P['SLEEP']}")
    e("s_branch L_poll_ml")
    a.lab("L_ml_ok")
    stamp(6, "tail")
    e(f"s_lshl_b32 s{t3}, s{sPAIR}, 14"); e(f"s_add_u32 s{t3}, s{t3}, {WS_OG}")
    a.lab("L_gather_o")
    e(f"s_mov_b32 s{t2}, s{t3}")
    for s_ in range(8):
        e(f"buffer_load_dwordx2 {vr(28+2*s_,2)}, v54, {sr(rWS,4)}, s{t2} offen sc1")
        if s_ < 7: e(f"s_add_u32 s{t2}, s{t2}, 2048")
    e("v_mov_b32 v44, v26")
    e("v_max_f32_dpp v44, v44, v44 quad_perm:[1,0,3,2] row_mask:0xf bank_mask:0xf")
    e("v_max_f32_dpp v44, v44, v44 quad_perm:[2,3,0,1] row_mask:0xf bank_mask:0xf")
    e("v_max_f32_dpp v44, v44, v44 row_half_mirror row_mask:0xf bank_mask:0xf")
    e("v_mov_b32_dpp v45, v26 row_ror:8 row_mask:0xf bank_mask:0xf")
    e("v_sub_f32 v46, v26, v44"); e(f"v_mul_f32 v46, s{sL2E}, v46"); e("v_exp_f32 v46, v46")
    e("v_mul_f32 v47, v46, v45")
    e("v_add_f32_dpp v47, v47, v47 quad_perm:[1,0,3,2] row_mask:0xf bank_mask:0xf")
    e("v_add_f32_dpp v47, v47, v47 quad_perm:[2,3,0,1] row_mask:0xf bank_mask:0xf")
    e("v_add_f32_dpp v47, v47, v47 row_half_mirror row_mask:0xf bank_mask:0xf")
    e("v_rcp_f32 v47, v47")
    e("v_mul_f32 v46, v46, v47")
    for s_ in range(8): e(f"v_readlane_b32 s{sWT+s_}, v46, {s_}")
    e("s_waitcnt vmcnt(0)")
    e(f"v_xor_b32 v48, s{sTAG}, v29")
    for s_ in range(1, 8):
        e(f"v_xor_b32 v49, s{sTAG}, v{29+2*s_}"); e("v_or_b32 v48, v48, v49")
    e("v_cmp_ne_u32 vcc, 0, v48")
    e("s_cbranch_vccz L_o_ok")
    spin_check("L_o_ok")
    e("s_branch L_gather_o")
    a.lab("L_o_ok")
    e(f"v_mul_f32 v48, s{sWT}, v28")
    for s_ in range(1, 8): e(f"v_fmac_f32 v48, s{sWT+s_}, v{28+2*s_}")
    e("v_cvt_pk_bf16_f32 v48, v48, v48")
    e(f"v_lshlrev_b32 v49, 1, v0"); e(f"v_add_u32 v49, {L_VAL}, v49")
    e("ds_write_b16 v49, v48")
    if DEBUG:
        e(f"v_lshlrev_b32 v50, 16, v48")
        e(f"s_lshl_b32 s{t0}, s2, 10"); e(f"s_add_u32 s{t0}, s{t0}, {WS_DBG + 0x40000}")
        e("v_lshlrev_b32 v51, 2, v0")
        e(f"buffer_store_dword v50, v51, {sr(rWS,4)}, s{t0} offen")
    e("s_branch L_t5")
    a.lab("L_hgather")
    c("waves 4-7: gather the 288 hidden values of the group")
    e(f"v_subrev_u32 v24, 256, v0")
    e("v_lshlrev_b32 v25, 3, v24")
    e("v_min_u32 v26, 31, v24"); e("v_lshlrev_b32 v26, 3, v26")
    e(f"s_mul_i32 s{t0}, s{sPAIR}, {288*8}"); e(f"s_add_u32 s{t0}, s{t0}, {WS_HG}")
    a.lab("L_gather_h")
    e(f"buffer_load_dwordx2 v[28:29], v25, {sr(rWS,4)}, s{t0} offen sc1")
    e(f"buffer_load_dwordx2 v[30:31], v26, {sr(rWS,4)}, s{t0} offen offset:2048 sc1")
    e("s_waitcnt vmcnt(0)")
    e(f"v_xor_b32 v32, s{sTAG}, v29"); e(f"v_xor_b32 v33, s{sTAG}, v31"); e("v_or_b32 v32, v32, v33")
    e("v_cmp_ne_u32 vcc, 0, v32")
    e("s_cbranch_vccz L_h_ok")
    spin_check("L_h_ok")
    if P["SLEEP"]: e(f"s_sleep {P['SLEEP']}")
    e("s_branch L_gather_h")
    a.lab("L_h_ok")
    e("v_lshlrev_b32 v32, 1, v24"); e(f"v_add_u32 v32, {L_VALH}, v32")
    e("ds_write_b16_d16_hi v32, v28")
    e("v_min_u32 v33, 31, v24"); e("v_lshlrev_b32 v33, 1, v33"); e(f"v_add_u32 v33, {L_VALH + 512}, v33")
    e("ds_write_b16_d16_hi v33, v30")
    a.lab("L_t5")
    e("s_waitcnt lgkmcnt(0)")
    e("s_barrier")
    stamp(7, "tail")
    c("---- T5: projection slice")
    SEL5 = 24
    make_selq(SEL5, 32, 33, 34)
    e(f"s_cmp_lt_u32 s{sW}, 4")
    e(f"s_cselect_b32 s{t0}, 16, 18")
    e(f"s_lshl_b32 s{t1}, s{sW}, 7"); e(f"s_add_u32 s{t1}, s{t1}, {L_VAL}")
    e(f"s_mul_i32 s{t2}, s{sW}, 144"); e(f"s_add_u32 s{t2}, s{t2}, {L_VALH - 576}")
    e(f"s_cmp_lt_u32 s{sW}, 4")
    e(f"s_cselect_b32 s{t1}, s{t1}, s{t2}")
    e(f"v_lshrrev_b32 v32, 4, v{vLANE}")
    e(f"v_mul_u32_u24 v32, s{t0}, v32")
    e(f"v_lshlrev_b32 v33, 1, v32"); e(f"v_add_u32 v33, s{t1}, v33")
    VP = 36
    for t in range(9): e(f"ds_read_b32 v{VP+t}, v33 offset:{4*t}")
    e("v_mul_u32_u24 v32, 9, v32")
    e(f"v_and_b32 v34, 15, v{vLANE}"); e("v_min_u32 v34, 8, v34"); e("v_add_u32 v32, v32, v34")
    e("v_lshlrev_b32 v32, 4, v32")
    e(f"s_mul_i32 s{t2}, s{sW}, 11264"); e(f"s_add_u32 s{t2}, s{t2}, {L_WW}")
    e(f"v_add_u32 v32, s{t2}, v32")
    WT = 48
    assert WT + 72 + 16 <= NV
    for j in range(18): e(f"ds_read_b128 {vr(WT+4*j,4)}, v32 offset:{144*j}")
    B5 = WT + 72
    def b5(j):
        for k in range(4):
            e(f"v_perm_b32 v{B5+4*(j%4)+k}, v{VP+(j>>1)}, v{VP+(j>>1)}, v{SEL5+(j&1)*4+k}")
    e("s_waitcnt lgkmcnt(15)")
    e("s_waitcnt lgkmcnt(0)")
    b5(0); b5(1); b5(2)
    YACC = 20
    for j in range(18):
        if j == 16:
            e(f"s_cmp_lt_u32 s{sW}, 4"); e("s_cbranch_scc1 L_t5_done")
        cc = "0" if j == 0 else vr(YACC, 4)
        e(f"v_mfma_f32_16x16x32_bf16 {vr(YACC,4)}, {vr(WT+4*j,4)}, {vr(B5+4*(j%4),4)}, {cc}")
        if j + 3 < 18: b5(j + 3)
    a.lab("L_t5_done")
    e(f"v_lshrrev_b32 v32, 4, v{vLANE}"); e("v_lshlrev_b32 v32, 7, v32")
    e(f"v_bfe_u32 v33, v{vLANE}, 3, 1"); e("v_lshl_add_u32 v32, v33, 6, v32")
    e(f"v_and_b32 v33, 7, v{vLANE}"); e("v_lshl_add_u32 v32, v33, 2, v32")
    e(f"s_lshl_b32 s{t0}, s{sW}, 9"); e(f"s_add_u32 s{t0}, s{t0}, {L_YP}")
    e(f"v_add_u32 v32, s{t0}, v32")
    e("s_nop 3")
    e(f"v_cndmask_b32 v33, v{YACC}, v{YACC+2}, {sr(sX1,2)}")
    e(f"v_cndmask_b32 v34, v{YACC+1}, v{YACC+3}, {sr(sX1,2)}")
    e("ds_write_b32 v32, v33"); e("ds_write_b32 v32, v34 offset:32")
    e("s_waitcnt lgkmcnt(0)")
    e("s_barrier")
    e(f"s_cmp_lt_u32 s{sW}, 3"); e("s_cbranch_scc0 L_end")
    c("threads j<144: kind=j&1, col=j>>1 : sum 4 partials, publish")
    e("v_min_u32 v24, 143, v0")
    e("v_and_b32 v25, 1, v24"); e("v_lshrrev_b32 v26, 1, v24")
    e("v_lshlrev_b32 v27, 11, v25"); e("v_lshl_add_u32 v27, v26, 2, v27"); e(f"v_add_u32 v27, {L_YP}, v27")
    for w in range(4): e(f"ds_read_b32 v{28+w}, v27 offset:{512*w}")
    e(f"s_mul_i32 s{t0}, s{sB}, 1152"); e(f"s_mul_i32 s{t1}, s{sS}, 144"); e(f"s_add_u32 s{t0}, s{t0}, s{t1}")
    mk_srd(rA, pX, None, size=2304)
    mk_srd(rB, pB2, None, size=1152)
    e("v_lshlrev_b32 v40, 1, v26")
    e(f"buffer_load_ushort v41, v40, {sr(rA,4)}, s{t0} offen")
    e(f"buffer_load_ushort v42, v40, {sr(rB,4)}, s{t1} offen")
    e("s_waitcnt lgkmcnt(0)")
    e("v_add_f32 v28, v28, v29"); e("v_add_f32 v30, v30, v31"); e("v_add_f32 v28, v28, v30")
    e(f"v_mov_b32 v29, s{sTAG}")
    e(f"s_lshl_b32 s{t2}, s{sB}, 3"); e(f"s_or_b32 s{t2}, s{t2}, s{sS}"); e(f"s_lshl_b32 s{t2}, s{t2}, 4")
    e(f"s_mul_i32 s{t3}, s{t2}, 1152"); e(f"s_add_u32 s{t3}, s{t3}, {WS_YG}")
    e(f"s_mul_i32 s{t2}, s{sHKV}, 1152"); e(f"s_add_u32 s{t2}, s{t2}, s{t3}")
    e("v_lshlrev_b32 v30, 3, v24")
    e("v_cmp_gt_u32 vcc, 144, v0")
    e(f"s_and_saveexec_b64 {sr(sEX,2)}, vcc")
    e(f"buffer_store_dwordx2 v[28:29], v30, {sr(rWS,4)}, s{t2} offen sc1")
    e(f"s_mov_b64 exec, {sr(sEX,2)}")
    stamp(8, "tail")
    if P["PROF"] == 1: e("s_mov_b32 s14, 0")
    e(f"s_cmp_eq_u32 s{sHKV}, s{sS}"); e("s_cbranch_scc0 L_end")
    c("---- T6: final reducer for (b, s)")
    G6 = 48
    a.lab("L_gather_y")
    e(f"s_mov_b32 s{t2}, s{t3}")
    for k in range(16):
        e(f"buffer_load_dwordx2 {vr(G6+2*k,2)}, v30, {sr(rWS,4)}, s{t2} offen sc1")
        if k < 15: e(f"s_add_u32 s{t2}, s{t2}, 1152")
    e("s_waitcnt vmcnt(0)")
    e(f"v_xor_b32 v32, s{sTAG}, v{G6+1}")
    for k in range(1, 16):
        e(f"v_xor_b32 v33, s{sTAG}, v{G6+2*k+1}"); e("v_or_b32 v32, v32, v33")
    e("v_cmp_ne_u32 vcc, 0, v32")
    e("s_cbranch_vccz L_y_ok")
    spin_check("L_y_ok")
    e("s_branch L_gather_y")
    a.lab("L_y_ok")
    stamp(9, "tail")
    idx = [G6 + 2*k for k in range(16)]
    while len(idx) > 1:
        nxt = []
        for i in range(0, len(idx), 2):
            e(f"v_add_f32 v{idx[i]}, v{idx[i]}, v{idx[i+1]}"); nxt.append(idx[i])
        idx = nxt
    bf16r(32, G6)
    e("v_mov_b32_dpp v33, v32 quad_perm:[1,0,3,2] row_mask:0xf bank_mask:0xf")
    e("v_lshlrev_b32 v41, 16, v41"); e("v_lshlrev_b32 v42, 16, v42")
    e("v_add_f32 v32, v41, v32"); bf16r(32, 32)
    e("v_add_f32 v33, v33, v42"); bf16r(33, 33)
    e("v_add_f32 v32, v32, v33"); e("v_cvt_pk_bf16_f32 v32, v32, v32")
    mk_srd(rA, pOUT, None, size=2304)
    e("v_and_b32 v33, 1, v0"); e("v_cmp_eq_u32 vcc, 0, v33")
    e(f"s_mov_b64 {sr(t4,2)}, vcc")
    e("v_cmp_gt_u32 vcc, 144, v0")
    e(f"s_and_b64 vcc, vcc, {sr(t4,2)}")
    e(f"s_and_saveexec_b64 {sr(sEX,2)}, vcc")
    e(f"buffer_store_short v32, v40, {sr(rA,4)}, s{t0} offen")
    e(f"s_mov_b64 exec, {sr(sEX,2)}")
    e(f"s_or_b32 s{t1}, s{sS}, s{sW}"); e(f"s_cmp_eq_u32 s{t1}, 0"); e("s_cbranch_scc0 L_end")
    e(f"s_lshl_b32 s{t1}, s{sB}, 8")
    e(f"v_mov_b32 v33, s{sTAG}"); e("v_mov_b32 v34, 0")
    e("s_mov_b64 exec, 1")
    e(f"buffer_store_dword v33, v34, {sr(rWS,4)}, s{t1} offen sc1")
    a.lab("L_end")
    if P["PROF"]:
        stamp(10)
        e("s_mov_b64 exec, 1")
        e(f"s_lshl_b32 s{t0}, s2, 3"); e(f"s_add_u32 s{t0}, s{t0}, s{sW}")
        e(f"s_lshl_b32 s{t0}, s{t0}, 6"); e(f"s_add_u32 s{t0}, s{t0}, {WS_PROF}")
        e("v_mov_b32 v1, 0")
        for i in range(11):
            e(f"v_mov_b32 v2, s{STAMPS[i]}")
            e(f"buffer_store_dword v2, v1, {sr(rWS,4)}, s{t0} offen offset:{4*i}")
            e("s_nop 0")
    a.lab("L_exit")
    e("s_endpgm")
    body, n = hazard.fix(a.L)
    nv = max(NV, 140)
    tail = ['.section .rodata,"a"', ".p2align 6", f".amdhsa_kernel {NAME}_kernel",
            f"  .amdhsa_next_free_vgpr {(nv+7)//8*8}", "  .amdhsa_next_free_sgpr 102", f"  .amdhsa_accum_offset {(nv+7)//8*8}",
            "  .amdhsa_group_segment_fixed_size 0", "  .amdhsa_kernarg_size 104", "  .amdhsa_user_sgpr_count 2",
            "  .amdhsa_user_sgpr_kernarg_segment_ptr 1", "  .amdhsa_system_sgpr_workgroup_id_x 1",
            "  .amdhsa_float_denorm_mode_32 3", ".end_amdhsa_kernel"]
    return "\n".join(hdr + body + tail) + "\n"

if __name__ == "__main__":
    out = sys.argv[1]
    kw = {}
    for arg in sys.argv[2:]:
        k, v = arg.split("=")
        kw[k] = int(v) if v.lstrip("-").isdigit() else v
    open(out, "w").write(gen(**kw))
```

```python
import sys
sys.path.insert(0, "gen")
import hazard
NAME = "parallel_sum__gqa_block_cached__dense_activation_squared_relu__decode"

DEFAULTS = dict(TL=2, NB=1, PRE=0, KVPOL="nt", WPOL="nt", DEBUG=0, SLEEP=1, SPIN=20000, PROF=0, CPF=1, PRIO=0, BAR0=1, PUBFRAC=4, DYN=1, SMAP=1, EARLY=0)

WS_EPOCH = 0
WS_HG    = 0x1000
WS_MLG   = 0x14000
WS_OG    = 0x20000
WS_YG    = 0xA0000
WS_QG    = 0xF0000
WS_CTR   = 0x18000
WS_DBG   = 0x100000
WS_PROF  = 0x1C0000
WS_SIZE  = 0x200000

L_W1  = 0
L_WW  = 49152
L_OP  = 139264
L_HP  = 147456
L_QB  = 149504
L_MLP = 150016
L_VAL = 150144
L_VALH = L_VAL + 512
L_YP  = 151296
L_XN  = L_YP + 4096
L_END = L_XN + 1280

LOG2E = 0x3FB8AA3B
SCALE = 0x3DB504F3

class A:
    def __init__(s): s.L = []
    def e(s, x): s.L.append("  " + x)
    def lab(s, x): s.L.append(x + ":")
    def c(s, x): s.L.append("  ; " + x)
    def raw(s, x): s.L.append(x)
def vr(a, n): return f"v[{a}:{a+n-1}]"
def sr(a, n): return f"s[{a}:{a+n-1}]"

def gen(**kw):
    P = dict(DEFAULTS); P.update(kw)
    TL, NB, KVPOL, WPOL, DEBUG = P["TL"], P["NB"], P["KVPOL"], P["WPOL"], P["DEBUG"]
    NW = 8
    tile_bytes = TL * 1024
    ntiles = (1 << 20) // tile_bytes // NW
    assert ntiles % NB == 0 and TL in (1, 2, 4)
    a = A(); e = a.e; c = a.c
    hdr = []
    hdr.append(f"; params: {P}")
    hdr.append(f"; @launch grid=(256,1,1) block=(512,1,1) lds={(L_END + 255)//256*256}")
    a.raw('.amdgcn_target "amdgcn-amd-amdhsa--gfx950"')
    a.raw(".text"); a.raw(f".globl {NAME}_kernel"); a.raw(".p2align 8"); a.raw(f".type {NAME}_kernel,@function")
    a.lab(f"{NAME}_kernel")

    pX, pK, pV, pWQ = 8, 10, 12, 14
    pWO, pOUT = 16, 18
    pW1, pB1, pW2, pB2 = 20, 22, 24, 26
    pWS = 28
    sB, sHKV, sS, sPAIR, sW, sTAG = 30, 31, 32, 33, 34, 35
    rK, rV, rWS, rA, rB, rC = 36, 40, 44, 48, 52, 56
    sTOFF, sCNT = 60, 61
    t0, t1, t2, t3 = 62, 63, 64, 65
    sEQ = [66, 68, 70, 72]
    sX1 = 74
    sPS, sSS, sCUR, sNXT, sCTR = 76, 77, 78, 79, 80
    sWT = 82
    sSPIN = 90
    sL2E, sSCL = 91, 92
    sEX = 94
    t4, t5 = 96, 97
    sDOFF, sDLDS, sDM, sDP, sDELTA = 93, 100, 101, 5 if False else 7, 6
    vDQ = 46
    vLANE, vKOFF, vVOFF = 1, 2, 3
    BK = 4; MASK = 8
    vM, vL, vML = 12, 13, 14
    vt = [15, 16, 17, 18, 19]
    ACC = 20
    DB = 24
    SREG = 40
    KV0 = 48
    def kreg(b, j): return KV0 + b * (8 * TL) + j * 4
    def vreg(b, j): return KV0 + b * (8 * TL) + 4 * TL + j * 4
    PRE = P["PRE"]
    NBT = NB + PRE
    PR0 = KV0 + NBT * 8 * TL
    assert PR0 + 100 <= 256
    WQT = PR0
    XP = PR0 + 20
    SELQ = PR0 + 30
    SELX = PR0 + 38
    SELH = PR0 + 42
    HA = PR0 + 46
    HB = PR0 + 82
    NV = PR0 + 100
    vB1, vMISC = PR0 + 92, 45
    D1, D2, HACC = 24, 28, 32
    BQ = [4, 8]

    def mk_srd(r, ptr, off_s=None, size=None, size_s=None):
        if off_s is not None:
            e(f"s_add_u32 s{r}, s{ptr}, s{off_s}"); e(f"s_addc_u32 s{r+1}, s{ptr+1}, 0")
            e(f"s_and_b32 s{r+1}, s{r+1}, 0xffff")
        else:
            e(f"s_mov_b32 s{r}, s{ptr}"); e(f"s_and_b32 s{r+1}, s{ptr+1}, 0xffff")
        if size_s is not None: e(f"s_mov_b32 s{r+2}, s{size_s}")
        else: e(f"s_mov_b32 s{r+2}, {size}")
        e(f"s_mov_b32 s{r+3}, 0x20000")
    def bf16r(d, s_): e(f"v_cvt_pk_bf16_f32 v{d}, 0, v{s_}")
    def cross_rows(x, y, op):
        e(f"v_mov_b32 v{y}, v{x}")
        e(f"v_permlane16_swap_b32 v{x}, v{y}"); e("s_nop 0")
        e(f"{op} v{x}, v{x}, v{y}")
        e(f"v_mov_b32 v{y}, v{x}")
        e(f"v_permlane32_swap_b32 v{x}, v{y}"); e("s_nop 0")
        e(f"{op} v{x}, v{x}, v{y}")
    def wave_reduce(x, y, op):
        for pat in ["quad_perm:[1,0,3,2]", "quad_perm:[2,3,0,1]", "row_half_mirror", "row_mirror"]:
            e(f"{op}_dpp v{x}, v{x}, v{x} {pat} row_mask:0xf bank_mask:0xf")
        cross_rows(x, y, op)
    STAMPS = [3, 0, 1, 98, 99, 10, 11, 12, 13, 14, 15]
    def stamp(i, mode="all"):
        if not P["PROF"]: return
        if mode == "pro" and P["PROF"] != 2: return
        if mode == "tail" and P["PROF"] != 1: return
        e("s_memrealtime s[4:5]"); e("s_waitcnt lgkmcnt(0)"); e(f"s_mov_b32 s{STAMPS[i]}, s4")
    def spin_check(okl):
        e(f"s_sub_u32 s{sSPIN}, s{sSPIN}, 1"); e(f"s_cmp_eq_u32 s{sSPIN}, 0"); e(f"s_cbranch_scc1 {okl}")

    c("---- phase 0: ids, pointers")
    e("s_cmp_ge_u32 s2, 256")
    e("s_cbranch_scc1 L_exit")
    e(f"s_load_dwordx8 {sr(8,8)}, s[0:1], 0")
    e(f"s_load_dwordx2 {sr(pWS,2)}, s[0:1], 96")
    e(f"s_load_dwordx8 {sr(20,8)}, s[0:1], 48")
    e(f"s_load_dwordx2 {sr(pWO,2)}, s[0:1], 32")
    e(f"s_load_dwordx2 {sr(pOUT,2)}, s[0:1], 80")
    if P["CPF"] & 1:
        c("pull the kernel's own code into L2 (read-only, speed only)")
        e("s_getpc_b64 s[4:5]")
        a.lab("L_pc")
        e("v_lshlrev_b32 v46, 7, v0")
        e("v_cmp_gt_u32 vcc, L_exit-L_pc, v46")
        e(f"s_and_saveexec_b64 {sr(sEX,2)}, vcc")
        e("s_cbranch_execz L_nocpf")
        e("global_load_dword v47, v46, s[4:5] nt")
        a.lab("L_nocpf")
        e(f"s_mov_b64 exec, {sr(sEX,2)}")
    stamp(0)
    e(f"s_and_b32 s{t0}, s2, 7")
    e(f"s_lshr_b32 s{t1}, s2, 3")
    e(f"s_and_b32 s{sS}, s{t1}, 7")
    e(f"s_bfe_u32 s{t2}, s{t1}, 0x10003")
    e(f"s_lshr_b32 s{sB}, s{t1}, 4")
    e(f"s_lshl_b32 s{t2}, s{t2}, 3")
    e(f"s_or_b32 s{sHKV}, s{t0}, s{t2}")
    e(f"s_lshl_b32 s{sPAIR}, s{sB}, 4")
    e(f"s_or_b32 s{sPAIR}, s{sPAIR}, s{sHKV}")
    if P["SMAP"]:
        e(f"s_lshr_b32 s{sPS}, s2, 3"); e(f"s_and_b32 s{sSS}, s2, 7")
    else:
        e(f"s_mov_b32 s{sPS}, s{sPAIR}"); e(f"s_mov_b32 s{sSS}, s{sS}")
    e(f"v_and_b32 v{vLANE}, 63, v0")
    e(f"v_lshrrev_b32 v{vt[0]}, 6, v0")
    e(f"v_mul_u32_u24 v5, 24, v{vLANE}")
    e(f"v_readfirstlane_b32 s{sW}, v{vt[0]}")
    vG, vR = vt[1], vt[2]
    e(f"v_lshrrev_b32 v{vG}, 4, v{vLANE}")
    e(f"v_and_b32 v{vR}, 15, v{vLANE}")
    e(f"v_lshrrev_b32 v{vt[3]}, 2, v{vR}")
    e(f"v_mul_u32_u24 v4, 18, v{vG}"); e(f"v_add_u32 v4, v4, v{vt[3]}"); e("v_lshlrev_b32 v4, 13, v4")
    e(f"v_and_b32 v{vt[4]}, 3, v{vR}")
    e(f"v_lshl_add_u32 v4, v{vt[4]}, 4, v4")
    e(f"s_mul_i32 s{t0}, s{sB}, 1152")
    e(f"s_lshl_b32 s{t3}, s{sB}, 8")
    e(f"s_lshl_b32 s{t1}, s{sHKV}, 9"); e(f"s_lshl_b32 s{t2}, s{sS}, 6"); e(f"s_add_u32 s{t1}, s{t1}, s{t2}")
    e(f"s_sub_u32 s{t4}, {576*8192}, s{t1}")
    e(f"s_mul_i32 s{t2}, s{sW}, {72*8192}")
    if P["PRIO"]:
        e(f"s_cmp_ge_u32 s{sW}, 4"); e("s_cbranch_scc0 L_noprio"); e("s_setprio 1"); a.lab("L_noprio")
    e("s_waitcnt lgkmcnt(0)")
    XS = 24
    mk_srd(rA, pX, off_s=t0, size=1152)
    e(f"s_cmp_eq_u32 s{sW}, 0"); e("s_cbranch_scc0 L_nox")
    e(f"buffer_load_dwordx4 {vr(XS,4)}, v5, {sr(rA,4)}, 0 offen nt")
    e(f"buffer_load_dwordx2 {vr(XS+4,2)}, v5, {sr(rA,4)}, 0 offen offset:16 nt")
    a.lab("L_nox")
    mk_srd(rB, pWQ, off_s=t1, size_s=t4)
    for t in range(5):
        e(f"buffer_load_dwordx4 {vr(WQT+4*t,4)}, v4, {sr(rB,4)}, s{t2} offen {WPOL}")
        if t < 4: e(f"s_add_u32 s{t2}, s{t2}, {4*8192}")
    e(f"s_load_dword s{sTAG}, {sr(pWS,2)}, s{t3}")
    stamp(1, "pro")
    c("---- lane constants / masks / selectors")
    e(f"s_mov_b32 s{sL2E}, {LOG2E:#x}")
    e(f"s_mov_b32 s{sSCL}, {SCALE:#x}")
    e(f"v_lshlrev_b32 v{vt[3]}, 8, v{vt[3]}")
    e(f"v_lshl_add_u32 v{vt[3]}, v{vG}, 6, v{vt[3]}")
    e(f"v_lshl_add_u32 v{vKOFF}, v{vt[4]}, 4, v{vt[3]}")
    e(f"v_lshlrev_b32 v{vVOFF}, 4, v{vLANE}")
    e(f"v_mul_u32_u24 v{vMISC}, 36, v{vG}")
    e(f"v_and_b32 v{vt[0]}, 7, v{vLANE}")
    e(f"v_lshrrev_b32 v{vt[1]}, 1, v{vt[0]}")
    for k in range(4): e(f"v_cmp_eq_u32 {sr(sEQ[k],2)}, {k}, v{vt[1]}")
    e(f"v_bfe_u32 v{vt[1]}, v{vLANE}, 3, 1")
    e(f"v_cmp_eq_u32 {sr(sX1,2)}, 1, v{vt[1]}")
    def make_selq(SEL, ta, tb, tc):
        e(f"v_and_b32 v{ta}, 1, v{vLANE}")
        e(f"v_cmp_eq_u32 vcc, 1, v{ta}")
        e(f"v_mov_b32 v{ta}, 0x0c0c0100"); e(f"v_mov_b32 v{tb}, 0x01000c0c")
        e(f"v_cndmask_b32 v{ta}, v{ta}, v{tb}, vcc")
        e(f"v_mov_b32 v{tb}, 0x0c0c0302"); e(f"v_mov_b32 v{tc}, 0x03020c0c")
        e(f"v_cndmask_b32 v{tb}, v{tb}, v{tc}, vcc")
        e(f"v_mov_b32 v{tc}, 0x0c0c0c0c")
        for k in range(4):
            e(f"v_cndmask_b32 v{SEL+k}, v{tc}, v{ta}, {sr(sEQ[k],2)}")
            e(f"v_cndmask_b32 v{SEL+4+k}, v{tc}, v{tb}, {sr(sEQ[k],2)}")
    make_selq(SELQ, 6, 7, 8)
    for k in range(4):
        e(f"v_cndmask_b32 v{SELX+k}, v{SELQ+k}, v{SELQ+4+k}, {sr(sX1,2)}")
    e(f"v_bfe_u32 v9, v{vLANE}, 1, 1")
    e("v_cmp_eq_u32 vcc, 1, v9")
    e(f"v_cndmask_b32 v{SELH+0}, v6, v8, vcc"); e(f"v_cndmask_b32 v{SELH+1}, v8, v6, vcc")
    e(f"v_cndmask_b32 v{SELH+2}, v7, v8, vcc"); e(f"v_cndmask_b32 v{SELH+3}, v8, v7, vcc")
    c("---- K/V tile 0 prefetch")
    e(f"s_lshl_b32 s{t0}, s{sPS}, 23")
    mk_srd(rK, pK, off_s=t0, size=1 << 23)
    mk_srd(rV, pV, off_s=t0, size=1 << 23)
    e(f"s_mul_i32 s{sTOFF}, s{sW}, {tile_bytes}"); e(f"s_lshl_b32 s{t0}, s{sSS}, 20"); e(f"s_add_u32 s{sTOFF}, s{sTOFF}, s{t0}")
    def issue_k(b, so=None):
        for j in range(TL):
            e(f"buffer_load_dwordx4 {vr(kreg(b,j),4)}, v{vKOFF}, {sr(rK,4)}, s{so or sTOFF} offen offset:{j*1024} {KVPOL}")
    def issue_v(b, so=None):
        for j in range(TL):
            e(f"buffer_load_dwordx4 {vr(vreg(b,j),4)}, v{vVOFF}, {sr(rV,4)}, s{so or sTOFF} offen offset:{j*1024} {KVPOL}")
        if so is None: e(f"s_add_u32 s{sTOFF}, s{sTOFF}, {tile_bytes*NW}")
    e("s_barrier")
    def issue_kv_all():
        for b in range(NB):
            issue_k(b); issue_v(b)
    def issue_kv_pre():
        for b in range(NB, NBT):
            issue_k(b); issue_v(b)
    nKV0 = NB * 2 * TL
    e(f"s_cmp_eq_u32 s{sW}, 0"); e("s_cbranch_scc1 L_ln")
    issue_kv_all()
    stamp(2, "pro")
    e("s_branch L_ln_done")
    a.lab("L_ln")
    c("---- LayerNorm by wave 0 (lanes < 48 hold 12 elements each)")
    e("s_waitcnt vmcnt(5)")
    stamp(5, "pro")
    XF = 30
    for i in range(6):
        e(f"v_lshlrev_b32 v{XF+2*i}, 16, v{XS+i}")
        e(f"v_and_b32 v{XF+2*i+1}, 0xffff0000, v{XS+i}")
    e(f"v_pk_add_f32 v[12:13], {vr(XF,2)}, {vr(XF+2,2)}")
    e(f"v_pk_add_f32 v[14:15], {vr(XF+4,2)}, {vr(XF+6,2)}")
    e(f"v_pk_add_f32 v[16:17], {vr(XF+8,2)}, {vr(XF+10,2)}")
    e("v_pk_add_f32 v[12:13], v[12:13], v[14:15]")
    e("v_pk_add_f32 v[12:13], v[12:13], v[16:17]")
    e("v_add_f32 v14, v12, v13")
    wave_reduce(14, 15, "v_add_f32")
    e(f"v_mul_f32 v14, {0xBAE38E39:#x}, v14")
    e("v_mov_b32 v15, v14")
    e(f"v_pk_add_f32 v[12:13], {vr(XF,2)}, v[14:15]")
    e("v_pk_mul_f32 v[16:17], v[12:13], v[12:13]")
    for i in range(1, 6):
        e(f"v_pk_add_f32 v[12:13], {vr(XF+2*i,2)}, v[14:15]")
        e("v_pk_fma_f32 v[16:17], v[12:13], v[12:13], v[16:17]")
    e("v_add_f32 v16, v16, v17")
    e(f"v_cmp_gt_u32 vcc, 48, v{vLANE}")
    e("v_cndmask_b32 v16, 0, v16, vcc")
    wave_reduce(16, 17, "v_add_f32")
    e(f"v_mul_f32 v16, {0x3AE38E39:#x}, v16")
    bf16r(16, 16)
    e(f"v_add_f32 v16, {0x3727C5AC:#x}, v16")
    bf16r(16, 16)
    e("v_sqrt_f32 v16, v16")
    bf16r(16, 16)
    e("v_rcp_f32 v16, v16")
    bf16r(14, 14)
    e("v_mov_b32 v15, v14")
    e("v_mov_b32 v17, v16")
    for i in range(6):
        e(f"v_pk_add_f32 {vr(XF+2*i,2)}, {vr(XF+2*i,2)}, v[14:15]")
    for i in range(6):
        e(f"v_cvt_pk_bf16_f32 v{XS+i}, v{XF+2*i}, v{XF+2*i+1}")
    for i in range(6):
        e(f"v_lshlrev_b32 v{XF+2*i}, 16, v{XS+i}")
        e(f"v_and_b32 v{XF+2*i+1}, 0xffff0000, v{XS+i}")
    for i in range(6):
        e(f"v_pk_mul_f32 {vr(XF+2*i,2)}, {vr(XF+2*i,2)}, v[16:17]")
    for i in range(6):
        e(f"v_cvt_pk_bf16_f32 v{XS+i}, v{XF+2*i}, v{XF+2*i+1}")
    e(f"v_add_u32 v5, {L_XN}, v5")
    e("s_mov_b32 exec_hi, 0xffff")
    for i in range(3): e(f"ds_write_b64 v5, {vr(XS+2*i,2)} offset:{8*i}")
    e("s_mov_b32 exec_hi, -1")
    issue_kv_all()
    e("s_waitcnt lgkmcnt(0)")
    a.lab("L_ln_done")
    e(f"s_mul_i32 s{t0}, s{sW}, 144"); e(f"s_add_u32 s{t0}, s{t0}, {L_XN}")
    e(f"v_add_u32 v{vMISC}, s{t0}, v{vMISC}")
    e("s_barrier")
    for i in range(4): e(f"ds_read2_b32 {vr(XP+2*i,2)}, v{vMISC} offset0:{2*i} offset1:{2*i+1}")
    e(f"ds_read_b32 v{XP+8}, v{vMISC} offset:32")
    e("s_waitcnt lgkmcnt(0)")
    stamp(6, "pro")
    c("---- q slice: 32 columns, 9 MFMAs")
    def bq(setr, pair):
        for k in range(4): e(f"v_perm_b32 v{setr+k}, v{XP+pair}, v{XP+pair}, v{SELX+k}")
    bq(BQ[0], 0); bq(BQ[1], 1)
    e(f"s_waitcnt vmcnt({nKV0})")
    for t in range(5):
        cc = "0" if t == 0 else vr(D1, 4)
        e(f"v_mfma_f32_16x16x32_bf16 {vr(D1,4)}, {vr(WQT+4*t,4)}, {vr(BQ[0],4)}, {cc}")
        if t < 4:
            cc = "0" if t == 0 else vr(D2, 4)
            e(f"v_mfma_f32_16x16x32_bf16 {vr(D2,4)}, {vr(WQT+4*t,4)}, {vr(BQ[1],4)}, {cc}")
            bq(BQ[0], 2*t + 2)
            if t < 3: bq(BQ[1], 2*t + 3)
    stamp(7, "pro")
    e(f"v_lshrrev_b32 v4, 4, v{vLANE}"); e("v_lshlrev_b32 v4, 7, v4")
    e(f"v_and_b32 v5, 7, v{vLANE}"); e("v_lshl_add_u32 v4, v5, 2, v4")
    e(f"s_lshl_b32 s{t0}, s{sW}, 9"); e(f"s_add_u32 s{t0}, s{t0}, {L_OP}")
    e(f"v_add_u32 v4, s{t0}, v4")
    e(f"s_mov_b32 s{t4}, 0"); e(f"s_mov_b32 s{t5}, -1")
    for v in range(4):
        e(f"v_cndmask_b32 v{5+v}, v{D1+v}, v{D2+v}, {sr(t4,2)}")
    e(f"s_mov_b32 s{t4}, 0xff0000ff"); e(f"s_mov_b32 s{t5}, 0xff0000ff")
    e(f"s_mov_b64 exec, {sr(t4,2)}")
    for v in range(4):
        e(f"ds_write_b32 v4, v{5+v} offset:{32*v}")
    e("s_mov_b64 exec, -1")
    mk_srd(rWS, pWS, None, size=WS_SIZE)
    e("s_waitcnt lgkmcnt(0)")
    e(f"s_mul_i32 s{sTAG}, s{sTAG}, 1664525"); e(f"s_add_u32 s{sTAG}, s{sTAG}, 1013904223")
    e(f"s_mov_b32 s{sSPIN}, {P['SPIN']}")
    e("s_barrier")
    stamp(8, "pro")
    e(f"s_cmp_eq_u32 s{sW}, 0"); e("s_cbranch_scc0 L_notw0")
    c("wave 0: reduce + publish the q slice")
    e(f"v_lshrrev_b32 v4, 5, v{vLANE}"); e("v_lshlrev_b32 v4, 11, v4")
    e(f"v_and_b32 v5, 31, v{vLANE}"); e("v_lshl_add_u32 v4, v5, 2, v4"); e(f"v_add_u32 v4, {L_OP}, v4")
    for i in range(16): e(f"ds_read_b32 v{24+i}, v4 offset:{128*i}")
    e("s_waitcnt lgkmcnt(0)")
    idx = [24 + i for i in range(16)]
    while len(idx) > 1:
        nxt = []
        for i in range(0, len(idx), 2):
            e(f"v_add_f32 v{idx[i]}, v{idx[i]}, v{idx[i+1]}"); nxt.append(idx[i])
        idx = nxt
    e("v_mov_b32 v25, v24"); e("v_permlane32_swap_b32 v24, v25"); e("s_nop 0"); e("v_add_f32 v24, v24, v25")
    bf16r(24, 24)
    e(f"v_mov_b32 v25, s{sTAG}")
    e(f"s_lshl_b32 s{t0}, s{sPAIR}, 8"); e(f"s_lshl_b32 s{t1}, s{sS}, 5"); e(f"s_add_u32 s{t0}, s{t0}, s{t1}")
    e(f"s_lshl_b32 s{t0}, s{t0}, 3"); e(f"s_add_u32 s{t0}, s{t0}, {WS_QG}")
    e("v_lshlrev_b32 v5, 3, v5")
    e("s_mov_b32 exec_hi, 0")
    e(f"buffer_store_dwordx2 v[24:25], v5, {sr(rWS,4)}, s{t0} offen sc1")
    e("s_mov_b32 exec_hi, -1")
    if P["DYN"]:
        e(f"s_cmp_eq_u32 s{sSS}, 0"); e("s_cbranch_scc0 L_notw0")
        e(f"s_lshl_b32 s{t0}, s{sPS}, 7"); e(f"s_add_u32 s{t0}, s{t0}, {WS_CTR}")
        e("v_mov_b32 v24, 0"); e(f"v_mov_b32 v26, 0"); e(f"v_mov_b32 v27, s{sTAG}")
        e("s_mov_b64 exec, 1")
        e(f"buffer_store_dwordx2 v[26:27], v24, {sr(rWS,4)}, s{t0} offen sc1")
        e("s_mov_b64 exec, -1")
    a.lab("L_notw0")
    issue_kv_pre()
    c("DMA setup: phase 1 = w1 slice (6 steps), phase 2 = wo/w2 slice (11 steps)")
    e(f"s_mul_i32 s{t0}, s{sHKV}, 576"); e(f"s_mul_i32 s{t1}, s{sS}, 72"); e(f"s_add_u32 s{t0}, s{t0}, s{t1}")
    mk_srd(rA, pB1, None, size=4608*2)
    e(f"v_lshlrev_b32 v16, 1, v{vLANE}")
    e(f"buffer_load_ushort v{vB1}, v16, {sr(rA,4)}, s{t0} offen nt")
    e(f"s_and_b32 s{sDELTA}, s{t0}, 15")
    e(f"s_andn2_b32 s{t0}, s{t0}, 15")
    e(f"s_mul_i32 s{t1}, s{sW}, {72*9216}")
    e(f"s_add_u32 s{sDOFF}, s{t0}, s{t1}")
    mk_srd(rC, pW1, None, size=576*9216)
    e(f"s_mul_i32 s{sDLDS}, s{sW}, 6144")
    if L_W1: e(f"s_add_u32 s{sDLDS}, s{sDLDS}, {L_W1}")
    e(f"s_movk_i32 s{sDM}, 13108"); e(f"s_movk_i32 s{sDP}, {9216-80}")
    e(f"v_mov_b32 v{vDQ}, v{vLANE}")
    def dma_switch():
        e(f"s_cmp_lt_u32 s{sW}, 4")
        e(f"s_cselect_b32 s{rC}, s{pWO}, s{pW2}")
        e(f"s_cselect_b32 s{rC+1}, s{pWO+1}, s{pW2+1}")
        e(f"s_mov_b32 s{t4}, {4096*1152}")
        e(f"s_cselect_b32 s{rC+2}, s{t4}, {4608*1152}")
        e(f"s_and_b32 s{rC+1}, s{rC+1}, 0xffff")
        e(f"s_mov_b32 s{rC+3}, 0x20000")
        e(f"s_lshl_b32 s{t0}, s{sHKV}, 8"); e(f"s_lshl_b32 s{t1}, s{sW}, 6"); e(f"s_add_u32 s{t0}, s{t0}, s{t1}")
        e(f"s_mul_i32 s{t1}, s{sHKV}, 288"); e(f"s_mul_i32 s{t2}, s{sW}, 72"); e(f"s_add_u32 s{t1}, s{t1}, s{t2}")
        e(f"s_sub_u32 s{t1}, s{t1}, 288")
        e(f"s_cmp_lt_u32 s{sW}, 4")
        e(f"s_cselect_b32 s{t0}, s{t0}, s{t1}")
        e(f"s_mul_i32 s{t0}, s{t0}, 1152"); e(f"s_mul_i32 s{t1}, s{sS}, 144"); e(f"s_add_u32 s{sDOFF}, s{t0}, s{t1}")
        e(f"s_mul_i32 s{sDLDS}, s{sW}, 11264"); e(f"s_add_u32 s{sDLDS}, s{sDLDS}, {L_WW}")
        e(f"s_movk_i32 s{sDM}, 7282"); e(f"s_movk_i32 s{sDP}, 1008")
        e(f"v_mov_b32 v{vDQ}, v{vLANE}")
    def dma_step():
        e(f"v_mul_u32_u24 v47, s{sDM}, v{vDQ}"); e("v_lshrrev_b32 v47, 16, v47")
        e(f"v_mul_u32_u24 v47, s{sDP}, v47")
        e(f"v_lshl_add_u32 v47, v{vDQ}, 4, v47")
        e(f"s_mov_b32 m0, s{sDLDS}")
        e(f"v_add_u32 v{vDQ}, 64, v{vDQ}")
        e(f"buffer_load_dwordx4 v47, {sr(rC,4)}, s{sDOFF} offen {WPOL} lds")
        e(f"s_add_u32 s{sDLDS}, s{sDLDS}, 1024")
    e(f"v_and_b32 v16, 1, v{vLANE}"); e("v_cmp_eq_u32 vcc, 1, v16")
    e("v_mov_b32 v16, 0xffff"); e("v_mov_b32 v17, 0xffff0000")
    e("v_cndmask_b32 v16, v16, v17, vcc")
    for k in range(4): e(f"v_cndmask_b32 v{MASK+k}, 0, v16, {sr(sEQ[k],2)}")
    e(f"v_mov_b32 v{vM}, 0xff800000"); e(f"v_mov_b32 v{vML}, 0xff800000"); e(f"v_mov_b32 v{vL}, 0")
    for v in range(4): e(f"v_mov_b32 v{ACC+v}, 0")
    if P["EARLY"]:
        e(f"s_cmp_lt_u32 s{sW}, 4"); e("s_cbranch_scc1 L_noearly")
        for i in range(P["EARLY"]): dma_step()
        e(f"s_mul_i32 s{sDLDS}, s{sW}, 6144"); e(f"v_mov_b32 v{vDQ}, v{vLANE}")
        a.lab("L_noearly")
    e(f"s_cmp_lt_u32 s{sW}, 4"); e("s_cbranch_scc0 L_pro_join")
    c("waves 0-3: gather q of the group")
    e(f"s_lshl_b32 s{t0}, s{sPS}, 11"); e(f"s_add_u32 s{t0}, s{t0}, {WS_QG}")
    e("v_lshlrev_b32 v4, 3, v0")
    a.lab("L_gather_q")
    e(f"buffer_load_dwordx2 v[6:7], v4, {sr(rWS,4)}, s{t0} offen sc1")
    e("s_waitcnt vmcnt(0)")
    e(f"v_cmp_ne_u32 vcc, s{sTAG}, v7")
    e("s_cbranch_vccz L_q_ok")
    spin_check("L_q_ok")
    if P["SLEEP"]: e(f"s_sleep {P['SLEEP']}")
    e("s_branch L_gather_q")
    a.lab("L_q_ok")
    e(f"v_lshlrev_b32 v4, 1, v0"); e(f"v_add_u32 v4, {L_QB}, v4")
    e("ds_write_b16_d16_hi v4, v6")
    if DEBUG:
        e(f"s_lshl_b32 s{t0}, s2, 10"); e(f"s_add_u32 s{t0}, s{t0}, {WS_DBG}")
        e("v_lshlrev_b32 v7, 2, v0")
        e(f"buffer_store_dword v6, v7, {sr(rWS,4)}, s{t0} offen")
    a.lab("L_pro_join")
    stamp(9, "pro")
    e("s_waitcnt lgkmcnt(0)")
    e("s_barrier")
    c("BK operand: QB + h*256 + (a+4g)*16")
    e(f"v_bfe_u32 v15, v{vLANE}, 3, 1"); e("v_lshlrev_b32 v15, 8, v15")
    e(f"v_lshrrev_b32 v16, 4, v{vLANE}"); e("v_lshl_add_u32 v15, v16, 6, v15")
    e(f"v_and_b32 v16, 3, v{vLANE}"); e("v_lshl_add_u32 v15, v16, 4, v15")
    e(f"v_add_u32 v15, {L_QB}, v15")
    e(f"ds_read_b128 {vr(BK,4)}, v15")
    e("s_waitcnt lgkmcnt(0)")
    stamp(3)

    NOUT = 2 * TL * NB - TL
    vA = PR0 + 94
    RANGE = (1 << 20) // tile_bytes
    PUB = RANGE // P["PUBFRAC"] if P["DYN"] else 0
    PRIV = RANGE - PUB
    OOB = 1 << 23
    def issue_atomic():
        e(f"v_mov_b32 v{vA}, 1"); e(f"v_mov_b32 v{vA+1}, 0")
        e("s_mov_b64 exec, 1")
        e(f"buffer_atomic_add_x2 {vr(vA,2)}, v{vA+2}, {sr(rWS,4)}, s{sCTR} offen sc0")
        e("s_mov_b64 exec, -1")
    WT = 164; TV = 236; B5 = PR0 + 46
    NV = 256

    def pretail():
        c("---- pre-tail: everything of the tail that does not depend on the attention result")
        if P["CPF"] & 2:
            e("s_getpc_b64 s[4:5]")
            a.lab("L_pc2")
            e(f"v_lshlrev_b32 v{TV+14}, 7, v{vLANE}")
            e(f"v_add_u32 v{TV+14}, L_stream_done-L_pc2, v{TV+14}")
            e(f"v_cmp_gt_u32 vcc, L_exit-L_pc2, v{TV+14}")
            e(f"s_and_saveexec_b64 {sr(sEX,2)}, vcc")
            e("s_cbranch_execz L_nocpf2")
            e(f"global_load_dword v{TV+15}, v{TV+14}, s[4:5]")
            a.lab("L_nocpf2")
            e(f"s_mov_b64 exec, {sr(sEX,2)}")
        e(f"v_bfe_u32 v24, v{vLANE}, 3, 1"); e(f"v_lshlrev_b32 v{TV+0}, 9, v24")
        e(f"v_lshrrev_b32 v25, 4, v{vLANE}"); e(f"v_lshl_add_u32 v{TV+0}, v25, 7, v{TV+0}")
        e(f"v_and_b32 v26, 7, v{vLANE}"); e(f"v_lshl_add_u32 v{TV+0}, v26, 2, v{TV+0}")
        e(f"s_lshl_b32 s{t0}, s{sW}, 10"); e(f"s_add_u32 s{t0}, s{t0}, {L_OP}")
        e(f"v_add_u32 v{TV+0}, s{t0}, v{TV+0}")
        e(f"v_lshlrev_b32 v{TV+1}, 3, v24")
        e(f"s_lshl_b32 s{t0}, s{sW}, 4"); e(f"s_add_u32 s{t0}, s{t0}, {L_MLP}")
        e(f"v_add_u32 v{TV+1}, s{t0}, v{TV+1}")
        e(f"v_lshlrev_b32 v{TV+7}, 7, v25"); e(f"v_lshl_add_u32 v{TV+7}, v24, 6, v{TV+7}"); e(f"v_lshl_add_u32 v{TV+7}, v26, 2, v{TV+7}")
        e(f"s_lshl_b32 s{t0}, s{sW}, 9"); e(f"s_add_u32 s{t0}, s{t0}, {L_YP}")
        e(f"v_add_u32 v{TV+7}, s{t0}, v{TV+7}")
        e(f"s_cmp_lt_u32 s{sW}, 4")
        e(f"s_cselect_b32 s{t0}, 16, 18")
        e(f"v_mul_u32_u24 v27, s{t0}, v25")
        e("v_mul_u32_u24 v28, 9, v27")
        e(f"v_and_b32 v29, 15, v{vLANE}"); e("v_min_u32 v29, 8, v29"); e("v_add_u32 v28, v28, v29")
        e("v_lshlrev_b32 v28, 4, v28")
        e(f"s_mul_i32 s{t2}, s{sW}, 11264"); e(f"s_add_u32 s{t2}, s{t2}, {L_WW}")
        e(f"v_add_u32 v28, s{t2}, v28")
        e(f"v_lshlrev_b32 v{TV+2}, 2, v0"); e(f"v_add_u32 v{TV+2}, {L_OP}, v{TV+2}")
        e(f"v_lshlrev_b32 v{TV+3}, 3, v0")
        e(f"v_lshlrev_b32 v{TV+4}, 5, v26"); e(f"v_lshl_add_u32 v{TV+4}, v24, 4, v{TV+4}")
        e(f"v_lshlrev_b32 v{TV+5}, 1, v0"); e(f"v_add_u32 v{TV+5}, {L_VAL}, v{TV+5}")
        e(f"v_lshlrev_b32 v{TV+6}, 5, v25"); e(f"s_lshl_b32 s{t1}, s{sW}, 7"); e(f"s_add_u32 s{t1}, s{t1}, {L_VAL}")
        e(f"v_add_u32 v{TV+6}, s{t1}, v{TV+6}")
        e(f"v_min_u32 v30, 71, v0")
        e(f"v_lshlrev_b32 v{TV+8}, 2, v30"); e(f"v_add_u32 v{TV+8}, {L_YP}, v{TV+8}")
        e(f"v_lshlrev_b32 v{TV+9}, 4, v30")
        e(f"v_min_u32 v30, 143, v0"); e(f"v_lshlrev_b32 v{TV+10}, 3, v30")
        e(f"v_lshrrev_b32 v30, 1, v30"); e(f"v_lshlrev_b32 v{TV+13}, 1, v30")
        e(f"s_cmp_lt_u32 s{sW}, 4"); e("s_cbranch_scc0 L_pt_b")
        c("waves 0-3")
        for j in range(16): e(f"ds_read_b128 {vr(WT+4*j,4)}, v28 offset:{144*j}")
        e(f"s_mul_i32 s{t0}, s{sB}, 1152"); e(f"s_mul_i32 s{t1}, s{sS}, 144"); e(f"s_add_u32 s{t0}, s{t0}, s{t1}")
        mk_srd(rA, pX, None, size=2304)
        mk_srd(rB, pB2, None, size=1152)
        e(f"buffer_load_ushort v{TV+11}, v{TV+13}, {sr(rA,4)}, s{t0} offen nt")
        e(f"buffer_load_ushort v{TV+12}, v{TV+13}, {sr(rB,4)}, s{t1} offen nt")
        mk_srd(rA, pOUT, None, size=2304)
        e("s_waitcnt lgkmcnt(0)")
        e("s_branch L_pt_done")
        a.lab("L_pt_b")
        c("waves 4-7: MLP down projection for this column slice (72 hidden rows per wave)")
        e(f"s_mul_i32 s{t0}, s{sPAIR}, 288"); e(f"s_mul_i32 s{t1}, s{sW}, 72"); e(f"s_add_u32 s{t0}, s{t0}, s{t1}")
        e(f"s_sub_u32 s{t0}, s{t0}, 288"); e(f"s_lshl_b32 s{t0}, s{t0}, 3"); e(f"s_add_u32 s{t0}, s{t0}, {WS_HG}")
        e(f"v_lshlrev_b32 v30, 3, v{vLANE}")
        e(f"v_and_b32 v31, 7, v{vLANE}"); e("v_lshlrev_b32 v31, 3, v31")
        for j in range(18): e(f"ds_read_b128 {vr(WT+4*j,4)}, v28 offset:{144*j}")
        a.lab("L_gather_h")
        e(f"buffer_load_dwordx2 v[32:33], v30, {sr(rWS,4)}, s{t0} offen sc1")
        e(f"buffer_load_dwordx2 v[34:35], v31, {sr(rWS,4)}, s{t0} offen offset:512 sc1")
        e("s_waitcnt vmcnt(0)")
        e(f"v_xor_b32 v36, s{sTAG}, v33"); e(f"v_xor_b32 v37, s{sTAG}, v35"); e("v_or_b32 v36, v36, v37")
        e("v_cmp_ne_u32 vcc, 0, v36")
        e("s_cbranch_vccz L_h_ok")
        spin_check("L_h_ok")
        if P["SLEEP"]: e(f"s_sleep {P['SLEEP']}")
        e("s_branch L_gather_h")
        a.lab("L_h_ok")
        e(f"s_mul_i32 s{t1}, s{sW}, 144"); e(f"s_add_u32 s{t1}, s{t1}, {L_VALH - 576}")
        e(f"v_lshlrev_b32 v36, 1, v{vLANE}"); e(f"v_add_u32 v36, s{t1}, v36")
        e("ds_write_b16_d16_hi v36, v32")
        e(f"v_and_b32 v37, 7, v{vLANE}"); e("v_lshlrev_b32 v37, 1, v37"); e(f"v_add_u32 v37, s{t1}, v37")
        e("ds_write_b16_d16_hi v37, v34 offset:128")
        e("v_lshlrev_b32 v27, 1, v27"); e(f"v_add_u32 v27, s{t1}, v27")
        e("s_waitcnt lgkmcnt(0)")
        VPB = 32
        for t in range(9): e(f"ds_read_b32 v{VPB+t}, v27 offset:{4*t}")
        e("s_waitcnt lgkmcnt(0)")
        BB = 24
        def b5(j):
            for k in range(4):
                e(f"v_perm_b32 v{B5+4*(j%4)+k}, v{VPB+(j>>1)}, v{VPB+(j>>1)}, v{SELQ+(j&1)*4+k}")
        b5(0); b5(1); b5(2)
        for j in range(18):
            cc = "0" if j == 0 else vr(24, 4)
            e(f"v_mfma_f32_16x16x32_bf16 {vr(24,4)}, {vr(WT+4*j,4)}, {vr(B5+4*(j%4),4)}, {cc}")
            if j + 3 < 18: b5(j + 3)
        e(f"v_cndmask_b32 v28, v24, v26, {sr(sX1,2)}")
        e(f"v_cndmask_b32 v29, v25, v27, {sr(sX1,2)}")
        e(f"ds_write_b32 v{TV+7}, v28"); e(f"ds_write_b32 v{TV+7}, v29 offset:32")
        e("s_waitcnt lgkmcnt(0)")
        a.lab("L_pt_done")
    uid = [0]
    def tile(b, waits, dma=False, reissue=True, mode="S"):
        uid[0] += 1; u = uid[0]
        if waits: e(f"s_waitcnt vmcnt({NOUT})")
        for j in range(TL):
            e(f"v_mfma_f32_16x16x32_bf16 {vr(DB+4*j,4)}, {vr(kreg(b,j),4)}, {vr(BK,4)}, 0")
        if dma: dma_step()
        if mode == "D":
            e(f"v_readfirstlane_b32 s{t0}, v{vA}"); e(f"v_readfirstlane_b32 s{t1}, v{vA+1}")
            e(f"s_cmp_lg_u32 s{t1}, s{sTAG}"); e("s_cbranch_scc1 L_ctr_retry")
            a.lab("L_ctr_ok")
            lg = PUB.bit_length() - 1
            e(f"s_lshr_b32 s{t1}, s{t0}, {lg}"); e(f"s_and_b32 s{t2}, s{t0}, {PUB-1}")
            e(f"s_lshl_b32 s{t1}, s{t1}, 20"); e(f"s_add_u32 s{t2}, s{t2}, {PRIV}")
            e(f"s_mul_i32 s{t2}, s{t2}, {tile_bytes}"); e(f"s_add_u32 s{sNXT}, s{t1}, s{t2}")
            e(f"s_cmp_ge_u32 s{t0}, {8*PUB}")
            e(f"s_cselect_b32 s{sNXT}, {OOB}, s{sNXT}")
            e(f"s_cbranch_scc1 L_dskipk")
            issue_k(b, sNXT)
            issue_atomic()
            a.lab("L_dskipk")
        elif reissue:
            issue_k(b)
            if mode == "SA": issue_atomic()
        U = [SREG + j for j in range(TL)]
        if TL == 4:
            for j in range(TL):
                e(f"v_mov_b32_dpp v{U[j]}, v{DB+4*j} quad_perm:[0,0,0,0] row_mask:0xf bank_mask:0xf")
            for q in range(1, 4):
                for j in range(TL):
                    e(f"v_add_f32_dpp v{U[j]}, v{DB+4*j+q}, v{U[j]} quad_perm:[{q},{q},{q},{q}] row_mask:0xf bank_mask:0xf")
        else:
            W = [SREG + 4 + j for j in range(TL)]
            for j in range(TL):
                e(f"v_mov_b32_dpp v{U[j]}, v{DB+4*j} quad_perm:[0,0,0,0] row_mask:0xf bank_mask:0xf")
            for j in range(TL):
                e(f"v_mov_b32_dpp v{W[j]}, v{DB+4*j+2} quad_perm:[2,2,2,2] row_mask:0xf bank_mask:0xf")
            for j in range(TL):
                e(f"v_add_f32_dpp v{U[j]}, v{DB+4*j+1}, v{U[j]} quad_perm:[1,1,1,1] row_mask:0xf bank_mask:0xf")
            for j in range(TL):
                e(f"v_add_f32_dpp v{W[j]}, v{DB+4*j+3}, v{W[j]} quad_perm:[3,3,3,3] row_mask:0xf bank_mask:0xf")
            for j in range(TL):
                e(f"v_add_f32 v{U[j]}, v{U[j]}, v{W[j]}")
        for j in range(TL): bf16r(U[j], U[j])
        for j in range(TL): e(f"v_mul_f32 v{U[j]}, s{sSCL}, v{U[j]}")
        for j in range(TL): bf16r(U[j], U[j])
        m2 = vt[0]
        if TL == 1: e(f"v_max_f32 v{m2}, v{vM}, v{U[0]}")
        else:
            e(f"v_max3_f32 v{m2}, v{vM}, v{U[0]}, v{U[1]}")
            j = 2
            while j < TL:
                e(f"v_max3_f32 v{m2}, v{m2}, v{U[j]}, v{U[j+1]}"); j += 2
        cross_rows(m2, vt[1], "v_max_f32")
        e(f"v_mul_f32 v{vt[1]}, s{sL2E}, v{m2}")
        e(f"v_mov_b32 v{vM}, v{m2}")
        e(f"v_sub_f32 v{vt[2]}, v{vML}, v{vt[1]}")
        for j in range(TL): e(f"v_fma_f32 v{U[j]}, v{U[j]}, s{sL2E}, -v{vt[1]}")
        e(f"v_exp_f32 v{vt[2]}, v{vt[2]}")
        for j in range(TL): e(f"v_exp_f32 v{U[j]}, v{U[j]}")
        e(f"v_mov_b32 v{vML}, v{vt[1]}")
        e(f"v_fma_f32 v{vL}, v{vL}, v{vt[2]}, v{U[0]}")
        for v in range(4): e(f"v_mul_f32 v{ACC+v}, v{ACC+v}, v{vt[2]}")
        for j in range(1, TL): e(f"v_add_f32 v{vL}, v{vL}, v{U[j]}")
        for j in range(TL): e(f"v_cvt_pk_bf16_f32 v{U[j]}, v{U[j]}, v{U[j]}")
        for j in range(TL):
            for k in range(4): e(f"v_and_b32 v{DB+4*j+k}, v{U[j]}, v{MASK+k}")
        if mode == "D":
            e(f"s_cmp_ge_u32 s{sNXT}, {OOB}"); e("s_cbranch_scc1 L_dlast")
            e(f"s_waitcnt vmcnt({NOUT + 1})")
            for j in range(TL):
                e(f"v_mfma_f32_16x16x32_bf16 {vr(ACC,4)}, {vr(vreg(b,j),4)}, {vr(DB+4*j,4)}, {vr(ACC,4)}")
            issue_v(b, sNXT)
            e("s_branch L_loopD")
            a.lab("L_dlast")
            e("s_waitcnt vmcnt(0)")
            for j in range(TL):
                e(f"v_mfma_f32_16x16x32_bf16 {vr(ACC,4)}, {vr(vreg(b,j),4)}, {vr(DB+4*j,4)}, {vr(ACC,4)}")
            return
        if waits: e(f"s_waitcnt vmcnt({NOUT + (1 if mode == 'SA' else 0)})")
        for j in range(TL):
            e(f"v_mfma_f32_16x16x32_bf16 {vr(ACC,4)}, {vr(vreg(b,j),4)}, {vr(DB+4*j,4)}, {vr(ACC,4)}")
        if reissue: issue_v(b)
    c("---- peeled first tiles (landed: covered by earlier waits for waves 0-3; wait for the others)")
    e("s_waitcnt vmcnt(1)")
    for b in range(NB): tile(b, False)
    for b in range(NB, NBT): tile(b, False, reissue=False)
    N1, N2 = 6, 11
    assert NB == 1
    c("---- loop A: tiles + DMA of w1 (6 steps) then wo/w2 (11 steps)")
    e(f"s_mov_b32 s{sCNT}, {N1 + N2}")
    a.lab("L_loopA")
    e(f"s_cmp_eq_u32 s{sCNT}, {N2}"); e("s_cbranch_scc0 L_noswitch")
    dma_switch()
    a.lab("L_noswitch")
    tile(0, True, dma=True)
    e(f"s_sub_u32 s{sCNT}, s{sCNT}, 1"); e(f"s_cmp_lg_u32 s{sCNT}, 0"); e("s_cbranch_scc1 L_loopA")
    c("---- hidden slice: 18 MFMAs 16x16x16")
    e(f"v_lshrrev_b32 v24, 4, v{vLANE}"); e("v_mul_u32_u24 v24, 1440, v24")
    e(f"v_and_b32 v25, 15, v{vLANE}"); e("v_min_u32 v25, 8, v25"); e("v_lshl_add_u32 v24, v25, 3, v24")
    e(f"s_mul_i32 s{t0}, s{sW}, 6144"); e(f"s_add_u32 s{t0}, s{t0}, s{sDELTA}")
    if L_W1: e(f"s_add_u32 s{t0}, s{t0}, {L_W1}")
    e(f"v_add_u32 v24, s{t0}, v24")
    for j in range(18): e(f"ds_read_b64 {vr(HA+2*j,2)}, v24 offset:{80*j}")
    def hb(j):
        for k in range(2):
            e(f"v_perm_b32 v{HB+2*(j%4)+k}, v{XP+(j>>1)}, v{XP+(j>>1)}, v{SELH+(j&1)*2+k}")
    hb(0); hb(1); hb(2)
    e("s_waitcnt lgkmcnt(0)")
    for j in range(18):
        cc = "0" if j == 0 else vr(HACC, 4)
        e(f"v_mfma_f32_16x16x16_bf16 {vr(HACC,4)}, {vr(HA+2*j,2)}, {vr(HB+2*(j%4),2)}, {cc}")
        if j + 3 < 18: hb(j + 3)
    e(f"s_lshl_b32 s{t0}, s{sW}, 8"); e(f"s_add_u32 s{t0}, s{t0}, {L_HP}")
    e(f"v_lshlrev_b32 v26, 2, v{vLANE}"); e(f"v_add_u32 v26, s{t0}, v26")
    e(f"v_bfe_u32 v25, v{vLANE}, 2, 2")
    e(f"v_cmp_eq_u32 vcc, 1, v25"); e(f"v_cmp_eq_u32 {sr(t4,2)}, 2, v25"); e(f"v_cmp_eq_u32 {sr(sEX,2)}, 3, v25")
    e(f"v_cndmask_b32 v27, v{HACC}, v{HACC+1}, vcc")
    e(f"v_cndmask_b32 v27, v27, v{HACC+2}, {sr(t4,2)}")
    e(f"v_cndmask_b32 v27, v27, v{HACC+3}, {sr(sEX,2)}")
    e("ds_write_b32 v26, v27")
    e("s_waitcnt lgkmcnt(0)")
    e("s_barrier")
    e(f"s_cmp_eq_u32 s{sW}, 4"); e("s_cbranch_scc0 L_noh")
    c("wave 4: reduce + publish hidden slice")
    e(f"v_lshlrev_b32 v24, 2, v{vLANE}"); e(f"v_add_u32 v24, {L_HP}, v24")
    for w in range(8): e(f"ds_read_b32 v{25+w}, v24 offset:{256*w}")
    e("s_waitcnt lgkmcnt(0)")
    for w in range(1, 8): e(f"v_add_f32 v25, v25, v{25+w}")
    bf16r(25, 25)
    e(f"v_lshlrev_b32 v26, 16, v{vB1}")
    e("v_add_f32 v25, v25, v26"); bf16r(25, 25)
    e("v_max_f32 v25, 0, v25"); e("v_mul_f32 v24, v25, v25"); bf16r(24, 24)
    e(f"v_mov_b32 v25, s{sTAG}")
    e(f"s_mul_i32 s{t0}, s{sPAIR}, 288"); e(f"s_mul_i32 s{t1}, s{sS}, 36"); e(f"s_add_u32 s{t0}, s{t0}, s{t1}")
    e(f"s_lshl_b32 s{t0}, s{t0}, 3"); e(f"s_add_u32 s{t0}, s{t0}, {WS_HG}")
    e(f"v_lshlrev_b32 v26, 3, v{vLANE}")
    e(f"v_cmp_gt_u32 vcc, 36, v{vLANE}")
    e(f"s_and_saveexec_b64 {sr(sEX,2)}, vcc")
    e(f"buffer_store_dwordx2 v[24:25], v26, {sr(rWS,4)}, s{t0} offen sc1")
    e(f"s_mov_b64 exec, {sr(sEX,2)}")
    a.lab("L_noh")
    nA = N1 + N2
    c("---- main loop")
    NSTAT = PRIV // NW
    if P["DYN"]:
        nS = NSTAT - NBT - nA - 2
    else:
        nS = NSTAT - NBT - nA
    assert nS > 0
    e(f"s_mov_b32 s{sCNT}, {nS}")
    e(f"s_lshl_b32 s{sCTR}, s{sPS}, 7"); e(f"s_add_u32 s{sCTR}, s{sCTR}, {WS_CTR}")
    e(f"v_mov_b32 v{vA+2}, 0")
    a.raw(".p2align 6")
    a.lab("L_loop")
    tile(0, True)
    e(f"s_sub_u32 s{sCNT}, s{sCNT}, 1")
    e(f"s_cmp_lg_u32 s{sCNT}, 0")
    e("s_cbranch_scc1 L_loop")
    pretail()
    if P["DYN"]:
        tile(0, True, mode="SA")
        a.raw(".p2align 6")
        a.lab("L_loopD")
        tile(0, True, mode="D")
        e("s_branch L_stream_done")
        a.lab("L_ctr_retry")
        c("counter not initialised yet (tag mismatch): retry the grab")
        e("s_waitcnt vmcnt(0)")
        spin_check("L_ctr_giveup")
        if P["SLEEP"]: e(f"s_sleep {P['SLEEP']}")
        issue_atomic()
        e("s_waitcnt vmcnt(0)")
        e(f"v_readfirstlane_b32 s{t0}, v{vA}"); e(f"v_readfirstlane_b32 s{t1}, v{vA+1}")
        e(f"s_cmp_lg_u32 s{t1}, s{sTAG}"); e("s_cbranch_scc1 L_ctr_retry")
        e("s_branch L_ctr_ok")
        a.lab("L_ctr_giveup")
        e(f"s_mov_b32 s{t0}, {8*PUB}")
        e("s_branch L_ctr_ok")
        a.lab("L_stream_done")
    else:
        pass

    c("---- T1: combine the 8 waves of the workgroup")
    e("s_waitcnt vmcnt(0)")
    stamp(4)
    cross_rows(vL, vt[0], "v_add_f32")
    for v in range(4): e(f"ds_write_b32 v{TV+0}, v{ACC+v} offset:{32*v}")
    e(f"v_mov_b32 v26, v{vM}"); e(f"v_mov_b32 v27, v{vL}")
    e("s_mov_b64 exec, 0x101")
    e(f"ds_write_b64 v{TV+1}, v[26:27]")
    e("s_mov_b64 exec, -1")
    e("s_waitcnt lgkmcnt(0)")
    e("s_barrier")
    e(f"s_cmp_lt_u32 s{sW}, 4"); e("s_cbranch_scc0 L_bpub")
    c("waves 0-3: WG partial for (h = w>>1, t)")
    e(f"s_lshr_b32 s{t0}, s{sW}, 1")
    e(f"s_lshl_b32 s{t1}, s{t0}, 3"); e(f"s_add_u32 s{t1}, s{t1}, {L_MLP}")
    e(f"v_mov_b32 v24, s{t1}")
    for w in range(8): e(f"ds_read_b64 {vr(28+2*w,2)}, v24 offset:{16*w}")
    for w in range(8): e(f"ds_read_b32 v{44+w}, v{TV+2} offset:{1024*w}")
    e(f"s_lshl_b32 s{t1}, s{sPS}, 3"); e(f"s_or_b32 s{t1}, s{t1}, s{sSS}")
    e(f"s_lshl_b32 s{t2}, s{t1}, 11"); e(f"s_add_u32 s{t2}, s{t2}, {WS_OG}")
    e(f"v_mov_b32 v53, s{sTAG}")
    e("s_waitcnt lgkmcnt(8)")
    e("v_max3_f32 v26, v28, v30, v32"); e("v_max3_f32 v26, v26, v34, v36"); e("v_max3_f32 v26, v26, v38, v40"); e("v_max_f32 v26, v26, v42")
    for w in range(8): e(f"v_sub_f32 v{28+2*w}, v{28+2*w}, v26")
    for w in range(8): e(f"v_mul_f32 v{28+2*w}, s{sL2E}, v{28+2*w}")
    for w in range(8): e(f"v_exp_f32 v{28+2*w}, v{28+2*w}")
    e("s_waitcnt lgkmcnt(0)")
    e("v_mul_f32 v52, v28, v44"); e("v_mul_f32 v27, v28, v29")
    for w in range(1, 8):
        e(f"v_fmac_f32 v52, v{28+2*w}, v{44+w}"); e(f"v_fmac_f32 v27, v{28+2*w}, v{29+2*w}")
    e(f"buffer_store_dwordx2 v[52:53], v{TV+3}, {sr(rWS,4)}, s{t2} offen sc1")
    e(f"s_and_b32 s{t2}, s{sW}, 1"); e(f"s_cmp_eq_u32 s{t2}, 0"); e("s_cbranch_scc0 L_ml_done")
    e(f"v_cmp_eq_u32 vcc, 1, v{vLANE}")
    e(f"s_lshl_b32 s{t2}, s{t1}, 5"); e(f"s_lshl_b32 s{t3}, s{t0}, 3"); e(f"s_add_u32 s{t2}, s{t2}, s{t3}"); e(f"s_add_u32 s{t2}, s{t2}, {WS_MLG}")
    e("v_cndmask_b32 v56, v26, v27, vcc"); e(f"v_mov_b32 v57, s{sTAG}")
    e(f"v_lshlrev_b32 v58, 4, v{vLANE}")
    e("s_mov_b64 exec, 3")
    e(f"buffer_store_dwordx2 v[56:57], v58, {sr(rWS,4)}, s{t2} offen sc1")
    e("s_mov_b64 exec, -1")
    a.lab("L_ml_done")
    stamp(5, "tail")
    c("T4: poll ML granules of the group for head h")
    e(f"s_lshl_b32 s{t2}, s{sPAIR}, 8"); e(f"s_lshl_b32 s{t3}, s{t0}, 3"); e(f"s_add_u32 s{t2}, s{t2}, s{t3}"); e(f"s_add_u32 s{t2}, s{t2}, {WS_MLG}")
    e(f"s_lshl_b32 s{t3}, s{sPAIR}, 14"); e(f"s_add_u32 s{t3}, s{t3}, {WS_OG}")
    a.lab("L_poll_ml")
    e(f"buffer_load_dwordx2 v[26:27], v{TV+4}, {sr(rWS,4)}, s{t2} offen sc1")
    e("s_waitcnt vmcnt(0)")
    e(f"v_cmp_ne_u32 vcc, s{sTAG}, v27")
    e("s_cbranch_vccz L_ml_ok")
    spin_check("L_ml_ok")
    if P["SLEEP"]: e(f"s_sleep {P['SLEEP']}")
    e("s_branch L_poll_ml")
    a.lab("L_ml_ok")
    stamp(6, "tail")
    a.lab("L_gather_o")
    e(f"s_mov_b32 s{t2}, s{t3}")
    for s_ in range(8):
        e(f"buffer_load_dwordx2 {vr(28+2*s_,2)}, v{TV+3}, {sr(rWS,4)}, s{t2} offen sc1")
        if s_ < 7: e(f"s_add_u32 s{t2}, s{t2}, 2048")
    e("v_mov_b32 v44, v26")
    e("v_max_f32_dpp v44, v44, v44 quad_perm:[1,0,3,2] row_mask:0xf bank_mask:0xf")
    e("v_max_f32_dpp v44, v44, v44 quad_perm:[2,3,0,1] row_mask:0xf bank_mask:0xf")
    e("v_max_f32_dpp v44, v44, v44 row_half_mirror row_mask:0xf bank_mask:0xf")
    e("v_mov_b32_dpp v45, v26 row_ror:8 row_mask:0xf bank_mask:0xf")
    e("v_sub_f32 v46, v26, v44"); e(f"v_mul_f32 v46, s{sL2E}, v46"); e("v_exp_f32 v46, v46")
    e("v_mul_f32 v47, v46, v45")
    e("v_add_f32_dpp v47, v47, v47 quad_perm:[1,0,3,2] row_mask:0xf bank_mask:0xf")
    e("v_add_f32_dpp v47, v47, v47 quad_perm:[2,3,0,1] row_mask:0xf bank_mask:0xf")
    e("v_add_f32_dpp v47, v47, v47 row_half_mirror row_mask:0xf bank_mask:0xf")
    e("v_rcp_f32 v47, v47")
    e("v_mul_f32 v46, v46, v47")
    for s_ in range(8): e(f"v_readlane_b32 s{sWT+s_}, v46, {s_}")
    e("s_waitcnt vmcnt(0)")
    e(f"v_xor_b32 v48, s{sTAG}, v29")
    for s_ in range(1, 8):
        e(f"v_xor_b32 v49, s{sTAG}, v{29+2*s_}"); e("v_or_b32 v48, v48, v49")
    e("v_cmp_ne_u32 vcc, 0, v48")
    e("s_cbranch_vccz L_o_ok")
    spin_check("L_o_ok")
    e("s_branch L_gather_o")
    a.lab("L_o_ok")
    e(f"v_mul_f32 v48, s{sWT}, v28")
    for s_ in range(1, 8): e(f"v_fmac_f32 v48, s{sWT+s_}, v{28+2*s_}")
    e("v_cvt_pk_bf16_f32 v48, v48, v48")
    e(f"ds_write_b16 v{TV+5}, v48")
    if DEBUG:
        e(f"v_lshlrev_b32 v50, 16, v48")
        e(f"s_lshl_b32 s{t0}, s2, 10"); e(f"s_add_u32 s{t0}, s{t0}, {WS_DBG + 0x40000}")
        e("v_lshlrev_b32 v51, 2, v0")
        e(f"buffer_store_dword v50, v51, {sr(rWS,4)}, s{t0} offen")
    e("s_waitcnt lgkmcnt(0)")
    e("s_barrier")
    stamp(7, "tail")
    c("---- T5: attention output projection slice (64 rows per wave)")
    VP = 32
    e(f"ds_read_b128 {vr(VP,4)}, v{TV+6}"); e(f"ds_read_b128 {vr(VP+4,4)}, v{TV+6} offset:16")
    e(f"s_lshl_b32 s{t2}, s{sB}, 3"); e(f"s_or_b32 s{t2}, s{t2}, s{sS}"); e(f"s_lshl_b32 s{t2}, s{t2}, 4")
    e(f"s_mul_i32 s{t3}, s{t2}, 1152"); e(f"s_add_u32 s{t3}, s{t3}, {WS_YG}")
    e(f"s_mul_i32 s{t2}, s{sHKV}, 1152"); e(f"s_add_u32 s{t2}, s{t2}, s{t3}")
    def b5(j):
        for k in range(4):
            e(f"v_perm_b32 v{B5+4*(j%4)+k}, v{VP+(j>>1)}, v{VP+(j>>1)}, v{SELQ+(j&1)*4+k}")
    e("s_waitcnt lgkmcnt(0)")
    b5(0); b5(1); b5(2)
    for j in range(16):
        y = 20 if j % 2 == 0 else 24
        cc = "0" if j < 2 else vr(y, 4)
        e(f"v_mfma_f32_16x16x32_bf16 {vr(y,4)}, {vr(WT+4*j,4)}, {vr(B5+4*(j%4),4)}, {cc}")
        if j + 3 < 16: b5(j + 3)
    for v in range(4): e(f"v_add_f32 v{20+v}, v{20+v}, v{24+v}")
    e(f"v_cndmask_b32 v28, v20, v22, {sr(sX1,2)}")
    e(f"v_cndmask_b32 v29, v21, v23, {sr(sX1,2)}")
    e(f"ds_write_b32 v{TV+7}, v28"); e(f"ds_write_b32 v{TV+7}, v29 offset:32")
    e("s_waitcnt lgkmcnt(0)")
    e("s_barrier")
    e(f"s_cmp_lt_u32 s{sW}, 3"); e("s_cbranch_scc0 L_end")
    e(f"s_cmp_lt_u32 s{sW}, 2"); e("s_cbranch_scc0 L_ypub_done")
    c("threads t<72: sum the 4 partials, publish kind A")
    for w in range(4): e(f"ds_read_b32 v{28+w}, v{TV+8} offset:{512*w}")
    e("v_cmp_gt_u32 vcc, 72, v0")
    e("s_waitcnt lgkmcnt(0)")
    e("v_add_f32 v28, v28, v29"); e("v_add_f32 v30, v30, v31"); e("v_add_f32 v28, v28, v30")
    e(f"v_mov_b32 v29, s{sTAG}")
    e(f"s_and_saveexec_b64 {sr(sEX,2)}, vcc")
    e(f"buffer_store_dwordx2 v[28:29], v{TV+9}, {sr(rWS,4)}, s{t2} offen sc1")
    e(f"s_mov_b64 exec, {sr(sEX,2)}")
    a.lab("L_ypub_done")
    stamp(8, "tail")
    if P["PROF"] == 1: e("s_mov_b32 s14, 0")
    e(f"s_cmp_eq_u32 s{sHKV}, s{sS}"); e("s_cbranch_scc0 L_end")
    e("s_branch L_final")
    a.lab("L_bpub")
    c("waves 4,5: sum the 4 MLP partials, publish kind B; waves 4-7 end")
    e(f"s_cmp_lt_u32 s{sW}, 6"); e("s_cbranch_scc0 L_end")
    e(f"v_subrev_u32 v24, 256, v0"); e("v_min_u32 v25, 71, v24")
    e(f"v_lshlrev_b32 v26, 2, v25"); e(f"v_add_u32 v26, {L_YP + 2048}, v26")
    for w in range(4): e(f"ds_read_b32 v{28+w}, v26 offset:{512*w}")
    e(f"s_lshl_b32 s{t2}, s{sB}, 3"); e(f"s_or_b32 s{t2}, s{t2}, s{sS}"); e(f"s_lshl_b32 s{t2}, s{t2}, 4")
    e(f"s_add_u32 s{t2}, s{t2}, s{sHKV}"); e(f"s_mul_i32 s{t2}, s{t2}, 1152"); e(f"s_add_u32 s{t2}, s{t2}, {WS_YG + 8}")
    e("v_lshlrev_b32 v25, 4, v25")
    e("v_cmp_gt_u32 vcc, 72, v24")
    e("s_waitcnt lgkmcnt(0)")
    e("v_add_f32 v28, v28, v29"); e("v_add_f32 v30, v30, v31"); e("v_add_f32 v28, v28, v30")
    e(f"v_mov_b32 v29, s{sTAG}")
    e(f"s_and_saveexec_b64 {sr(sEX,2)}, vcc")
    e(f"buffer_store_dwordx2 v[28:29], v25, {sr(rWS,4)}, s{t2} offen sc1")
    e(f"s_mov_b64 exec, {sr(sEX,2)}")
    if P["PROF"] == 1: e("s_mov_b32 s14, 0")
    e("s_branch L_end")
    a.lab("L_final")
    c("---- T6: final reducer for (b, s)")
    G6 = 48
    a.lab("L_gather_y")
    e(f"s_mov_b32 s{t2}, s{t3}")
    for k in range(16):
        e(f"buffer_load_dwordx2 {vr(G6+2*k,2)}, v{TV+10}, {sr(rWS,4)}, s{t2} offen sc1")
        if k < 15: e(f"s_add_u32 s{t2}, s{t2}, 1152")
    e("s_waitcnt vmcnt(0)")
    e(f"v_xor_b32 v32, s{sTAG}, v{G6+1}")
    for k in range(1, 16):
        e(f"v_xor_b32 v33, s{sTAG}, v{G6+2*k+1}"); e("v_or_b32 v32, v32, v33")
    e("v_cmp_ne_u32 vcc, 0, v32")
    e("s_cbranch_vccz L_y_ok")
    spin_check("L_y_ok")
    e("s_branch L_gather_y")
    a.lab("L_y_ok")
    stamp(9, "tail")
    idx = [G6 + 2*k for k in range(16)]
    while len(idx) > 1:
        nxt = []
        for i in range(0, len(idx), 2):
            e(f"v_add_f32 v{idx[i]}, v{idx[i]}, v{idx[i+1]}"); nxt.append(idx[i])
        idx = nxt
    bf16r(32, G6)
    e("v_mov_b32_dpp v33, v32 quad_perm:[1,0,3,2] row_mask:0xf bank_mask:0xf")
    e(f"v_lshlrev_b32 v41, 16, v{TV+11}"); e(f"v_lshlrev_b32 v42, 16, v{TV+12}")
    e(f"s_mul_i32 s{t0}, s{sB}, 1152"); e(f"s_mul_i32 s{t1}, s{sS}, 144"); e(f"s_add_u32 s{t0}, s{t0}, s{t1}")
    e("v_add_f32 v32, v41, v32"); bf16r(32, 32)
    e("v_add_f32 v33, v33, v42"); bf16r(33, 33)
    e("v_add_f32 v32, v32, v33"); e("v_cvt_pk_bf16_f32 v32, v32, v32")
    e("v_and_b32 v33, 1, v0"); e("v_cmp_eq_u32 vcc, 0, v33")
    e(f"s_mov_b64 {sr(t4,2)}, vcc")
    e("v_cmp_gt_u32 vcc, 144, v0")
    e(f"s_and_b64 vcc, vcc, {sr(t4,2)}")
    e(f"s_and_saveexec_b64 {sr(sEX,2)}, vcc")
    e(f"buffer_store_short v32, v{TV+13}, {sr(rA,4)}, s{t0} offen")
    e(f"s_mov_b64 exec, {sr(sEX,2)}")
    e(f"s_or_b32 s{t1}, s{sS}, s{sW}"); e(f"s_cmp_eq_u32 s{t1}, 0"); e("s_cbranch_scc0 L_end")
    e(f"s_lshl_b32 s{t1}, s{sB}, 8")
    e(f"v_mov_b32 v33, s{sTAG}"); e("v_mov_b32 v34, 0")
    e("s_mov_b64 exec, 1")
    e(f"buffer_store_dword v33, v34, {sr(rWS,4)}, s{t1} offen sc1")
    a.lab("L_end")
    if P["PROF"]:
        stamp(10)
        e("s_mov_b64 exec, 1")
        e(f"s_lshl_b32 s{t0}, s2, 3"); e(f"s_add_u32 s{t0}, s{t0}, s{sW}")
        e(f"s_lshl_b32 s{t0}, s{t0}, 6"); e(f"s_add_u32 s{t0}, s{t0}, {WS_PROF}")
        e("v_mov_b32 v1, 0")
        for i in range(11):
            e(f"v_mov_b32 v2, s{STAMPS[i]}")
            e(f"buffer_store_dword v2, v1, {sr(rWS,4)}, s{t0} offen offset:{4*i}")
            e("s_nop 0")
    a.lab("L_exit")
    e("s_endpgm")
    body, n = hazard.fix(a.L)
    nv = 256
    tail = ['.section .rodata,"a"', ".p2align 6", f".amdhsa_kernel {NAME}_kernel",
            f"  .amdhsa_next_free_vgpr {(nv+7)//8*8}", "  .amdhsa_next_free_sgpr 102", f"  .amdhsa_accum_offset {(nv+7)//8*8}",
            "  .amdhsa_group_segment_fixed_size 0", "  .amdhsa_kernarg_size 104", "  .amdhsa_user_sgpr_count 2",
            "  .amdhsa_user_sgpr_kernarg_segment_ptr 1", "  .amdhsa_system_sgpr_workgroup_id_x 1",
            "  .amdhsa_float_denorm_mode_32 3", ".end_amdhsa_kernel"]
    return "\n".join(hdr + body + tail) + "\n"

if __name__ == "__main__":
    out = sys.argv[1]
    kw = {}
    for arg in sys.argv[2:]:
        k, v = arg.split("=")
        kw[k] = int(v) if v.lstrip("-").isdigit() else v
    open(out, "w").write(gen(**kw))
```

```python
import sys
sys.path.insert(0, "gen")
import hazard
NAME = "parallel_sum__gqa_block_cached__dense_activation_squared_relu__decode"

DEFAULTS = dict(TL=2, NB=1, PRE=0, KVPOL="nt", WPOL="nt", DEBUG=0, SLEEP=1, SPIN=20000, PROF=0, CPF=0, PRIO=0, BAR0=1, PUBFRAC=8, DYN=1, SMAP=1, EARLY=0, BONUS=4, WPOL2="")

WS_EPOCH = 0
WS_HG    = 0x1000
WS_MLG   = 0x14000
WS_OG    = 0x20000
WS_YG    = 0xA0000
WS_QG    = 0xF0000
WS_CTR   = 0x18000
WS_DBG   = 0x100000
WS_PROF  = 0x1C0000
WS_SIZE  = 0x200000

L_W1  = 0
L_WW  = 49152
L_OP  = 139264
L_HP  = 147456
L_QB  = 149504
L_MLP = 150016
L_VAL = 150144
L_VALH = L_VAL + 512
L_YP  = 151296
L_XN  = L_YP + 4096
L_END = L_XN + 1280

LOG2E = 0x3FB8AA3B
SCALE = 0x3DB504F3

class A:
    def __init__(s): s.L = []
    def e(s, x): s.L.append("  " + x)
    def lab(s, x): s.L.append(x + ":")
    def c(s, x): s.L.append("  ; " + x)
    def raw(s, x): s.L.append(x)
def vr(a, n): return f"v[{a}:{a+n-1}]"
def sr(a, n): return f"s[{a}:{a+n-1}]"

def gen(**kw):
    P = dict(DEFAULTS); P.update(kw)
    TL, NB, KVPOL, WPOL, DEBUG = P["TL"], P["NB"], P["KVPOL"], P["WPOL"], P["DEBUG"]
    NW = 8
    tile_bytes = TL * 1024
    ntiles = (1 << 20) // tile_bytes // NW
    assert ntiles % NB == 0 and TL in (1, 2, 4)
    a = A(); e = a.e; c = a.c
    hdr = []
    hdr.append(f"; params: {P}")
    hdr.append(f"; @launch grid=(256,1,1) block=(512,1,1) lds={(L_END + 255)//256*256}")
    a.raw('.amdgcn_target "amdgcn-amd-amdhsa--gfx950"')
    a.raw(".text"); a.raw(f".globl {NAME}_kernel"); a.raw(".p2align 8"); a.raw(f".type {NAME}_kernel,@function")
    a.lab(f"{NAME}_kernel")

    pX, pK, pV, pWQ = 8, 10, 12, 14
    pWO, pOUT = 16, 18
    pW1, pB1, pW2, pB2 = 20, 22, 24, 26
    pWS = 28
    sB, sHKV, sS, sPAIR, sW, sTAG = 30, 31, 32, 33, 34, 35
    rK, rV, rWS, rA, rB, rC = 36, 40, 44, 48, 52, 56
    sTOFF, sCNT = 60, 61
    t0, t1, t2, t3 = 62, 63, 64, 65
    sEQ = [66, 68, 70, 72]
    sX1 = 74
    sPS, sSS, sCUR, sNXT, sCTR = 76, 77, 78, 79, 80
    sWT = 82
    sSPIN = 90
    sL2E, sSCL = 91, 92
    sEX = 94
    t4, t5 = 96, 97
    sDOFF, sDLDS, sDM, sDP, sDELTA = 93, 100, 101, 5 if False else 7, 6
    vDQ = 46
    vLANE, vKOFF, vVOFF = 1, 2, 3
    BK = 4; MASK = 8
    vM, vL, vML = 12, 13, 14
    vt = [15, 16, 17, 18, 19]
    ACC = 20
    DB = 24
    SREG = 40
    KV0 = 48
    def kreg(b, j): return (KV0 + b * (8 * TL) if b < NB else 164 + (b - NB) * 8 * TL) + j * 4
    def vreg(b, j): return kreg(b, 0) + 4 * TL + j * 4
    BONUS = P["BONUS"]
    assert 164 + BONUS * 8 * TL <= 256
    PRE = P["PRE"]
    NBT = NB + PRE
    PR0 = KV0 + NBT * 8 * TL
    assert PR0 + 100 <= 164, 'prologue scratch area would overlap the v164+ region'
    WQT = PR0
    XP = PR0 + 20
    SELQ = PR0 + 30
    SELX = PR0 + 38
    SELH = PR0 + 42
    HA = PR0 + 46
    HB = PR0 + 82
    NV = PR0 + 100
    vB1, vMISC = PR0 + 92, 45
    D1, D2, HACC = 24, 28, 32
    BQ = [4, 8]

    def mk_srd(r, ptr, off_s=None, size=None, size_s=None):
        if off_s is not None:
            e(f"s_add_u32 s{r}, s{ptr}, s{off_s}"); e(f"s_addc_u32 s{r+1}, s{ptr+1}, 0")
            e(f"s_and_b32 s{r+1}, s{r+1}, 0xffff")
        else:
            e(f"s_mov_b32 s{r}, s{ptr}"); e(f"s_and_b32 s{r+1}, s{ptr+1}, 0xffff")
        if size_s is not None: e(f"s_mov_b32 s{r+2}, s{size_s}")
        else: e(f"s_mov_b32 s{r+2}, {size}")
        e(f"s_mov_b32 s{r+3}, 0x20000")
    def bf16r(d, s_): e(f"v_cvt_pk_bf16_f32 v{d}, 0, v{s_}")
    def cross_rows(x, y, op):
        e(f"v_mov_b32 v{y}, v{x}")
        e(f"v_permlane16_swap_b32 v{x}, v{y}"); e("s_nop 0")
        e(f"{op} v{x}, v{x}, v{y}")
        e(f"v_mov_b32 v{y}, v{x}")
        e(f"v_permlane32_swap_b32 v{x}, v{y}"); e("s_nop 0")
        e(f"{op} v{x}, v{x}, v{y}")
    def wave_reduce(x, y, op):
        for pat in ["quad_perm:[1,0,3,2]", "quad_perm:[2,3,0,1]", "row_half_mirror", "row_mirror"]:
            e(f"{op}_dpp v{x}, v{x}, v{x} {pat} row_mask:0xf bank_mask:0xf")
        cross_rows(x, y, op)
    STAMPS = [3, 0, 1, 98, 99, 10, 11, 12, 13, 14, 15]
    def stamp(i, mode="all"):
        if not P["PROF"]: return
        if mode == "pro" and P["PROF"] != 2: return
        if mode == "tail" and P["PROF"] != 1: return
        e("s_memrealtime s[4:5]"); e("s_waitcnt lgkmcnt(0)"); e(f"s_mov_b32 s{STAMPS[i]}, s4")
    def spin_check(okl):
        e(f"s_sub_u32 s{sSPIN}, s{sSPIN}, 1"); e(f"s_cmp_eq_u32 s{sSPIN}, 0"); e(f"s_cbranch_scc1 {okl}")

    c("---- phase 0: ids, pointers")
    e("s_cmp_ge_u32 s2, 256")
    e("s_cbranch_scc1 L_exit")
    e(f"s_load_dwordx8 {sr(8,8)}, s[0:1], 0")
    e(f"s_load_dwordx2 {sr(pWS,2)}, s[0:1], 96")
    e(f"s_load_dwordx8 {sr(20,8)}, s[0:1], 48")
    e(f"s_load_dwordx2 {sr(pWO,2)}, s[0:1], 32")
    e(f"s_load_dwordx2 {sr(pOUT,2)}, s[0:1], 80")
    if P["CPF"] & 1:
        c("pull the kernel's own code into L2 (read-only, speed only)")
        e("s_getpc_b64 s[4:5]")
        a.lab("L_pc")
        e("v_lshlrev_b32 v46, 7, v0")
        e("v_cmp_gt_u32 vcc, L_exit-L_pc, v46")
        e(f"s_and_saveexec_b64 {sr(sEX,2)}, vcc")
        e("s_cbranch_execz L_nocpf")
        e("global_load_dword v47, v46, s[4:5] nt")
        a.lab("L_nocpf")
        e(f"s_mov_b64 exec, {sr(sEX,2)}")
    stamp(0)
    e(f"s_and_b32 s{t0}, s2, 7")
    e(f"s_lshr_b32 s{t1}, s2, 3")
    e(f"s_and_b32 s{sS}, s{t1}, 7")
    e(f"s_bfe_u32 s{t2}, s{t1}, 0x10003")
    e(f"s_lshr_b32 s{sB}, s{t1}, 4")
    e(f"s_lshl_b32 s{t2}, s{t2}, 3")
    e(f"s_or_b32 s{sHKV}, s{t0}, s{t2}")
    e(f"s_lshl_b32 s{sPAIR}, s{sB}, 4")
    e(f"s_or_b32 s{sPAIR}, s{sPAIR}, s{sHKV}")
    if P["SMAP"]:
        e(f"s_lshr_b32 s{sPS}, s2, 3"); e(f"s_and_b32 s{sSS}, s2, 7")
    else:
        e(f"s_mov_b32 s{sPS}, s{sPAIR}"); e(f"s_mov_b32 s{sSS}, s{sS}")
    e(f"v_and_b32 v{vLANE}, 63, v0")
    e(f"v_lshrrev_b32 v{vt[0]}, 6, v0")
    e(f"v_mul_u32_u24 v5, 24, v{vLANE}")
    e(f"v_readfirstlane_b32 s{sW}, v{vt[0]}")
    vG, vR = vt[1], vt[2]
    e(f"v_lshrrev_b32 v{vG}, 4, v{vLANE}")
    e(f"v_and_b32 v{vR}, 15, v{vLANE}")
    e(f"v_lshrrev_b32 v{vt[3]}, 2, v{vR}")
    e(f"v_mul_u32_u24 v4, 18, v{vG}"); e(f"v_add_u32 v4, v4, v{vt[3]}"); e("v_lshlrev_b32 v4, 13, v4")
    e(f"v_and_b32 v{vt[4]}, 3, v{vR}")
    e(f"v_lshl_add_u32 v4, v{vt[4]}, 4, v4")
    e(f"s_mul_i32 s{t0}, s{sB}, 1152")
    e(f"s_lshl_b32 s{t3}, s{sB}, 8")
    e(f"s_lshl_b32 s{t1}, s{sHKV}, 9"); e(f"s_lshl_b32 s{t2}, s{sS}, 6"); e(f"s_add_u32 s{t1}, s{t1}, s{t2}")
    e(f"s_sub_u32 s{t4}, {576*8192}, s{t1}")
    e(f"s_mul_i32 s{t2}, s{sW}, {72*8192}")
    if P["PRIO"]:
        e(f"s_cmp_ge_u32 s{sW}, 4"); e("s_cbranch_scc0 L_noprio"); e("s_setprio 1"); a.lab("L_noprio")
    e("s_waitcnt lgkmcnt(0)")
    XS = 24
    mk_srd(rA, pX, off_s=t0, size=1152)
    e(f"s_cmp_eq_u32 s{sW}, 0"); e("s_cbranch_scc0 L_nox")
    e(f"buffer_load_dwordx4 {vr(XS,4)}, v5, {sr(rA,4)}, 0 offen nt")
    e(f"buffer_load_dwordx2 {vr(XS+4,2)}, v5, {sr(rA,4)}, 0 offen offset:16 nt")
    a.lab("L_nox")
    mk_srd(rB, pWQ, off_s=t1, size_s=t4)
    for t in range(5):
        e(f"buffer_load_dwordx4 {vr(WQT+4*t,4)}, v4, {sr(rB,4)}, s{t2} offen {WPOL}")
        if t < 4: e(f"s_add_u32 s{t2}, s{t2}, {4*8192}")
    e(f"s_load_dword s{sTAG}, {sr(pWS,2)}, s{t3}")
    stamp(1, "pro")
    c("---- lane constants / masks / selectors")
    e(f"s_mov_b32 s{sL2E}, {LOG2E:#x}")
    e(f"s_mov_b32 s{sSCL}, {SCALE:#x}")
    e(f"v_lshlrev_b32 v{vt[3]}, 8, v{vt[3]}")
    e(f"v_lshl_add_u32 v{vt[3]}, v{vG}, 6, v{vt[3]}")
    e(f"v_lshl_add_u32 v{vKOFF}, v{vt[4]}, 4, v{vt[3]}")
    e(f"v_lshlrev_b32 v{vVOFF}, 4, v{vLANE}")
    e(f"v_mul_u32_u24 v{vMISC}, 36, v{vG}")
    e(f"v_and_b32 v{vt[0]}, 7, v{vLANE}")
    e(f"v_lshrrev_b32 v{vt[1]}, 1, v{vt[0]}")
    for k in range(4): e(f"v_cmp_eq_u32 {sr(sEQ[k],2)}, {k}, v{vt[1]}")
    e(f"v_bfe_u32 v{vt[1]}, v{vLANE}, 3, 1")
    e(f"v_cmp_eq_u32 {sr(sX1,2)}, 1, v{vt[1]}")
    def make_selq(SEL, ta, tb, tc):
        e(f"v_and_b32 v{ta}, 1, v{vLANE}")
        e(f"v_cmp_eq_u32 vcc, 1, v{ta}")
        e(f"v_mov_b32 v{ta}, 0x0c0c0100"); e(f"v_mov_b32 v{tb}, 0x01000c0c")
        e(f"v_cndmask_b32 v{ta}, v{ta}, v{tb}, vcc")
        e(f"v_mov_b32 v{tb}, 0x0c0c0302"); e(f"v_mov_b32 v{tc}, 0x03020c0c")
        e(f"v_cndmask_b32 v{tb}, v{tb}, v{tc}, vcc")
        e(f"v_mov_b32 v{tc}, 0x0c0c0c0c")
        for k in range(4):
            e(f"v_cndmask_b32 v{SEL+k}, v{tc}, v{ta}, {sr(sEQ[k],2)}")
            e(f"v_cndmask_b32 v{SEL+4+k}, v{tc}, v{tb}, {sr(sEQ[k],2)}")
    make_selq(SELQ, 6, 7, 8)
    for k in range(4):
        e(f"v_cndmask_b32 v{SELX+k}, v{SELQ+k}, v{SELQ+4+k}, {sr(sX1,2)}")
    e(f"v_bfe_u32 v9, v{vLANE}, 1, 1")
    e("v_cmp_eq_u32 vcc, 1, v9")
    e(f"v_cndmask_b32 v{SELH+0}, v6, v8, vcc"); e(f"v_cndmask_b32 v{SELH+1}, v8, v6, vcc")
    e(f"v_cndmask_b32 v{SELH+2}, v7, v8, vcc"); e(f"v_cndmask_b32 v{SELH+3}, v8, v7, vcc")
    c("---- K/V tile 0 prefetch")
    e(f"s_lshl_b32 s{t0}, s{sPS}, 23")
    mk_srd(rK, pK, off_s=t0, size=1 << 23)
    mk_srd(rV, pV, off_s=t0, size=1 << 23)
    e(f"s_mul_i32 s{sTOFF}, s{sW}, {tile_bytes}"); e(f"s_lshl_b32 s{t0}, s{sSS}, 20"); e(f"s_add_u32 s{sTOFF}, s{sTOFF}, s{t0}")
    if BONUS: e(f"s_add_u32 s{sTOFF}, s{sTOFF}, {4*BONUS*tile_bytes}")
    def issue_k(b, so=None):
        for j in range(TL):
            e(f"buffer_load_dwordx4 {vr(kreg(b,j),4)}, v{vKOFF}, {sr(rK,4)}, s{so or sTOFF} offen offset:{j*1024} {KVPOL}")
    def issue_v(b, so=None):
        for j in range(TL):
            e(f"buffer_load_dwordx4 {vr(vreg(b,j),4)}, v{vVOFF}, {sr(rV,4)}, s{so or sTOFF} offen offset:{j*1024} {KVPOL}")
        if so is None: e(f"s_add_u32 s{sTOFF}, s{sTOFF}, {tile_bytes*NW}")
    e("s_barrier")
    def issue_kv_all():
        for b in range(NB):
            issue_k(b); issue_v(b)
    def issue_kv_pre():
        for b in range(NB, NBT):
            issue_k(b); issue_v(b)
    nKV0 = NB * 2 * TL
    e(f"s_cmp_eq_u32 s{sW}, 0"); e("s_cbranch_scc1 L_ln")
    issue_kv_all()
    stamp(2, "pro")
    e("s_branch L_ln_done")
    a.lab("L_ln")
    c("---- LayerNorm by wave 0 (lanes < 48 hold 12 elements each)")
    e("s_waitcnt vmcnt(5)")
    stamp(5, "pro")
    XF = 30
    for i in range(6):
        e(f"v_lshlrev_b32 v{XF+2*i}, 16, v{XS+i}")
        e(f"v_and_b32 v{XF+2*i+1}, 0xffff0000, v{XS+i}")
    e(f"v_pk_add_f32 v[12:13], {vr(XF,2)}, {vr(XF+2,2)}")
    e(f"v_pk_add_f32 v[14:15], {vr(XF+4,2)}, {vr(XF+6,2)}")
    e(f"v_pk_add_f32 v[16:17], {vr(XF+8,2)}, {vr(XF+10,2)}")
    e("v_pk_add_f32 v[12:13], v[12:13], v[14:15]")
    e("v_pk_add_f32 v[12:13], v[12:13], v[16:17]")
    e("v_add_f32 v14, v12, v13")
    wave_reduce(14, 15, "v_add_f32")
    e(f"v_mul_f32 v14, {0xBAE38E39:#x}, v14")
    e("v_mov_b32 v15, v14")
    e(f"v_pk_add_f32 v[12:13], {vr(XF,2)}, v[14:15]")
    e("v_pk_mul_f32 v[16:17], v[12:13], v[12:13]")
    for i in range(1, 6):
        e(f"v_pk_add_f32 v[12:13], {vr(XF+2*i,2)}, v[14:15]")
        e("v_pk_fma_f32 v[16:17], v[12:13], v[12:13], v[16:17]")
    e("v_add_f32 v16, v16, v17")
    e(f"v_cmp_gt_u32 vcc, 48, v{vLANE}")
    e("v_cndmask_b32 v16, 0, v16, vcc")
    wave_reduce(16, 17, "v_add_f32")
    e(f"v_mul_f32 v16, {0x3AE38E39:#x}, v16")
    bf16r(16, 16)
    e(f"v_add_f32 v16, {0x3727C5AC:#x}, v16")
    bf16r(16, 16)
    e("v_sqrt_f32 v16, v16")
    bf16r(16, 16)
    e("v_rcp_f32 v16, v16")
    bf16r(14, 14)
    e("v_mov_b32 v15, v14")
    e("v_mov_b32 v17, v16")
    for i in range(6):
        e(f"v_pk_add_f32 {vr(XF+2*i,2)}, {vr(XF+2*i,2)}, v[14:15]")
    for i in range(6):
        e(f"v_cvt_pk_bf16_f32 v{XS+i}, v{XF+2*i}, v{XF+2*i+1}")
    for i in range(6):
        e(f"v_lshlrev_b32 v{XF+2*i}, 16, v{XS+i}")
        e(f"v_and_b32 v{XF+2*i+1}, 0xffff0000, v{XS+i}")
    for i in range(6):
        e(f"v_pk_mul_f32 {vr(XF+2*i,2)}, {vr(XF+2*i,2)}, v[16:17]")
    for i in range(6):
        e(f"v_cvt_pk_bf16_f32 v{XS+i}, v{XF+2*i}, v{XF+2*i+1}")
    e(f"v_add_u32 v5, {L_XN}, v5")
    e("s_mov_b32 exec_hi, 0xffff")
    for i in range(3): e(f"ds_write_b64 v5, {vr(XS+2*i,2)} offset:{8*i}")
    e("s_mov_b32 exec_hi, -1")
    issue_kv_all()
    e("s_waitcnt lgkmcnt(0)")
    a.lab("L_ln_done")
    e(f"s_mul_i32 s{t0}, s{sW}, 144"); e(f"s_add_u32 s{t0}, s{t0}, {L_XN}")
    e(f"v_add_u32 v{vMISC}, s{t0}, v{vMISC}")
    e("s_barrier")
    for i in range(4): e(f"ds_read2_b32 {vr(XP+2*i,2)}, v{vMISC} offset0:{2*i} offset1:{2*i+1}")
    e(f"ds_read_b32 v{XP+8}, v{vMISC} offset:32")
    e("s_waitcnt lgkmcnt(0)")
    stamp(6, "pro")
    c("---- q slice: 32 columns, 9 MFMAs")
    def bq(setr, pair):
        for k in range(4): e(f"v_perm_b32 v{setr+k}, v{XP+pair}, v{XP+pair}, v{SELX+k}")
    bq(BQ[0], 0); bq(BQ[1], 1)
    e(f"s_waitcnt vmcnt({nKV0})")
    for t in range(5):
        cc = "0" if t == 0 else vr(D1, 4)
        e(f"v_mfma_f32_16x16x32_bf16 {vr(D1,4)}, {vr(WQT+4*t,4)}, {vr(BQ[0],4)}, {cc}")
        if t < 4:
            cc = "0" if t == 0 else vr(D2, 4)
            e(f"v_mfma_f32_16x16x32_bf16 {vr(D2,4)}, {vr(WQT+4*t,4)}, {vr(BQ[1],4)}, {cc}")
            bq(BQ[0], 2*t + 2)
            if t < 3: bq(BQ[1], 2*t + 3)
    stamp(7, "pro")
    e(f"v_lshrrev_b32 v4, 4, v{vLANE}"); e("v_lshlrev_b32 v4, 7, v4")
    e(f"v_and_b32 v5, 7, v{vLANE}"); e("v_lshl_add_u32 v4, v5, 2, v4")
    e(f"s_lshl_b32 s{t0}, s{sW}, 9"); e(f"s_add_u32 s{t0}, s{t0}, {L_OP}")
    e(f"v_add_u32 v4, s{t0}, v4")
    e(f"s_mov_b32 s{t4}, 0"); e(f"s_mov_b32 s{t5}, -1")
    for v in range(4):
        e(f"v_cndmask_b32 v{5+v}, v{D1+v}, v{D2+v}, {sr(t4,2)}")
    e(f"s_mov_b32 s{t4}, 0xff0000ff"); e(f"s_mov_b32 s{t5}, 0xff0000ff")
    e(f"s_mov_b64 exec, {sr(t4,2)}")
    for v in range(4):
        e(f"ds_write_b32 v4, v{5+v} offset:{32*v}")
    e("s_mov_b64 exec, -1")
    mk_srd(rWS, pWS, None, size=WS_SIZE)
    e("s_waitcnt lgkmcnt(0)")
    e(f"s_mul_i32 s{sTAG}, s{sTAG}, 1664525"); e(f"s_add_u32 s{sTAG}, s{sTAG}, 1013904223")
    e(f"s_mov_b32 s{sSPIN}, {P['SPIN']}")
    e("s_barrier")
    stamp(8, "pro")
    e(f"s_cmp_eq_u32 s{sW}, 0"); e("s_cbranch_scc0 L_notw0")
    c("wave 0: reduce + publish the q slice")
    e(f"v_lshrrev_b32 v4, 5, v{vLANE}"); e("v_lshlrev_b32 v4, 11, v4")
    e(f"v_and_b32 v5, 31, v{vLANE}"); e("v_lshl_add_u32 v4, v5, 2, v4"); e(f"v_add_u32 v4, {L_OP}, v4")
    for i in range(16): e(f"ds_read_b32 v{24+i}, v4 offset:{128*i}")
    e("s_waitcnt lgkmcnt(0)")
    idx = [24 + i for i in range(16)]
    while len(idx) > 1:
        nxt = []
        for i in range(0, len(idx), 2):
            e(f"v_add_f32 v{idx[i]}, v{idx[i]}, v{idx[i+1]}"); nxt.append(idx[i])
        idx = nxt
    e("v_mov_b32 v25, v24"); e("v_permlane32_swap_b32 v24, v25"); e("s_nop 0"); e("v_add_f32 v24, v24, v25")
    bf16r(24, 24)
    e(f"v_mov_b32 v25, s{sTAG}")
    e(f"s_lshl_b32 s{t0}, s{sPAIR}, 8"); e(f"s_lshl_b32 s{t1}, s{sS}, 5"); e(f"s_add_u32 s{t0}, s{t0}, s{t1}")
    e(f"s_lshl_b32 s{t0}, s{t0}, 3"); e(f"s_add_u32 s{t0}, s{t0}, {WS_QG}")
    e("v_lshlrev_b32 v5, 3, v5")
    e("s_mov_b32 exec_hi, 0")
    e(f"buffer_store_dwordx2 v[24:25], v5, {sr(rWS,4)}, s{t0} offen sc1")
    e("s_mov_b32 exec_hi, -1")
    if P["DYN"]:
        e(f"s_cmp_eq_u32 s{sSS}, 0"); e("s_cbranch_scc0 L_notw0")
        e(f"s_lshl_b32 s{t0}, s{sPS}, 7"); e(f"s_add_u32 s{t0}, s{t0}, {WS_CTR}")
        e("v_mov_b32 v24, 0"); e(f"v_mov_b32 v26, 0"); e(f"v_mov_b32 v27, s{sTAG}")
        e("s_mov_b64 exec, 1")
        e(f"buffer_store_dwordx2 v[26:27], v24, {sr(rWS,4)}, s{t0} offen sc1")
        e("s_mov_b64 exec, -1")
    a.lab("L_notw0")
    issue_kv_pre()
    c("DMA setup: phase 1 = w1 slice (6 steps), phase 2 = wo/w2 slice (11 steps)")
    e(f"s_mul_i32 s{t0}, s{sHKV}, 576"); e(f"s_mul_i32 s{t1}, s{sS}, 72"); e(f"s_add_u32 s{t0}, s{t0}, s{t1}")
    mk_srd(rA, pB1, None, size=4608*2)
    e(f"v_lshlrev_b32 v16, 1, v{vLANE}")
    e(f"buffer_load_ushort v{vB1}, v16, {sr(rA,4)}, s{t0} offen nt")
    e(f"s_and_b32 s{sDELTA}, s{t0}, 15")
    e(f"s_andn2_b32 s{t0}, s{t0}, 15")
    e(f"s_mul_i32 s{t1}, s{sW}, {72*9216}")
    e(f"s_add_u32 s{sDOFF}, s{t0}, s{t1}")
    mk_srd(rC, pW1, None, size=576*9216)
    e(f"s_mul_i32 s{sDLDS}, s{sW}, 6144")
    if L_W1: e(f"s_add_u32 s{sDLDS}, s{sDLDS}, {L_W1}")
    e(f"s_movk_i32 s{sDM}, 13108"); e(f"s_movk_i32 s{sDP}, {9216-80}")
    e(f"v_mov_b32 v{vDQ}, v{vLANE}")
    def dma_switch():
        e(f"s_cmp_lt_u32 s{sW}, 4")
        e(f"s_cselect_b32 s{rC}, s{pWO}, s{pW2}")
        e(f"s_cselect_b32 s{rC+1}, s{pWO+1}, s{pW2+1}")
        e(f"s_mov_b32 s{t4}, {4096*1152}")
        e(f"s_cselect_b32 s{rC+2}, s{t4}, {4608*1152}")
        e(f"s_and_b32 s{rC+1}, s{rC+1}, 0xffff")
        e(f"s_mov_b32 s{rC+3}, 0x20000")
        e(f"s_lshl_b32 s{t0}, s{sHKV}, 8"); e(f"s_lshl_b32 s{t1}, s{sW}, 6"); e(f"s_add_u32 s{t0}, s{t0}, s{t1}")
        e(f"s_mul_i32 s{t1}, s{sHKV}, 288"); e(f"s_mul_i32 s{t2}, s{sW}, 72"); e(f"s_add_u32 s{t1}, s{t1}, s{t2}")
        e(f"s_sub_u32 s{t1}, s{t1}, 288")
        e(f"s_cmp_lt_u32 s{sW}, 4")
        e(f"s_cselect_b32 s{t0}, s{t0}, s{t1}")
        e(f"s_mul_i32 s{t0}, s{t0}, 1152"); e(f"s_mul_i32 s{t1}, s{sS}, 144"); e(f"s_add_u32 s{sDOFF}, s{t0}, s{t1}")
        e(f"s_mul_i32 s{sDLDS}, s{sW}, 11264"); e(f"s_add_u32 s{sDLDS}, s{sDLDS}, {L_WW}")
        e(f"s_movk_i32 s{sDM}, 7282"); e(f"s_movk_i32 s{sDP}, 1008")
        e(f"v_mov_b32 v{vDQ}, v{vLANE}")
    def dma_step():
        e(f"v_mul_u32_u24 v47, s{sDM}, v{vDQ}"); e("v_lshrrev_b32 v47, 16, v47")
        e(f"v_mul_u32_u24 v47, s{sDP}, v47")
        e(f"v_lshl_add_u32 v47, v{vDQ}, 4, v47")
        e(f"s_mov_b32 m0, s{sDLDS}")
        e(f"v_add_u32 v{vDQ}, 64, v{vDQ}")
        e(f"buffer_load_dwordx4 v47, {sr(rC,4)}, s{sDOFF} offen {P['WPOL2']} lds")
        e(f"s_add_u32 s{sDLDS}, s{sDLDS}, 1024")
    e(f"v_and_b32 v16, 1, v{vLANE}"); e("v_cmp_eq_u32 vcc, 1, v16")
    e("v_mov_b32 v16, 0xffff"); e("v_mov_b32 v17, 0xffff0000")
    e("v_cndmask_b32 v16, v16, v17, vcc")
    for k in range(4): e(f"v_cndmask_b32 v{MASK+k}, 0, v16, {sr(sEQ[k],2)}")
    e(f"v_mov_b32 v{vM}, 0xff800000"); e(f"v_mov_b32 v{vML}, 0xff800000"); e(f"v_mov_b32 v{vL}, 0")
    for v in range(4): e(f"v_mov_b32 v{ACC+v}, 0")
    if BONUS:
        e(f"s_cmp_lt_u32 s{sW}, 4"); e("s_cbranch_scc1 L_nobonus")
        e(f"s_sub_u32 s{t0}, s{sW}, 4"); e(f"s_mul_i32 s{t0}, s{t0}, {BONUS*tile_bytes}")
        e(f"s_lshl_b32 s{t1}, s{sSS}, 20"); e(f"s_add_u32 s{t0}, s{t0}, s{t1}")
        for i in range(BONUS):
            issue_k(NB + i, t0); issue_v(NB + i, t0)
            if i + 1 < BONUS: e(f"s_add_u32 s{t0}, s{t0}, {tile_bytes}")
        a.lab("L_nobonus")
    if P["EARLY"]:
        e(f"s_cmp_lt_u32 s{sW}, 4"); e("s_cbranch_scc1 L_noearly")
        for i in range(P["EARLY"]): dma_step()
        e(f"s_mul_i32 s{sDLDS}, s{sW}, 6144"); e(f"v_mov_b32 v{vDQ}, v{vLANE}")
        a.lab("L_noearly")
    e(f"s_cmp_lt_u32 s{sW}, 4"); e("s_cbranch_scc0 L_pro_join")
    c("waves 0-3: gather q of the group")
    e(f"s_lshl_b32 s{t0}, s{sPS}, 11"); e(f"s_add_u32 s{t0}, s{t0}, {WS_QG}")
    e("v_lshlrev_b32 v4, 3, v0")
    a.lab("L_gather_q")
    e(f"buffer_load_dwordx2 v[6:7], v4, {sr(rWS,4)}, s{t0} offen sc1")
    e("s_waitcnt vmcnt(0)")
    e(f"v_cmp_ne_u32 vcc, s{sTAG}, v7")
    e("s_cbranch_vccz L_q_ok")
    spin_check("L_q_ok")
    if P["SLEEP"]: e(f"s_sleep {P['SLEEP']}")
    e("s_branch L_gather_q")
    a.lab("L_q_ok")
    e(f"v_lshlrev_b32 v4, 1, v0"); e(f"v_add_u32 v4, {L_QB}, v4")
    e("ds_write_b16_d16_hi v4, v6")
    if DEBUG:
        e(f"s_lshl_b32 s{t0}, s2, 10"); e(f"s_add_u32 s{t0}, s{t0}, {WS_DBG}")
        e("v_lshlrev_b32 v7, 2, v0")
        e(f"buffer_store_dword v6, v7, {sr(rWS,4)}, s{t0} offen")
    a.lab("L_pro_join")
    stamp(9, "pro")
    e("s_waitcnt lgkmcnt(0)")
    e("s_barrier")
    c("BK operand: QB + h*256 + (a+4g)*16")
    e(f"v_bfe_u32 v15, v{vLANE}, 3, 1"); e("v_lshlrev_b32 v15, 8, v15")
    e(f"v_lshrrev_b32 v16, 4, v{vLANE}"); e("v_lshl_add_u32 v15, v16, 6, v15")
    e(f"v_and_b32 v16, 3, v{vLANE}"); e("v_lshl_add_u32 v15, v16, 4, v15")
    e(f"v_add_u32 v15, {L_QB}, v15")
    e(f"ds_read_b128 {vr(BK,4)}, v15")
    e("s_waitcnt lgkmcnt(0)")
    stamp(3)

    NOUT = 2 * TL * NB - TL
    vA = PR0 + 94
    RANGE = (1 << 20) // tile_bytes
    PUB = RANGE // P["PUBFRAC"] if P["DYN"] else 0
    PRIV = RANGE - PUB
    OOB = 1 << 23
    def issue_atomic():
        e(f"v_mov_b32 v{vA}, 1"); e(f"v_mov_b32 v{vA+1}, 0"); e(f"v_mov_b32 v{vA+2}, 0")
        e("s_mov_b64 exec, 1")
        e(f"buffer_atomic_add_x2 {vr(vA,2)}, v{vA+2}, {sr(rWS,4)}, s{sCTR} offen sc0")
        e("s_mov_b64 exec, -1")
    WT = 164; TV = 236; B5 = PR0 + 46
    NV = 256

    def pretail():
        c("---- pre-tail: everything of the tail that does not depend on the attention result")
        if P["CPF"] & 2:
            e("s_getpc_b64 s[4:5]")
            a.lab("L_pc2")
            e(f"v_lshlrev_b32 v{TV+14}, 7, v{vLANE}")
            e(f"v_add_u32 v{TV+14}, L_stream_done-L_pc2, v{TV+14}")
            e(f"v_cmp_gt_u32 vcc, L_exit-L_pc2, v{TV+14}")
            e(f"s_and_saveexec_b64 {sr(sEX,2)}, vcc")
            e("s_cbranch_execz L_nocpf2")
            e(f"global_load_dword v{TV+15}, v{TV+14}, s[4:5]")
            a.lab("L_nocpf2")
            e(f"s_mov_b64 exec, {sr(sEX,2)}")
        e(f"v_bfe_u32 v24, v{vLANE}, 3, 1"); e(f"v_lshlrev_b32 v{TV+0}, 9, v24")
        e(f"v_lshrrev_b32 v25, 4, v{vLANE}"); e(f"v_lshl_add_u32 v{TV+0}, v25, 7, v{TV+0}")
        e(f"v_and_b32 v26, 7, v{vLANE}"); e(f"v_lshl_add_u32 v{TV+0}, v26, 2, v{TV+0}")
        e(f"s_lshl_b32 s{t0}, s{sW}, 10"); e(f"s_add_u32 s{t0}, s{t0}, {L_OP}")
        e(f"v_add_u32 v{TV+0}, s{t0}, v{TV+0}")
        e(f"v_lshlrev_b32 v{TV+1}, 3, v24")
        e(f"s_lshl_b32 s{t0}, s{sW}, 4"); e(f"s_add_u32 s{t0}, s{t0}, {L_MLP}")
        e(f"v_add_u32 v{TV+1}, s{t0}, v{TV+1}")
        e(f"v_lshlrev_b32 v{TV+7}, 7, v25"); e(f"v_lshl_add_u32 v{TV+7}, v24, 6, v{TV+7}"); e(f"v_lshl_add_u32 v{TV+7}, v26, 2, v{TV+7}")
        e(f"s_lshl_b32 s{t0}, s{sW}, 9"); e(f"s_add_u32 s{t0}, s{t0}, {L_YP}")
        e(f"v_add_u32 v{TV+7}, s{t0}, v{TV+7}")
        e(f"s_cmp_lt_u32 s{sW}, 4")
        e(f"s_cselect_b32 s{t0}, 16, 18")
        e(f"v_mul_u32_u24 v27, s{t0}, v25")
        e("v_mul_u32_u24 v28, 9, v27")
        e(f"v_and_b32 v29, 15, v{vLANE}"); e("v_min_u32 v29, 8, v29"); e("v_add_u32 v28, v28, v29")
        e("v_lshlrev_b32 v28, 4, v28")
        e(f"s_mul_i32 s{t2}, s{sW}, 11264"); e(f"s_add_u32 s{t2}, s{t2}, {L_WW}")
        e(f"v_add_u32 v28, s{t2}, v28")
        e(f"v_lshlrev_b32 v{TV+2}, 2, v0"); e(f"v_add_u32 v{TV+2}, {L_OP}, v{TV+2}")
        e(f"v_lshlrev_b32 v{TV+3}, 3, v0")
        e(f"v_lshlrev_b32 v{TV+4}, 5, v26"); e(f"v_lshl_add_u32 v{TV+4}, v24, 4, v{TV+4}")
        e(f"v_lshlrev_b32 v{TV+5}, 1, v0"); e(f"v_add_u32 v{TV+5}, {L_VAL}, v{TV+5}")
        e(f"v_lshlrev_b32 v{TV+6}, 5, v25"); e(f"s_lshl_b32 s{t1}, s{sW}, 7"); e(f"s_add_u32 s{t1}, s{t1}, {L_VAL}")
        e(f"v_add_u32 v{TV+6}, s{t1}, v{TV+6}")
        e(f"v_min_u32 v30, 71, v0")
        e(f"v_lshlrev_b32 v{TV+8}, 2, v30"); e(f"v_add_u32 v{TV+8}, {L_YP}, v{TV+8}")
        e(f"v_lshlrev_b32 v{TV+9}, 4, v30")
        e(f"v_min_u32 v30, 143, v0"); e(f"v_lshlrev_b32 v{TV+10}, 3, v30")
        e(f"v_lshrrev_b32 v30, 1, v30"); e(f"v_lshlrev_b32 v{TV+13}, 1, v30")
        e(f"s_cmp_lt_u32 s{sW}, 4"); e("s_cbranch_scc0 L_pt_b")
        c("waves 0-3")
        for j in range(16): e(f"ds_read_b128 {vr(WT+4*j,4)}, v28 offset:{144*j}")
        e(f"s_mul_i32 s{t0}, s{sB}, 1152"); e(f"s_mul_i32 s{t1}, s{sS}, 144"); e(f"s_add_u32 s{t0}, s{t0}, s{t1}")
        mk_srd(rA, pX, None, size=2304)
        mk_srd(rB, pB2, None, size=1152)
        e(f"buffer_load_ushort v{TV+11}, v{TV+13}, {sr(rA,4)}, s{t0} offen nt")
        e(f"buffer_load_ushort v{TV+12}, v{TV+13}, {sr(rB,4)}, s{t1} offen nt")
        mk_srd(rA, pOUT, None, size=2304)
        e("s_waitcnt lgkmcnt(0)")
        e("s_branch L_pt_done")
        a.lab("L_pt_b")
        c("waves 4-7: MLP down projection for this column slice (72 hidden rows per wave)")
        e(f"s_mul_i32 s{t0}, s{sPAIR}, 288"); e(f"s_mul_i32 s{t1}, s{sW}, 72"); e(f"s_add_u32 s{t0}, s{t0}, s{t1}")
        e(f"s_sub_u32 s{t0}, s{t0}, 288"); e(f"s_lshl_b32 s{t0}, s{t0}, 3"); e(f"s_add_u32 s{t0}, s{t0}, {WS_HG}")
        e(f"v_lshlrev_b32 v30, 3, v{vLANE}")
        e(f"v_and_b32 v31, 7, v{vLANE}"); e("v_lshlrev_b32 v31, 3, v31")
        for j in range(18): e(f"ds_read_b128 {vr(WT+4*j,4)}, v28 offset:{144*j}")
        a.lab("L_gather_h")
        e(f"buffer_load_dwordx2 v[32:33], v30, {sr(rWS,4)}, s{t0} offen sc1")
        e(f"buffer_load_dwordx2 v[34:35], v31, {sr(rWS,4)}, s{t0} offen offset:512 sc1")
        e("s_waitcnt vmcnt(0)")
        e(f"v_xor_b32 v36, s{sTAG}, v33"); e(f"v_xor_b32 v37, s{sTAG}, v35"); e("v_or_b32 v36, v36, v37")
        e("v_cmp_ne_u32 vcc, 0, v36")
        e("s_cbranch_vccz L_h_ok")
        spin_check("L_h_ok")
        if P["SLEEP"]: e(f"s_sleep {P['SLEEP']}")
        e("s_branch L_gather_h")
        a.lab("L_h_ok")
        e(f"s_mul_i32 s{t1}, s{sW}, 144"); e(f"s_add_u32 s{t1}, s{t1}, {L_VALH - 576}")
        e(f"v_lshlrev_b32 v36, 1, v{vLANE}"); e(f"v_add_u32 v36, s{t1}, v36")
        e("ds_write_b16_d16_hi v36, v32")
        e(f"v_and_b32 v37, 7, v{vLANE}"); e("v_lshlrev_b32 v37, 1, v37"); e(f"v_add_u32 v37, s{t1}, v37")
        e("ds_write_b16_d16_hi v37, v34 offset:128")
        e("v_lshlrev_b32 v27, 1, v27"); e(f"v_add_u32 v27, s{t1}, v27")
        e("s_waitcnt lgkmcnt(0)")
        VPB = 32
        for t in range(9): e(f"ds_read_b32 v{VPB+t}, v27 offset:{4*t}")
        e("s_waitcnt lgkmcnt(0)")
        BB = 24
        def b5(j):
            for k in range(4):
                e(f"v_perm_b32 v{B5+4*(j%4)+k}, v{VPB+(j>>1)}, v{VPB+(j>>1)}, v{SELQ+(j&1)*4+k}")
        b5(0); b5(1); b5(2)
        for j in range(18):
            cc = "0" if j == 0 else vr(24, 4)
            e(f"v_mfma_f32_16x16x32_bf16 {vr(24,4)}, {vr(WT+4*j,4)}, {vr(B5+4*(j%4),4)}, {cc}")
            if j + 3 < 18: b5(j + 3)
        e(f"v_cndmask_b32 v28, v24, v26, {sr(sX1,2)}")
        e(f"v_cndmask_b32 v29, v25, v27, {sr(sX1,2)}")
        e(f"ds_write_b32 v{TV+7}, v28"); e(f"ds_write_b32 v{TV+7}, v29 offset:32")
        e("s_waitcnt lgkmcnt(0)")
        a.lab("L_pt_done")
    uid = [0]
    def tile(b, waits, dma=False, reissue=True, mode="S"):
        uid[0] += 1; u = uid[0]
        if waits: e(f"s_waitcnt vmcnt({NOUT})")
        for j in range(TL):
            e(f"v_mfma_f32_16x16x32_bf16 {vr(DB+4*j,4)}, {vr(kreg(b,j),4)}, {vr(BK,4)}, 0")
        if dma: dma_step()
        if mode == "D":
            e(f"v_readfirstlane_b32 s{t0}, v{vA}"); e(f"v_readfirstlane_b32 s{t1}, v{vA+1}")
            e(f"s_cmp_lg_u32 s{t1}, s{sTAG}"); e("s_cbranch_scc1 L_ctr_retry")
            a.lab("L_ctr_ok")
            lg = PUB.bit_length() - 1
            e(f"s_lshr_b32 s{t1}, s{t0}, {lg}"); e(f"s_and_b32 s{t2}, s{t0}, {PUB-1}")
            e(f"s_lshl_b32 s{t1}, s{t1}, 20"); e(f"s_add_u32 s{t2}, s{t2}, {PRIV}")
            e(f"s_mul_i32 s{t2}, s{t2}, {tile_bytes}"); e(f"s_add_u32 s{sNXT}, s{t1}, s{t2}")
            e(f"s_cmp_ge_u32 s{t0}, {8*PUB}")
            e(f"s_cselect_b32 s{sNXT}, {OOB}, s{sNXT}")
            e(f"s_cbranch_scc1 L_dskipk")
            issue_k(b, sNXT)
            issue_atomic()
            a.lab("L_dskipk")
        elif reissue:
            issue_k(b)
            if mode == "SA": issue_atomic()
        U = [SREG + j for j in range(TL)]
        if TL == 4:
            for j in range(TL):
                e(f"v_mov_b32_dpp v{U[j]}, v{DB+4*j} quad_perm:[0,0,0,0] row_mask:0xf bank_mask:0xf")
            for q in range(1, 4):
                for j in range(TL):
                    e(f"v_add_f32_dpp v{U[j]}, v{DB+4*j+q}, v{U[j]} quad_perm:[{q},{q},{q},{q}] row_mask:0xf bank_mask:0xf")
        else:
            W = [SREG + 4 + j for j in range(TL)]
            for j in range(TL):
                e(f"v_mov_b32_dpp v{U[j]}, v{DB+4*j} quad_perm:[0,0,0,0] row_mask:0xf bank_mask:0xf")
            for j in range(TL):
                e(f"v_mov_b32_dpp v{W[j]}, v{DB+4*j+2} quad_perm:[2,2,2,2] row_mask:0xf bank_mask:0xf")
            for j in range(TL):
                e(f"v_add_f32_dpp v{U[j]}, v{DB+4*j+1}, v{U[j]} quad_perm:[1,1,1,1] row_mask:0xf bank_mask:0xf")
            for j in range(TL):
                e(f"v_add_f32_dpp v{W[j]}, v{DB+4*j+3}, v{W[j]} quad_perm:[3,3,3,3] row_mask:0xf bank_mask:0xf")
            for j in range(TL):
                e(f"v_add_f32 v{U[j]}, v{U[j]}, v{W[j]}")
        for j in range(TL): bf16r(U[j], U[j])
        for j in range(TL): e(f"v_mul_f32 v{U[j]}, s{sSCL}, v{U[j]}")
        for j in range(TL): bf16r(U[j], U[j])
        m2 = vt[0]
        if TL == 1: e(f"v_max_f32 v{m2}, v{vM}, v{U[0]}")
        else:
            e(f"v_max3_f32 v{m2}, v{vM}, v{U[0]}, v{U[1]}")
            j = 2
            while j < TL:
                e(f"v_max3_f32 v{m2}, v{m2}, v{U[j]}, v{U[j+1]}"); j += 2
        cross_rows(m2, vt[1], "v_max_f32")
        e(f"v_mul_f32 v{vt[1]}, s{sL2E}, v{m2}")
        e(f"v_mov_b32 v{vM}, v{m2}")
        e(f"v_sub_f32 v{vt[2]}, v{vML}, v{vt[1]}")
        for j in range(TL): e(f"v_fma_f32 v{U[j]}, v{U[j]}, s{sL2E}, -v{vt[1]}")
        e(f"v_exp_f32 v{vt[2]}, v{vt[2]}")
        for j in range(TL): e(f"v_exp_f32 v{U[j]}, v{U[j]}")
        e(f"v_mov_b32 v{vML}, v{vt[1]}")
        e(f"v_fma_f32 v{vL}, v{vL}, v{vt[2]}, v{U[0]}")
        for v in range(4): e(f"v_mul_f32 v{ACC+v}, v{ACC+v}, v{vt[2]}")
        for j in range(1, TL): e(f"v_add_f32 v{vL}, v{vL}, v{U[j]}")
        for j in range(TL): e(f"v_cvt_pk_bf16_f32 v{U[j]}, v{U[j]}, v{U[j]}")
        for j in range(TL):
            for k in range(4): e(f"v_and_b32 v{DB+4*j+k}, v{U[j]}, v{MASK+k}")
        if mode == "D":
            e(f"s_cmp_ge_u32 s{sNXT}, {OOB}"); e("s_cbranch_scc1 L_dlast")
            e(f"s_waitcnt vmcnt({NOUT + 1})")
            for j in range(TL):
                e(f"v_mfma_f32_16x16x32_bf16 {vr(ACC,4)}, {vr(vreg(b,j),4)}, {vr(DB+4*j,4)}, {vr(ACC,4)}")
            issue_v(b, sNXT)
            e("s_branch L_loopD")
            a.lab("L_dlast")
            e("s_waitcnt vmcnt(0)")
            for j in range(TL):
                e(f"v_mfma_f32_16x16x32_bf16 {vr(ACC,4)}, {vr(vreg(b,j),4)}, {vr(DB+4*j,4)}, {vr(ACC,4)}")
            return
        if waits: e(f"s_waitcnt vmcnt({NOUT + (1 if mode == 'SA' else 0)})")
        for j in range(TL):
            e(f"v_mfma_f32_16x16x32_bf16 {vr(ACC,4)}, {vr(vreg(b,j),4)}, {vr(DB+4*j,4)}, {vr(ACC,4)}")
        if reissue: issue_v(b)
    c("---- peeled first tiles (landed: covered by earlier waits for waves 0-3; wait for the others)")
    if BONUS:
        e(f"s_cmp_lt_u32 s{sW}, 4"); e("s_cbranch_scc1 L_peel_lo")
        e(f"s_waitcnt vmcnt({1 + 2*TL*BONUS})")
        tile(0, False)
        for i in range(BONUS):
            e(f"s_waitcnt vmcnt({2*TL*(BONUS - i)})")
            tile(NB + i, False, reissue=False)
        e("s_branch L_peel_done")
        a.lab("L_peel_lo")
    e("s_waitcnt vmcnt(1)")
    for b in range(NB): tile(b, False)
    for b in range(NB, NBT): tile(b, False, reissue=False)
    if BONUS: a.lab("L_peel_done")
    N1, N2 = 6, 11
    assert NB == 1
    c("---- loop A: tiles + DMA of w1 (6 steps) then wo/w2 (11 steps)")
    e(f"s_mov_b32 s{sCNT}, {N1 + N2}")
    a.lab("L_loopA")
    e(f"s_cmp_eq_u32 s{sCNT}, {N2}"); e("s_cbranch_scc0 L_noswitch")
    dma_switch()
    a.lab("L_noswitch")
    tile(0, True, dma=True)
    e(f"s_sub_u32 s{sCNT}, s{sCNT}, 1"); e(f"s_cmp_lg_u32 s{sCNT}, 0"); e("s_cbranch_scc1 L_loopA")
    c("---- hidden slice: 18 MFMAs 16x16x16")
    e(f"v_lshrrev_b32 v24, 4, v{vLANE}"); e("v_mul_u32_u24 v24, 1440, v24")
    e(f"v_and_b32 v25, 15, v{vLANE}"); e("v_min_u32 v25, 8, v25"); e("v_lshl_add_u32 v24, v25, 3, v24")
    e(f"s_mul_i32 s{t0}, s{sW}, 6144"); e(f"s_add_u32 s{t0}, s{t0}, s{sDELTA}")
    if L_W1: e(f"s_add_u32 s{t0}, s{t0}, {L_W1}")
    e(f"v_add_u32 v24, s{t0}, v24")
    for j in range(18): e(f"ds_read_b64 {vr(HA+2*j,2)}, v24 offset:{80*j}")
    def hb(j):
        for k in range(2):
            e(f"v_perm_b32 v{HB+2*(j%4)+k}, v{XP+(j>>1)}, v{XP+(j>>1)}, v{SELH+(j&1)*2+k}")
    hb(0); hb(1); hb(2)
    e("s_waitcnt lgkmcnt(0)")
    for j in range(18):
        cc = "0" if j == 0 else vr(HACC, 4)
        e(f"v_mfma_f32_16x16x16_bf16 {vr(HACC,4)}, {vr(HA+2*j,2)}, {vr(HB+2*(j%4),2)}, {cc}")
        if j + 3 < 18: hb(j + 3)
    e(f"s_lshl_b32 s{t0}, s{sW}, 8"); e(f"s_add_u32 s{t0}, s{t0}, {L_HP}")
    e(f"v_lshlrev_b32 v26, 2, v{vLANE}"); e(f"v_add_u32 v26, s{t0}, v26")
    e(f"v_bfe_u32 v25, v{vLANE}, 2, 2")
    e(f"v_cmp_eq_u32 vcc, 1, v25"); e(f"v_cmp_eq_u32 {sr(t4,2)}, 2, v25"); e(f"v_cmp_eq_u32 {sr(sEX,2)}, 3, v25")
    e(f"v_cndmask_b32 v27, v{HACC}, v{HACC+1}, vcc")
    e(f"v_cndmask_b32 v27, v27, v{HACC+2}, {sr(t4,2)}")
    e(f"v_cndmask_b32 v27, v27, v{HACC+3}, {sr(sEX,2)}")
    e("ds_write_b32 v26, v27")
    e("s_waitcnt lgkmcnt(0)")
    e("s_barrier")
    e(f"s_cmp_eq_u32 s{sW}, 4"); e("s_cbranch_scc0 L_noh")
    c("wave 4: reduce + publish hidden slice")
    e(f"v_lshlrev_b32 v24, 2, v{vLANE}"); e(f"v_add_u32 v24, {L_HP}, v24")
    for w in range(8): e(f"ds_read_b32 v{25+w}, v24 offset:{256*w}")
    e("s_waitcnt lgkmcnt(0)")
    for w in range(1, 8): e(f"v_add_f32 v25, v25, v{25+w}")
    bf16r(25, 25)
    e(f"v_lshlrev_b32 v26, 16, v{vB1}")
    e("v_add_f32 v25, v25, v26"); bf16r(25, 25)
    e("v_max_f32 v25, 0, v25"); e("v_mul_f32 v24, v25, v25"); bf16r(24, 24)
    e(f"v_mov_b32 v25, s{sTAG}")
    e(f"s_mul_i32 s{t0}, s{sPAIR}, 288"); e(f"s_mul_i32 s{t1}, s{sS}, 36"); e(f"s_add_u32 s{t0}, s{t0}, s{t1}")
    e(f"s_lshl_b32 s{t0}, s{t0}, 3"); e(f"s_add_u32 s{t0}, s{t0}, {WS_HG}")
    e(f"v_lshlrev_b32 v26, 3, v{vLANE}")
    e(f"v_cmp_gt_u32 vcc, 36, v{vLANE}")
    e(f"s_and_saveexec_b64 {sr(sEX,2)}, vcc")
    e(f"buffer_store_dwordx2 v[24:25], v26, {sr(rWS,4)}, s{t0} offen sc1")
    e(f"s_mov_b64 exec, {sr(sEX,2)}")
    a.lab("L_noh")
    nA = N1 + N2
    c("---- main loop")
    assert (PRIV - 4*BONUS) % NW == 0
    NSTAT = (PRIV - 4*BONUS) // NW
    if P["DYN"]:
        nS = NSTAT - NBT - nA - 2
    else:
        nS = NSTAT - NBT - nA
    assert nS > 0
    e(f"s_mov_b32 s{sCNT}, {nS}")
    e(f"s_lshl_b32 s{sCTR}, s{sPS}, 7"); e(f"s_add_u32 s{sCTR}, s{sCTR}, {WS_CTR}")
    e(f"v_mov_b32 v{vA+2}, 0")
    a.raw(".p2align 6")
    a.lab("L_loop")
    tile(0, True)
    e(f"s_sub_u32 s{sCNT}, s{sCNT}, 1")
    e(f"s_cmp_lg_u32 s{sCNT}, 0")
    e("s_cbranch_scc1 L_loop")
    pretail()
    if P["DYN"]:
        tile(0, True, mode="SA")
        a.raw(".p2align 6")
        a.lab("L_loopD")
        tile(0, True, mode="D")
        e("s_branch L_stream_done")
        a.lab("L_ctr_retry")
        c("counter not initialised yet (tag mismatch): retry the grab")
        e("s_waitcnt vmcnt(0)")
        spin_check("L_ctr_giveup")
        if P["SLEEP"]: e(f"s_sleep {P['SLEEP']}")
        issue_atomic()
        e("s_waitcnt vmcnt(0)")
        e(f"v_readfirstlane_b32 s{t0}, v{vA}"); e(f"v_readfirstlane_b32 s{t1}, v{vA+1}")
        e(f"s_cmp_lg_u32 s{t1}, s{sTAG}"); e("s_cbranch_scc1 L_ctr_retry")
        e("s_branch L_ctr_ok")
        a.lab("L_ctr_giveup")
        e(f"s_mov_b32 s{t0}, {8*PUB}")
        e("s_branch L_ctr_ok")
        a.lab("L_stream_done")
    else:
        pass

    c("---- T1: combine the 8 waves of the workgroup")
    e("s_waitcnt vmcnt(0)")
    stamp(4)
    cross_rows(vL, vt[0], "v_add_f32")
    for v in range(4): e(f"ds_write_b32 v{TV+0}, v{ACC+v} offset:{32*v}")
    e(f"v_mov_b32 v26, v{vM}"); e(f"v_mov_b32 v27, v{vL}")
    e("s_mov_b64 exec, 0x101")
    e(f"ds_write_b64 v{TV+1}, v[26:27]")
    e("s_mov_b64 exec, -1")
    e("s_waitcnt lgkmcnt(0)")
    e("s_barrier")
    e(f"s_cmp_lt_u32 s{sW}, 4"); e("s_cbranch_scc0 L_bpub")
    c("waves 0-3: WG partial for (h = w>>1, t)")
    e(f"s_lshr_b32 s{t0}, s{sW}, 1")
    e(f"s_lshl_b32 s{t1}, s{t0}, 3"); e(f"s_add_u32 s{t1}, s{t1}, {L_MLP}")
    e(f"v_mov_b32 v24, s{t1}")
    for w in range(8): e(f"ds_read_b64 {vr(28+2*w,2)}, v24 offset:{16*w}")
    for w in range(8): e(f"ds_read_b32 v{44+w}, v{TV+2} offset:{1024*w}")
    e(f"s_lshl_b32 s{t1}, s{sPS}, 3"); e(f"s_or_b32 s{t1}, s{t1}, s{sSS}")
    e(f"s_lshl_b32 s{t2}, s{t1}, 11"); e(f"s_add_u32 s{t2}, s{t2}, {WS_OG}")
    e(f"v_mov_b32 v53, s{sTAG}")
    e("s_waitcnt lgkmcnt(8)")
    e("v_max3_f32 v26, v28, v30, v32"); e("v_max3_f32 v26, v26, v34, v36"); e("v_max3_f32 v26, v26, v38, v40"); e("v_max_f32 v26, v26, v42")
    for w in range(8): e(f"v_sub_f32 v{28+2*w}, v{28+2*w}, v26")
    for w in range(8): e(f"v_mul_f32 v{28+2*w}, s{sL2E}, v{28+2*w}")
    for w in range(8): e(f"v_exp_f32 v{28+2*w}, v{28+2*w}")
    e("s_waitcnt lgkmcnt(0)")
    e("v_mul_f32 v52, v28, v44"); e("v_mul_f32 v27, v28, v29")
    for w in range(1, 8):
        e(f"v_fmac_f32 v52, v{28+2*w}, v{44+w}"); e(f"v_fmac_f32 v27, v{28+2*w}, v{29+2*w}")
    e(f"buffer_store_dwordx2 v[52:53], v{TV+3}, {sr(rWS,4)}, s{t2} offen sc1")
    e(f"s_and_b32 s{t2}, s{sW}, 1"); e(f"s_cmp_eq_u32 s{t2}, 0"); e("s_cbranch_scc0 L_ml_done")
    e(f"v_cmp_eq_u32 vcc, 1, v{vLANE}")
    e(f"s_lshl_b32 s{t2}, s{t1}, 5"); e(f"s_lshl_b32 s{t3}, s{t0}, 3"); e(f"s_add_u32 s{t2}, s{t2}, s{t3}"); e(f"s_add_u32 s{t2}, s{t2}, {WS_MLG}")
    e("v_cndmask_b32 v56, v26, v27, vcc"); e(f"v_mov_b32 v57, s{sTAG}")
    e(f"v_lshlrev_b32 v58, 4, v{vLANE}")
    e("s_mov_b64 exec, 3")
    e(f"buffer_store_dwordx2 v[56:57], v58, {sr(rWS,4)}, s{t2} offen sc1")
    e("s_mov_b64 exec, -1")
    a.lab("L_ml_done")
    stamp(5, "tail")
    c("T4: poll ML granules of the group for head h")
    e(f"s_lshl_b32 s{t2}, s{sPAIR}, 8"); e(f"s_lshl_b32 s{t3}, s{t0}, 3"); e(f"s_add_u32 s{t2}, s{t2}, s{t3}"); e(f"s_add_u32 s{t2}, s{t2}, {WS_MLG}")
    e(f"s_lshl_b32 s{t3}, s{sPAIR}, 14"); e(f"s_add_u32 s{t3}, s{t3}, {WS_OG}")
    a.lab("L_poll_ml")
    e(f"buffer_load_dwordx2 v[26:27], v{TV+4}, {sr(rWS,4)}, s{t2} offen sc1")
    e("s_waitcnt vmcnt(0)")
    e(f"v_cmp_ne_u32 vcc, s{sTAG}, v27")
    e("s_cbranch_vccz L_ml_ok")
    spin_check("L_ml_ok")
    if P["SLEEP"]: e(f"s_sleep {P['SLEEP']}")
    e("s_branch L_poll_ml")
    a.lab("L_ml_ok")
    stamp(6, "tail")
    a.lab("L_gather_o")
    e(f"s_mov_b32 s{t2}, s{t3}")
    for s_ in range(8):
        e(f"buffer_load_dwordx2 {vr(28+2*s_,2)}, v{TV+3}, {sr(rWS,4)}, s{t2} offen sc1")
        if s_ < 7: e(f"s_add_u32 s{t2}, s{t2}, 2048")
    e("v_mov_b32 v44, v26")
    e("v_max_f32_dpp v44, v44, v44 quad_perm:[1,0,3,2] row_mask:0xf bank_mask:0xf")
    e("v_max_f32_dpp v44, v44, v44 quad_perm:[2,3,0,1] row_mask:0xf bank_mask:0xf")
    e("v_max_f32_dpp v44, v44, v44 row_half_mirror row_mask:0xf bank_mask:0xf")
    e("v_mov_b32_dpp v45, v26 row_ror:8 row_mask:0xf bank_mask:0xf")
    e("v_sub_f32 v46, v26, v44"); e(f"v_mul_f32 v46, s{sL2E}, v46"); e("v_exp_f32 v46, v46")
    e("v_mul_f32 v47, v46, v45")
    e("v_add_f32_dpp v47, v47, v47 quad_perm:[1,0,3,2] row_mask:0xf bank_mask:0xf")
    e("v_add_f32_dpp v47, v47, v47 quad_perm:[2,3,0,1] row_mask:0xf bank_mask:0xf")
    e("v_add_f32_dpp v47, v47, v47 row_half_mirror row_mask:0xf bank_mask:0xf")
    e("v_rcp_f32 v47, v47")
    e("v_mul_f32 v46, v46, v47")
    for s_ in range(8): e(f"v_readlane_b32 s{sWT+s_}, v46, {s_}")
    e("s_waitcnt vmcnt(0)")
    e(f"v_xor_b32 v48, s{sTAG}, v29")
    for s_ in range(1, 8):
        e(f"v_xor_b32 v49, s{sTAG}, v{29+2*s_}"); e("v_or_b32 v48, v48, v49")
    e("v_cmp_ne_u32 vcc, 0, v48")
    e("s_cbranch_vccz L_o_ok")
    spin_check("L_o_ok")
    e("s_branch L_gather_o")
    a.lab("L_o_ok")
    e(f"v_mul_f32 v48, s{sWT}, v28")
    for s_ in range(1, 8): e(f"v_fmac_f32 v48, s{sWT+s_}, v{28+2*s_}")
    e("v_cvt_pk_bf16_f32 v48, v48, v48")
    e(f"ds_write_b16 v{TV+5}, v48")
    if DEBUG:
        e(f"v_lshlrev_b32 v50, 16, v48")
        e(f"s_lshl_b32 s{t0}, s2, 10"); e(f"s_add_u32 s{t0}, s{t0}, {WS_DBG + 0x40000}")
        e("v_lshlrev_b32 v51, 2, v0")
        e(f"buffer_store_dword v50, v51, {sr(rWS,4)}, s{t0} offen")
    e("s_waitcnt lgkmcnt(0)")
    e("s_barrier")
    stamp(7, "tail")
    c("---- T5: attention output projection slice (64 rows per wave)")
    VP = 32
    e(f"ds_read_b128 {vr(VP,4)}, v{TV+6}"); e(f"ds_read_b128 {vr(VP+4,4)}, v{TV+6} offset:16")
    e(f"s_lshl_b32 s{t2}, s{sB}, 3"); e(f"s_or_b32 s{t2}, s{t2}, s{sS}"); e(f"s_lshl_b32 s{t2}, s{t2}, 4")
    e(f"s_mul_i32 s{t3}, s{t2}, 1152"); e(f"s_add_u32 s{t3}, s{t3}, {WS_YG}")
    e(f"s_mul_i32 s{t2}, s{sHKV}, 1152"); e(f"s_add_u32 s{t2}, s{t2}, s{t3}")
    def b5(j):
        for k in range(4):
            e(f"v_perm_b32 v{B5+4*(j%4)+k}, v{VP+(j>>1)}, v{VP+(j>>1)}, v{SELQ+(j&1)*4+k}")
    e("s_waitcnt lgkmcnt(0)")
    b5(0); b5(1); b5(2)
    for j in range(16):
        y = 20 if j % 2 == 0 else 24
        cc = "0" if j < 2 else vr(y, 4)
        e(f"v_mfma_f32_16x16x32_bf16 {vr(y,4)}, {vr(WT+4*j,4)}, {vr(B5+4*(j%4),4)}, {cc}")
        if j + 3 < 16: b5(j + 3)
    for v in range(4): e(f"v_add_f32 v{20+v}, v{20+v}, v{24+v}")
    e(f"v_cndmask_b32 v28, v20, v22, {sr(sX1,2)}")
    e(f"v_cndmask_b32 v29, v21, v23, {sr(sX1,2)}")
    e(f"ds_write_b32 v{TV+7}, v28"); e(f"ds_write_b32 v{TV+7}, v29 offset:32")
    e("s_waitcnt lgkmcnt(0)")
    e("s_barrier")
    e(f"s_cmp_lt_u32 s{sW}, 3"); e("s_cbranch_scc0 L_end")
    e(f"s_cmp_lt_u32 s{sW}, 2"); e("s_cbranch_scc0 L_ypub_done")
    c("threads t<72: sum the 4 partials, publish kind A")
    for w in range(4): e(f"ds_read_b32 v{28+w}, v{TV+8} offset:{512*w}")
    e("v_cmp_gt_u32 vcc, 72, v0")
    e("s_waitcnt lgkmcnt(0)")
    e("v_add_f32 v28, v28, v29"); e("v_add_f32 v30, v30, v31"); e("v_add_f32 v28, v28, v30")
    e(f"v_mov_b32 v29, s{sTAG}")
    e(f"s_and_saveexec_b64 {sr(sEX,2)}, vcc")
    e(f"buffer_store_dwordx2 v[28:29], v{TV+9}, {sr(rWS,4)}, s{t2} offen sc1")
    e(f"s_mov_b64 exec, {sr(sEX,2)}")
    a.lab("L_ypub_done")
    stamp(8, "tail")
    if P["PROF"] == 1: e("s_mov_b32 s14, 0")
    e(f"s_cmp_eq_u32 s{sHKV}, s{sS}"); e("s_cbranch_scc0 L_end")
    e("s_branch L_final")
    a.lab("L_bpub")
    c("waves 4,5: sum the 4 MLP partials, publish kind B; waves 4-7 end")
    e(f"s_cmp_lt_u32 s{sW}, 6"); e("s_cbranch_scc0 L_end")
    e(f"v_subrev_u32 v24, 256, v0"); e("v_min_u32 v25, 71, v24")
    e(f"v_lshlrev_b32 v26, 2, v25"); e(f"v_add_u32 v26, {L_YP + 2048}, v26")
    for w in range(4): e(f"ds_read_b32 v{28+w}, v26 offset:{512*w}")
    e(f"s_lshl_b32 s{t2}, s{sB}, 3"); e(f"s_or_b32 s{t2}, s{t2}, s{sS}"); e(f"s_lshl_b32 s{t2}, s{t2}, 4")
    e(f"s_add_u32 s{t2}, s{t2}, s{sHKV}"); e(f"s_mul_i32 s{t2}, s{t2}, 1152"); e(f"s_add_u32 s{t2}, s{t2}, {WS_YG + 8}")
    e("v_lshlrev_b32 v25, 4, v25")
    e("v_cmp_gt_u32 vcc, 72, v24")
    e("s_waitcnt lgkmcnt(0)")
    e("v_add_f32 v28, v28, v29"); e("v_add_f32 v30, v30, v31"); e("v_add_f32 v28, v28, v30")
    e(f"v_mov_b32 v29, s{sTAG}")
    e(f"s_and_saveexec_b64 {sr(sEX,2)}, vcc")
    e(f"buffer_store_dwordx2 v[28:29], v25, {sr(rWS,4)}, s{t2} offen sc1")
    e(f"s_mov_b64 exec, {sr(sEX,2)}")
    if P["PROF"] == 1: e("s_mov_b32 s14, 0")
    e("s_branch L_end")
    a.lab("L_final")
    c("---- T6: final reducer for (b, s)")
    G6 = 48
    a.lab("L_gather_y")
    e(f"s_mov_b32 s{t2}, s{t3}")
    for k in range(16):
        e(f"buffer_load_dwordx2 {vr(G6+2*k,2)}, v{TV+10}, {sr(rWS,4)}, s{t2} offen sc1")
        if k < 15: e(f"s_add_u32 s{t2}, s{t2}, 1152")
    e("s_waitcnt vmcnt(0)")
    e(f"v_xor_b32 v32, s{sTAG}, v{G6+1}")
    for k in range(1, 16):
        e(f"v_xor_b32 v33, s{sTAG}, v{G6+2*k+1}"); e("v_or_b32 v32, v32, v33")
    e("v_cmp_ne_u32 vcc, 0, v32")
    e("s_cbranch_vccz L_y_ok")
    spin_check("L_y_ok")
    e("s_branch L_gather_y")
    a.lab("L_y_ok")
    stamp(9, "tail")
    idx = [G6 + 2*k for k in range(16)]
    while len(idx) > 1:
        nxt = []
        for i in range(0, len(idx), 2):
            e(f"v_add_f32 v{idx[i]}, v{idx[i]}, v{idx[i+1]}"); nxt.append(idx[i])
        idx = nxt
    bf16r(32, G6)
    e("v_mov_b32_dpp v33, v32 quad_perm:[1,0,3,2] row_mask:0xf bank_mask:0xf")
    e(f"v_lshlrev_b32 v41, 16, v{TV+11}"); e(f"v_lshlrev_b32 v42, 16, v{TV+12}")
    e(f"s_mul_i32 s{t0}, s{sB}, 1152"); e(f"s_mul_i32 s{t1}, s{sS}, 144"); e(f"s_add_u32 s{t0}, s{t0}, s{t1}")
    e("v_add_f32 v32, v41, v32"); bf16r(32, 32)
    e("v_add_f32 v33, v33, v42"); bf16r(33, 33)
    e("v_add_f32 v32, v32, v33"); e("v_cvt_pk_bf16_f32 v32, v32, v32")
    e("v_and_b32 v33, 1, v0"); e("v_cmp_eq_u32 vcc, 0, v33")
    e(f"s_mov_b64 {sr(t4,2)}, vcc")
    e("v_cmp_gt_u32 vcc, 144, v0")
    e(f"s_and_b64 vcc, vcc, {sr(t4,2)}")
    e(f"s_and_saveexec_b64 {sr(sEX,2)}, vcc")
    e(f"buffer_store_short v32, v{TV+13}, {sr(rA,4)}, s{t0} offen")
    e(f"s_mov_b64 exec, {sr(sEX,2)}")
    e(f"s_or_b32 s{t1}, s{sS}, s{sW}"); e(f"s_cmp_eq_u32 s{t1}, 0"); e("s_cbranch_scc0 L_end")
    e(f"s_lshl_b32 s{t1}, s{sB}, 8")
    e(f"v_mov_b32 v33, s{sTAG}"); e("v_mov_b32 v34, 0")
    e("s_mov_b64 exec, 1")
    e(f"buffer_store_dword v33, v34, {sr(rWS,4)}, s{t1} offen sc1")
    a.lab("L_end")
    if P["PROF"] == 3:
        stamp(10)
        e(f"s_cmp_eq_u32 s{sW}, 0"); e("s_cbranch_scc0 L_exit")
        e("s_load_dwordx2 s[4:5], s[0:1], 88")
        e("s_waitcnt lgkmcnt(0)")
        mk_srd(rA, 4, None, size=256)
        e("s_mov_b64 exec, 1")
        e("v_mov_b32 v1, 0")
        for i, (st, inv) in enumerate([(0, 1), (0, 0), (3, 1), (3, 0), (4, 1), (4, 0), (10, 1), (10, 0)]):
            if inv: e(f"s_not_b32 s{t0}, s{STAMPS[st]}"); e(f"v_mov_b32 v2, s{t0}")
            else: e(f"v_mov_b32 v2, s{STAMPS[st]}")
            e(f"buffer_atomic_umax v2, v1, {sr(rA,4)}, 0 offen offset:{4*i}")
            e("s_nop 0")
    elif P["PROF"]:
        stamp(10)
        e("s_mov_b64 exec, 1")
        e(f"s_lshl_b32 s{t0}, s2, 3"); e(f"s_add_u32 s{t0}, s{t0}, s{sW}")
        e(f"s_lshl_b32 s{t0}, s{t0}, 6"); e(f"s_add_u32 s{t0}, s{t0}, {WS_PROF}")
        e("v_mov_b32 v1, 0")
        for i in range(11):
            e(f"v_mov_b32 v2, s{STAMPS[i]}")
            e(f"buffer_store_dword v2, v1, {sr(rWS,4)}, s{t0} offen offset:{4*i}")
            e("s_nop 0")
    a.lab("L_exit")
    e("s_endpgm")
    body, n = hazard.fix(a.L)
    nv = 256
    tail = ['.section .rodata,"a"', ".p2align 6", f".amdhsa_kernel {NAME}_kernel",
            f"  .amdhsa_next_free_vgpr {(nv+7)//8*8}", "  .amdhsa_next_free_sgpr 102", f"  .amdhsa_accum_offset {(nv+7)//8*8}",
            "  .amdhsa_group_segment_fixed_size 0", "  .amdhsa_kernarg_size 104", "  .amdhsa_user_sgpr_count 2",
            "  .amdhsa_user_sgpr_kernarg_segment_ptr 1", "  .amdhsa_system_sgpr_workgroup_id_x 1",
            "  .amdhsa_float_denorm_mode_32 3", ".end_amdhsa_kernel"]
    return "\n".join(hdr + body + tail) + "\n"

if __name__ == "__main__":
    out = sys.argv[1]
    kw = {}
    for arg in sys.argv[2:]:
        k, v = arg.split("=")
        kw[k] = int(v) if v.lstrip("-").isdigit() else v.replace("+", " ").replace("none", "")
    open(out, "w").write(gen(**kw))
```

```python
import sys
sys.path.insert(0, "gen")
import hazard
NAME = "parallel_sum__gqa_block_cached__dense_activation_squared_relu__decode"

DEFAULTS = dict(TL=2, NB=1, PRE=0, KVPOL="nt", WPOL="nt", DEBUG=0, SLEEP=1, SPIN=20000, PROF=0, CPF=0, PRIO=0, BAR0=1, PUBFRAC=8, DYN=1, SMAP=1, EARLY=0, BONUS=4, WPOL2="")

WS_EPOCH = 0
WS_HG    = 0x1000
WS_MLG   = 0x14000
WS_OG    = 0x20000
WS_YG    = 0xA0000
WS_QG    = 0xF0000
WS_CTR   = 0x18000
WS_DBG   = 0x100000
WS_PROF  = 0x1C0000
WS_SIZE  = 0x200000

L_W1  = 0
L_WW  = 49152
L_OP  = 139264
L_HP  = 147456
L_QB  = 149504
L_MLP = 150016
L_VAL = 150144
L_VALH = L_VAL + 512
L_YP  = 151296
L_XN  = L_YP + 4096
L_END = L_XN + 1280

LOG2E = 0x3FB8AA3B
SCALE = 0x3DB504F3

class A:
    def __init__(s): s.L = []
    def e(s, x): s.L.append("  " + x)
    def lab(s, x): s.L.append(x + ":")
    def c(s, x): s.L.append("  ; " + x)
    def raw(s, x): s.L.append(x)
def vr(a, n): return f"v[{a}:{a+n-1}]"
def sr(a, n): return f"s[{a}:{a+n-1}]"

def gen(**kw):
    P = dict(DEFAULTS); P.update(kw)
    TL, NB, KVPOL, WPOL, DEBUG = P["TL"], P["NB"], P["KVPOL"], P["WPOL"], P["DEBUG"]
    NW = 8
    tile_bytes = TL * 1024
    ntiles = (1 << 20) // tile_bytes // NW
    assert ntiles % NB == 0 and TL in (1, 2, 4)
    a = A(); e = a.e; c = a.c
    hdr = []
    hdr.append(f"; params: {P}")
    hdr.append(f"; @launch grid=(256,1,1) block=(512,1,1) lds={(L_END + 255)//256*256}")
    a.raw('.amdgcn_target "amdgcn-amd-amdhsa--gfx950"')
    a.raw(".text"); a.raw(f".globl {NAME}_kernel"); a.raw(".p2align 8"); a.raw(f".type {NAME}_kernel,@function")
    a.lab(f"{NAME}_kernel")

    pX, pK, pV, pWQ = 8, 10, 12, 14
    pWO, pOUT = 16, 18
    pW1, pB1, pW2, pB2 = 20, 22, 24, 26
    pWS = 28
    sB, sHKV, sS, sPAIR, sW, sTAG = 30, 31, 32, 33, 34, 35
    rK, rV, rWS, rA, rB, rC = 36, 40, 44, 48, 52, 56
    sTOFF, sCNT = 60, 61
    t0, t1, t2, t3 = 62, 63, 64, 65
    sEQ = [66, 68, 70, 72]
    sX1 = 74
    sPS, sSS, sCUR, sNXT, sCTR = 76, 77, 78, 79, 80
    sWT = 82
    sSPIN = 90
    sL2E, sSCL = 91, 92
    sEX = 94
    t4, t5 = 96, 97
    sDOFF, sDLDS, sDM, sDP, sDELTA = 93, 100, 101, 5 if False else 7, 6
    vDQ = 46
    vLANE, vKOFF, vVOFF = 1, 2, 3
    BK = 4; MASK = 8
    vM, vL, vML = 12, 13, 14
    vt = [15, 16, 17, 18, 19]
    ACC = 20
    DB = 24
    SREG = 40
    KV0 = 48
    def kreg(b, j): return (KV0 + b * (8 * TL) if b < NB else 164 + (b - NB) * 8 * TL) + j * 4
    def vreg(b, j): return kreg(b, 0) + 4 * TL + j * 4
    BONUS = P["BONUS"]
    assert 164 + BONUS * 8 * TL <= 256
    PRE = P["PRE"]
    NBT = NB + PRE
    PR0 = KV0 + NBT * 8 * TL
    assert PR0 + 70 <= 164, 'prologue scratch area would overlap the v164+ region'
    WQT = PR0
    XP = PR0 + 20
    SELQ = PR0 + 30
    SELX = PR0 + 38
    SELH = PR0 + 42
    HA = 164
    HB = 200
    vB1, vMISC = PR0 + 62, 45
    D1, D2, HACC = 24, 28, 32
    BQ = [4, 8]

    def mk_srd(r, ptr, off_s=None, size=None, size_s=None):
        if off_s is not None:
            e(f"s_add_u32 s{r}, s{ptr}, s{off_s}"); e(f"s_addc_u32 s{r+1}, s{ptr+1}, 0")
            e(f"s_and_b32 s{r+1}, s{r+1}, 0xffff")
        else:
            e(f"s_mov_b32 s{r}, s{ptr}"); e(f"s_and_b32 s{r+1}, s{ptr+1}, 0xffff")
        if size_s is not None: e(f"s_mov_b32 s{r+2}, s{size_s}")
        else: e(f"s_mov_b32 s{r+2}, {size}")
        e(f"s_mov_b32 s{r+3}, 0x20000")
    def bf16r(d, s_): e(f"v_cvt_pk_bf16_f32 v{d}, 0, v{s_}")
    def cross_rows(x, y, op):
        e(f"v_mov_b32 v{y}, v{x}")
        e(f"v_permlane16_swap_b32 v{x}, v{y}"); e("s_nop 0")
        e(f"{op} v{x}, v{x}, v{y}")
        e(f"v_mov_b32 v{y}, v{x}")
        e(f"v_permlane32_swap_b32 v{x}, v{y}"); e("s_nop 0")
        e(f"{op} v{x}, v{x}, v{y}")
    def wave_reduce(x, y, op):
        for pat in ["quad_perm:[1,0,3,2]", "quad_perm:[2,3,0,1]", "row_half_mirror", "row_mirror"]:
            e(f"{op}_dpp v{x}, v{x}, v{x} {pat} row_mask:0xf bank_mask:0xf")
        cross_rows(x, y, op)
    STAMPS = [3, 0, 1, 98, 99, 10, 11, 12, 13, 14, 15]
    def stamp(i, mode="all"):
        if not P["PROF"]: return
        if mode == "pro" and P["PROF"] != 2: return
        if mode == "tail" and P["PROF"] != 1: return
        e("s_memrealtime s[4:5]"); e("s_waitcnt lgkmcnt(0)"); e(f"s_mov_b32 s{STAMPS[i]}, s4")
    def spin_check(okl):
        e(f"s_sub_u32 s{sSPIN}, s{sSPIN}, 1"); e(f"s_cmp_eq_u32 s{sSPIN}, 0"); e(f"s_cbranch_scc1 {okl}")

    c("---- phase 0: ids, pointers")
    e("s_cmp_ge_u32 s2, 256")
    e("s_cbranch_scc1 L_exit")
    e(f"s_load_dwordx8 {sr(8,8)}, s[0:1], 0")
    e(f"s_load_dwordx2 {sr(pWS,2)}, s[0:1], 96")
    e(f"s_load_dwordx8 {sr(20,8)}, s[0:1], 48")
    e(f"s_load_dwordx2 {sr(pWO,2)}, s[0:1], 32")
    e(f"s_load_dwordx2 {sr(pOUT,2)}, s[0:1], 80")
    if P["CPF"] & 1:
        c("pull the kernel's own code into L2 (read-only, speed only)")
        e("s_getpc_b64 s[4:5]")
        a.lab("L_pc")
        e("v_lshlrev_b32 v46, 7, v0")
        e("v_cmp_gt_u32 vcc, L_exit-L_pc, v46")
        e(f"s_and_saveexec_b64 {sr(sEX,2)}, vcc")
        e("s_cbranch_execz L_nocpf")
        e("global_load_dword v47, v46, s[4:5] nt")
        a.lab("L_nocpf")
        e(f"s_mov_b64 exec, {sr(sEX,2)}")
    stamp(0)
    e(f"s_and_b32 s{t0}, s2, 7")
    e(f"s_lshr_b32 s{t1}, s2, 3")
    e(f"s_and_b32 s{sS}, s{t1}, 7")
    e(f"s_bfe_u32 s{t2}, s{t1}, 0x10003")
    e(f"s_lshr_b32 s{sB}, s{t1}, 4")
    e(f"s_lshl_b32 s{t2}, s{t2}, 3")
    e(f"s_or_b32 s{sHKV}, s{t0}, s{t2}")
    e(f"s_lshl_b32 s{sPAIR}, s{sB}, 4")
    e(f"s_or_b32 s{sPAIR}, s{sPAIR}, s{sHKV}")
    if P["SMAP"]:
        e(f"s_lshr_b32 s{sPS}, s2, 3"); e(f"s_and_b32 s{sSS}, s2, 7")
    else:
        e(f"s_mov_b32 s{sPS}, s{sPAIR}"); e(f"s_mov_b32 s{sSS}, s{sS}")
    e(f"v_and_b32 v{vLANE}, 63, v0")
    e(f"v_lshrrev_b32 v{vt[0]}, 6, v0")
    e(f"v_mul_u32_u24 v5, 24, v{vLANE}")
    e(f"v_readfirstlane_b32 s{sW}, v{vt[0]}")
    vG, vR = vt[1], vt[2]
    e(f"v_lshrrev_b32 v{vG}, 4, v{vLANE}")
    e(f"v_and_b32 v{vR}, 15, v{vLANE}")
    e(f"v_lshrrev_b32 v{vt[3]}, 2, v{vR}")
    e(f"v_mul_u32_u24 v4, 18, v{vG}"); e(f"v_add_u32 v4, v4, v{vt[3]}"); e("v_lshlrev_b32 v4, 13, v4")
    e(f"v_and_b32 v{vt[4]}, 3, v{vR}")
    e(f"v_lshl_add_u32 v4, v{vt[4]}, 4, v4")
    e(f"s_mul_i32 s{t0}, s{sB}, 1152")
    e(f"s_lshl_b32 s{t3}, s{sB}, 8")
    e(f"s_lshl_b32 s{t1}, s{sHKV}, 9"); e(f"s_lshl_b32 s{t2}, s{sS}, 6"); e(f"s_add_u32 s{t1}, s{t1}, s{t2}")
    e(f"s_sub_u32 s{t4}, {576*8192}, s{t1}")
    e(f"s_mul_i32 s{t2}, s{sW}, {72*8192}")
    if P["PRIO"]:
        e(f"s_cmp_ge_u32 s{sW}, 4"); e("s_cbranch_scc0 L_noprio"); e("s_setprio 1"); a.lab("L_noprio")
    e("s_waitcnt lgkmcnt(0)")
    XS = 24
    mk_srd(rA, pX, off_s=t0, size=1152)
    e(f"s_cmp_eq_u32 s{sW}, 0"); e("s_cbranch_scc0 L_nox")
    e(f"buffer_load_dwordx4 {vr(XS,4)}, v5, {sr(rA,4)}, 0 offen nt")
    e(f"buffer_load_dwordx2 {vr(XS+4,2)}, v5, {sr(rA,4)}, 0 offen offset:16 nt")
    a.lab("L_nox")
    mk_srd(rB, pWQ, off_s=t1, size_s=t4)
    for t in range(5):
        e(f"buffer_load_dwordx4 {vr(WQT+4*t,4)}, v4, {sr(rB,4)}, s{t2} offen {WPOL}")
        if t < 4: e(f"s_add_u32 s{t2}, s{t2}, {4*8192}")
    e(f"s_load_dword s{sTAG}, {sr(pWS,2)}, s{t3}")
    stamp(1, "pro")
    c("---- lane constants / masks / selectors")
    e(f"s_mov_b32 s{sL2E}, {LOG2E:#x}")
    e(f"s_mov_b32 s{sSCL}, {SCALE:#x}")
    e(f"v_lshlrev_b32 v{vt[3]}, 8, v{vt[3]}")
    e(f"v_lshl_add_u32 v{vt[3]}, v{vG}, 6, v{vt[3]}")
    e(f"v_lshl_add_u32 v{vKOFF}, v{vt[4]}, 4, v{vt[3]}")
    e(f"v_lshlrev_b32 v{vVOFF}, 4, v{vLANE}")
    e(f"v_mul_u32_u24 v{vMISC}, 36, v{vG}")
    e(f"v_and_b32 v{vt[0]}, 7, v{vLANE}")
    e(f"v_lshrrev_b32 v{vt[1]}, 1, v{vt[0]}")
    for k in range(4): e(f"v_cmp_eq_u32 {sr(sEQ[k],2)}, {k}, v{vt[1]}")
    e(f"v_bfe_u32 v{vt[1]}, v{vLANE}, 3, 1")
    e(f"v_cmp_eq_u32 {sr(sX1,2)}, 1, v{vt[1]}")
    def make_selq(SEL, ta, tb, tc):
        e(f"v_and_b32 v{ta}, 1, v{vLANE}")
        e(f"v_cmp_eq_u32 vcc, 1, v{ta}")
        e(f"v_mov_b32 v{ta}, 0x0c0c0100"); e(f"v_mov_b32 v{tb}, 0x01000c0c")
        e(f"v_cndmask_b32 v{ta}, v{ta}, v{tb}, vcc")
        e(f"v_mov_b32 v{tb}, 0x0c0c0302"); e(f"v_mov_b32 v{tc}, 0x03020c0c")
        e(f"v_cndmask_b32 v{tb}, v{tb}, v{tc}, vcc")
        e(f"v_mov_b32 v{tc}, 0x0c0c0c0c")
        for k in range(4):
            e(f"v_cndmask_b32 v{SEL+k}, v{tc}, v{ta}, {sr(sEQ[k],2)}")
            e(f"v_cndmask_b32 v{SEL+4+k}, v{tc}, v{tb}, {sr(sEQ[k],2)}")
    make_selq(SELQ, 6, 7, 8)
    for k in range(4):
        e(f"v_cndmask_b32 v{SELX+k}, v{SELQ+k}, v{SELQ+4+k}, {sr(sX1,2)}")
    e(f"v_bfe_u32 v9, v{vLANE}, 1, 1")
    e("v_cmp_eq_u32 vcc, 1, v9")
    e(f"v_cndmask_b32 v{SELH+0}, v6, v8, vcc"); e(f"v_cndmask_b32 v{SELH+1}, v8, v6, vcc")
    e(f"v_cndmask_b32 v{SELH+2}, v7, v8, vcc"); e(f"v_cndmask_b32 v{SELH+3}, v8, v7, vcc")
    c("---- K/V tile 0 prefetch")
    e(f"s_lshl_b32 s{t0}, s{sPS}, 23")
    mk_srd(rK, pK, off_s=t0, size=1 << 23)
    mk_srd(rV, pV, off_s=t0, size=1 << 23)
    e(f"s_mul_i32 s{sTOFF}, s{sW}, {tile_bytes}"); e(f"s_lshl_b32 s{t0}, s{sSS}, 20"); e(f"s_add_u32 s{sTOFF}, s{sTOFF}, s{t0}")
    if BONUS: e(f"s_add_u32 s{sTOFF}, s{sTOFF}, {4*BONUS*tile_bytes}")
    def issue_k(b, so=None):
        for j in range(TL):
            e(f"buffer_load_dwordx4 {vr(kreg(b,j),4)}, v{vKOFF}, {sr(rK,4)}, s{so or sTOFF} offen offset:{j*1024} {KVPOL}")
    def issue_v(b, so=None):
        for j in range(TL):
            e(f"buffer_load_dwordx4 {vr(vreg(b,j),4)}, v{vVOFF}, {sr(rV,4)}, s{so or sTOFF} offen offset:{j*1024} {KVPOL}")
        if so is None: e(f"s_add_u32 s{sTOFF}, s{sTOFF}, {tile_bytes*NW}")
    e("s_barrier")
    def issue_kv_all():
        for b in range(NB):
            issue_k(b); issue_v(b)
    def issue_kv_pre():
        for b in range(NB, NBT):
            issue_k(b); issue_v(b)
    nKV0 = NB * 2 * TL
    e(f"s_cmp_eq_u32 s{sW}, 0"); e("s_cbranch_scc1 L_ln")
    issue_kv_all()
    stamp(2, "pro")
    e("s_branch L_ln_done")
    a.lab("L_ln")
    c("---- LayerNorm by wave 0 (lanes < 48 hold 12 elements each)")
    e("s_waitcnt vmcnt(5)")
    stamp(5, "pro")
    XF = 30
    for i in range(6):
        e(f"v_lshlrev_b32 v{XF+2*i}, 16, v{XS+i}")
        e(f"v_and_b32 v{XF+2*i+1}, 0xffff0000, v{XS+i}")
    e(f"v_pk_add_f32 v[12:13], {vr(XF,2)}, {vr(XF+2,2)}")
    e(f"v_pk_add_f32 v[14:15], {vr(XF+4,2)}, {vr(XF+6,2)}")
    e(f"v_pk_add_f32 v[16:17], {vr(XF+8,2)}, {vr(XF+10,2)}")
    e("v_pk_add_f32 v[12:13], v[12:13], v[14:15]")
    e("v_pk_add_f32 v[12:13], v[12:13], v[16:17]")
    e("v_add_f32 v14, v12, v13")
    wave_reduce(14, 15, "v_add_f32")
    e(f"v_mul_f32 v14, {0xBAE38E39:#x}, v14")
    e("v_mov_b32 v15, v14")
    e(f"v_pk_add_f32 v[12:13], {vr(XF,2)}, v[14:15]")
    e("v_pk_mul_f32 v[16:17], v[12:13], v[12:13]")
    for i in range(1, 6):
        e(f"v_pk_add_f32 v[12:13], {vr(XF+2*i,2)}, v[14:15]")
        e("v_pk_fma_f32 v[16:17], v[12:13], v[12:13], v[16:17]")
    e("v_add_f32 v16, v16, v17")
    e(f"v_cmp_gt_u32 vcc, 48, v{vLANE}")
    e("v_cndmask_b32 v16, 0, v16, vcc")
    wave_reduce(16, 17, "v_add_f32")
    e(f"v_mul_f32 v16, {0x3AE38E39:#x}, v16")
    bf16r(16, 16)
    e(f"v_add_f32 v16, {0x3727C5AC:#x}, v16")
    bf16r(16, 16)
    e("v_sqrt_f32 v16, v16")
    bf16r(16, 16)
    e("v_rcp_f32 v16, v16")
    bf16r(14, 14)
    e("v_mov_b32 v15, v14")
    e("v_mov_b32 v17, v16")
    for i in range(6):
        e(f"v_pk_add_f32 {vr(XF+2*i,2)}, {vr(XF+2*i,2)}, v[14:15]")
    for i in range(6):
        e(f"v_cvt_pk_bf16_f32 v{XS+i}, v{XF+2*i}, v{XF+2*i+1}")
    for i in range(6):
        e(f"v_lshlrev_b32 v{XF+2*i}, 16, v{XS+i}")
        e(f"v_and_b32 v{XF+2*i+1}, 0xffff0000, v{XS+i}")
    for i in range(6):
        e(f"v_pk_mul_f32 {vr(XF+2*i,2)}, {vr(XF+2*i,2)}, v[16:17]")
    for i in range(6):
        e(f"v_cvt_pk_bf16_f32 v{XS+i}, v{XF+2*i}, v{XF+2*i+1}")
    e(f"v_add_u32 v5, {L_XN}, v5")
    e("s_mov_b32 exec_hi, 0xffff")
    for i in range(3): e(f"ds_write_b64 v5, {vr(XS+2*i,2)} offset:{8*i}")
    e("s_mov_b32 exec_hi, -1")
    issue_kv_all()
    e("s_waitcnt lgkmcnt(0)")
    a.lab("L_ln_done")
    e(f"s_mul_i32 s{t0}, s{sW}, 144"); e(f"s_add_u32 s{t0}, s{t0}, {L_XN}")
    e(f"v_add_u32 v{vMISC}, s{t0}, v{vMISC}")
    e("s_barrier")
    for i in range(4): e(f"ds_read2_b32 {vr(XP+2*i,2)}, v{vMISC} offset0:{2*i} offset1:{2*i+1}")
    e(f"ds_read_b32 v{XP+8}, v{vMISC} offset:32")
    e("s_waitcnt lgkmcnt(0)")
    stamp(6, "pro")
    c("---- q slice: 32 columns, 9 MFMAs")
    def bq(setr, pair):
        for k in range(4): e(f"v_perm_b32 v{setr+k}, v{XP+pair}, v{XP+pair}, v{SELX+k}")
    bq(BQ[0], 0); bq(BQ[1], 1)
    e(f"s_waitcnt vmcnt({nKV0})")
    for t in range(5):
        cc = "0" if t == 0 else vr(D1, 4)
        e(f"v_mfma_f32_16x16x32_bf16 {vr(D1,4)}, {vr(WQT+4*t,4)}, {vr(BQ[0],4)}, {cc}")
        if t < 4:
            cc = "0" if t == 0 else vr(D2, 4)
            e(f"v_mfma_f32_16x16x32_bf16 {vr(D2,4)}, {vr(WQT+4*t,4)}, {vr(BQ[1],4)}, {cc}")
            bq(BQ[0], 2*t + 2)
            if t < 3: bq(BQ[1], 2*t + 3)
    stamp(7, "pro")
    e(f"v_lshrrev_b32 v4, 4, v{vLANE}"); e("v_lshlrev_b32 v4, 7, v4")
    e(f"v_and_b32 v5, 7, v{vLANE}"); e("v_lshl_add_u32 v4, v5, 2, v4")
    e(f"s_lshl_b32 s{t0}, s{sW}, 9"); e(f"s_add_u32 s{t0}, s{t0}, {L_OP}")
    e(f"v_add_u32 v4, s{t0}, v4")
    e(f"s_mov_b32 s{t4}, 0"); e(f"s_mov_b32 s{t5}, -1")
    for v in range(4):
        e(f"v_cndmask_b32 v{5+v}, v{D1+v}, v{D2+v}, {sr(t4,2)}")
    e(f"s_mov_b32 s{t4}, 0xff0000ff"); e(f"s_mov_b32 s{t5}, 0xff0000ff")
    e(f"s_mov_b64 exec, {sr(t4,2)}")
    for v in range(4):
        e(f"ds_write_b32 v4, v{5+v} offset:{32*v}")
    e("s_mov_b64 exec, -1")
    mk_srd(rWS, pWS, None, size=WS_SIZE)
    e("s_waitcnt lgkmcnt(0)")
    e(f"s_mul_i32 s{sTAG}, s{sTAG}, 1664525"); e(f"s_add_u32 s{sTAG}, s{sTAG}, 1013904223")
    e(f"s_mov_b32 s{sSPIN}, {P['SPIN']}")
    e("s_barrier")
    stamp(8, "pro")
    e(f"s_cmp_eq_u32 s{sW}, 0"); e("s_cbranch_scc0 L_notw0")
    c("wave 0: reduce + publish the q slice")
    e(f"v_lshrrev_b32 v4, 5, v{vLANE}"); e("v_lshlrev_b32 v4, 11, v4")
    e(f"v_and_b32 v5, 31, v{vLANE}"); e("v_lshl_add_u32 v4, v5, 2, v4"); e(f"v_add_u32 v4, {L_OP}, v4")
    for i in range(16): e(f"ds_read_b32 v{24+i}, v4 offset:{128*i}")
    e("s_waitcnt lgkmcnt(0)")
    idx = [24 + i for i in range(16)]
    while len(idx) > 1:
        nxt = []
        for i in range(0, len(idx), 2):
            e(f"v_add_f32 v{idx[i]}, v{idx[i]}, v{idx[i+1]}"); nxt.append(idx[i])
        idx = nxt
    e("v_mov_b32 v25, v24"); e("v_permlane32_swap_b32 v24, v25"); e("s_nop 0"); e("v_add_f32 v24, v24, v25")
    bf16r(24, 24)
    e(f"v_mov_b32 v25, s{sTAG}")
    e(f"s_lshl_b32 s{t0}, s{sPAIR}, 8"); e(f"s_lshl_b32 s{t1}, s{sS}, 5"); e(f"s_add_u32 s{t0}, s{t0}, s{t1}")
    e(f"s_lshl_b32 s{t0}, s{t0}, 3"); e(f"s_add_u32 s{t0}, s{t0}, {WS_QG}")
    e("v_lshlrev_b32 v5, 3, v5")
    e("s_mov_b32 exec_hi, 0")
    e(f"buffer_store_dwordx2 v[24:25], v5, {sr(rWS,4)}, s{t0} offen sc1")
    e("s_mov_b32 exec_hi, -1")
    if P["DYN"]:
        e(f"s_cmp_eq_u32 s{sSS}, 0"); e("s_cbranch_scc0 L_notw0")
        e(f"s_lshl_b32 s{t0}, s{sPS}, 7"); e(f"s_add_u32 s{t0}, s{t0}, {WS_CTR}")
        e("v_mov_b32 v24, 0"); e(f"v_mov_b32 v26, 0"); e(f"v_mov_b32 v27, s{sTAG}")
        e("s_mov_b64 exec, 1")
        e(f"buffer_store_dwordx2 v[26:27], v24, {sr(rWS,4)}, s{t0} offen sc1")
        e("s_mov_b64 exec, -1")
    a.lab("L_notw0")
    issue_kv_pre()
    c("DMA setup: phase 1 = w1 slice (6 steps), phase 2 = wo/w2 slice (11 steps)")
    e(f"s_mul_i32 s{t0}, s{sHKV}, 576"); e(f"s_mul_i32 s{t1}, s{sS}, 72"); e(f"s_add_u32 s{t0}, s{t0}, s{t1}")
    mk_srd(rA, pB1, None, size=4608*2)
    e(f"v_lshlrev_b32 v16, 1, v{vLANE}")
    e(f"buffer_load_ushort v{vB1}, v16, {sr(rA,4)}, s{t0} offen nt")
    e(f"s_and_b32 s{sDELTA}, s{t0}, 15")
    e(f"s_andn2_b32 s{t0}, s{t0}, 15")
    e(f"s_mul_i32 s{t1}, s{sW}, {72*9216}")
    e(f"s_add_u32 s{sDOFF}, s{t0}, s{t1}")
    mk_srd(rC, pW1, None, size=576*9216)
    e(f"s_mul_i32 s{sDLDS}, s{sW}, 6144")
    if L_W1: e(f"s_add_u32 s{sDLDS}, s{sDLDS}, {L_W1}")
    e(f"s_movk_i32 s{sDM}, 13108"); e(f"s_movk_i32 s{sDP}, {9216-80}")
    e(f"v_mov_b32 v{vDQ}, v{vLANE}")
    def dma_switch():
        e(f"s_cmp_lt_u32 s{sW}, 4")
        e(f"s_cselect_b32 s{rC}, s{pWO}, s{pW2}")
        e(f"s_cselect_b32 s{rC+1}, s{pWO+1}, s{pW2+1}")
        e(f"s_mov_b32 s{t4}, {4096*1152}")
        e(f"s_cselect_b32 s{rC+2}, s{t4}, {4608*1152}")
        e(f"s_and_b32 s{rC+1}, s{rC+1}, 0xffff")
        e(f"s_mov_b32 s{rC+3}, 0x20000")
        e(f"s_lshl_b32 s{t0}, s{sHKV}, 8"); e(f"s_lshl_b32 s{t1}, s{sW}, 6"); e(f"s_add_u32 s{t0}, s{t0}, s{t1}")
        e(f"s_mul_i32 s{t1}, s{sHKV}, 288"); e(f"s_mul_i32 s{t2}, s{sW}, 72"); e(f"s_add_u32 s{t1}, s{t1}, s{t2}")
        e(f"s_sub_u32 s{t1}, s{t1}, 288")
        e(f"s_cmp_lt_u32 s{sW}, 4")
        e(f"s_cselect_b32 s{t0}, s{t0}, s{t1}")
        e(f"s_mul_i32 s{t0}, s{t0}, 1152"); e(f"s_mul_i32 s{t1}, s{sS}, 144"); e(f"s_add_u32 s{sDOFF}, s{t0}, s{t1}")
        e(f"s_mul_i32 s{sDLDS}, s{sW}, 11264"); e(f"s_add_u32 s{sDLDS}, s{sDLDS}, {L_WW}")
        e(f"s_movk_i32 s{sDM}, 7282"); e(f"s_movk_i32 s{sDP}, 1008")
        e(f"v_mov_b32 v{vDQ}, v{vLANE}")
    def dma_step():
        e(f"v_mul_u32_u24 v47, s{sDM}, v{vDQ}"); e("v_lshrrev_b32 v47, 16, v47")
        e(f"v_mul_u32_u24 v47, s{sDP}, v47")
        e(f"v_lshl_add_u32 v47, v{vDQ}, 4, v47")
        e(f"s_mov_b32 m0, s{sDLDS}")
        e(f"v_add_u32 v{vDQ}, 64, v{vDQ}")
        e(f"buffer_load_dwordx4 v47, {sr(rC,4)}, s{sDOFF} offen {P['WPOL2']} lds")
        e(f"s_add_u32 s{sDLDS}, s{sDLDS}, 1024")
    e(f"v_and_b32 v16, 1, v{vLANE}"); e("v_cmp_eq_u32 vcc, 1, v16")
    e("v_mov_b32 v16, 0xffff"); e("v_mov_b32 v17, 0xffff0000")
    e("v_cndmask_b32 v16, v16, v17, vcc")
    for k in range(4): e(f"v_cndmask_b32 v{MASK+k}, 0, v16, {sr(sEQ[k],2)}")
    e(f"v_mov_b32 v{vM}, 0xff800000"); e(f"v_mov_b32 v{vML}, 0xff800000"); e(f"v_mov_b32 v{vL}, 0")
    for v in range(4): e(f"v_mov_b32 v{ACC+v}, 0")
    if BONUS:
        e(f"s_cmp_lt_u32 s{sW}, 4"); e("s_cbranch_scc1 L_nobonus")
        e(f"s_sub_u32 s{t0}, s{sW}, 4"); e(f"s_mul_i32 s{t0}, s{t0}, {BONUS*tile_bytes}")
        e(f"s_lshl_b32 s{t1}, s{sSS}, 20"); e(f"s_add_u32 s{t0}, s{t0}, s{t1}")
        for i in range(BONUS):
            issue_k(NB + i, t0); issue_v(NB + i, t0)
            if i + 1 < BONUS: e(f"s_add_u32 s{t0}, s{t0}, {tile_bytes}")
        a.lab("L_nobonus")
    if P["EARLY"]:
        e(f"s_cmp_lt_u32 s{sW}, 4"); e("s_cbranch_scc1 L_noearly")
        for i in range(P["EARLY"]): dma_step()
        e(f"s_mul_i32 s{sDLDS}, s{sW}, 6144"); e(f"v_mov_b32 v{vDQ}, v{vLANE}")
        a.lab("L_noearly")
    e(f"s_cmp_lt_u32 s{sW}, 4"); e("s_cbranch_scc0 L_pro_join")
    c("waves 0-3: gather q of the group")
    e(f"s_lshl_b32 s{t0}, s{sPS}, 11"); e(f"s_add_u32 s{t0}, s{t0}, {WS_QG}")
    e("v_lshlrev_b32 v4, 3, v0")
    a.lab("L_gather_q")
    e(f"buffer_load_dwordx2 v[6:7], v4, {sr(rWS,4)}, s{t0} offen sc1")
    e("s_waitcnt vmcnt(0)")
    e(f"v_cmp_ne_u32 vcc, s{sTAG}, v7")
    e("s_cbranch_vccz L_q_ok")
    spin_check("L_q_ok")
    if P["SLEEP"]: e(f"s_sleep {P['SLEEP']}")
    e("s_branch L_gather_q")
    a.lab("L_q_ok")
    e(f"v_lshlrev_b32 v4, 1, v0"); e(f"v_add_u32 v4, {L_QB}, v4")
    e("ds_write_b16_d16_hi v4, v6")
    if DEBUG:
        e(f"s_lshl_b32 s{t0}, s2, 10"); e(f"s_add_u32 s{t0}, s{t0}, {WS_DBG}")
        e("v_lshlrev_b32 v7, 2, v0")
        e(f"buffer_store_dword v6, v7, {sr(rWS,4)}, s{t0} offen")
    a.lab("L_pro_join")
    stamp(9, "pro")
    e("s_waitcnt lgkmcnt(0)")
    e("s_barrier")
    c("BK operand: QB + h*256 + (a+4g)*16")
    e(f"v_bfe_u32 v15, v{vLANE}, 3, 1"); e("v_lshlrev_b32 v15, 8, v15")
    e(f"v_lshrrev_b32 v16, 4, v{vLANE}"); e("v_lshl_add_u32 v15, v16, 6, v15")
    e(f"v_and_b32 v16, 3, v{vLANE}"); e("v_lshl_add_u32 v15, v16, 4, v15")
    e(f"v_add_u32 v15, {L_QB}, v15")
    e(f"ds_read_b128 {vr(BK,4)}, v15")
    e("s_waitcnt lgkmcnt(0)")
    stamp(3)

    NOUT = 2 * TL * NB - TL
    vA = PR0 + 64
    RANGE = (1 << 20) // tile_bytes
    PUB = RANGE // P["PUBFRAC"] if P["DYN"] else 0
    PRIV = RANGE - PUB
    OOB = 1 << 23
    def issue_atomic():
        e(f"v_mov_b32 v{vA}, 1"); e(f"v_mov_b32 v{vA+1}, 0"); e(f"v_mov_b32 v{vA+2}, 0")
        e("s_mov_b64 exec, 1")
        e(f"buffer_atomic_add_x2 {vr(vA,2)}, v{vA+2}, {sr(rWS,4)}, s{sCTR} offen sc0")
        e("s_mov_b64 exec, -1")
    WT = 164; TV = 236; B5 = PR0 + 46
    NV = 256

    def pretail():
        c("---- pre-tail: everything of the tail that does not depend on the attention result")
        if P["CPF"] & 2:
            e("s_getpc_b64 s[4:5]")
            a.lab("L_pc2")
            e(f"v_lshlrev_b32 v{TV+14}, 7, v{vLANE}")
            e(f"v_add_u32 v{TV+14}, L_stream_done-L_pc2, v{TV+14}")
            e(f"v_cmp_gt_u32 vcc, L_exit-L_pc2, v{TV+14}")
            e(f"s_and_saveexec_b64 {sr(sEX,2)}, vcc")
            e("s_cbranch_execz L_nocpf2")
            e(f"global_load_dword v{TV+15}, v{TV+14}, s[4:5]")
            a.lab("L_nocpf2")
            e(f"s_mov_b64 exec, {sr(sEX,2)}")
        e(f"v_bfe_u32 v24, v{vLANE}, 3, 1"); e(f"v_lshlrev_b32 v{TV+0}, 9, v24")
        e(f"v_lshrrev_b32 v25, 4, v{vLANE}"); e(f"v_lshl_add_u32 v{TV+0}, v25, 7, v{TV+0}")
        e(f"v_and_b32 v26, 7, v{vLANE}"); e(f"v_lshl_add_u32 v{TV+0}, v26, 2, v{TV+0}")
        e(f"s_lshl_b32 s{t0}, s{sW}, 10"); e(f"s_add_u32 s{t0}, s{t0}, {L_OP}")
        e(f"v_add_u32 v{TV+0}, s{t0}, v{TV+0}")
        e(f"v_lshlrev_b32 v{TV+1}, 3, v24")
        e(f"s_lshl_b32 s{t0}, s{sW}, 4"); e(f"s_add_u32 s{t0}, s{t0}, {L_MLP}")
        e(f"v_add_u32 v{TV+1}, s{t0}, v{TV+1}")
        e(f"v_lshlrev_b32 v{TV+7}, 7, v25"); e(f"v_lshl_add_u32 v{TV+7}, v24, 6, v{TV+7}"); e(f"v_lshl_add_u32 v{TV+7}, v26, 2, v{TV+7}")
        e(f"s_lshl_b32 s{t0}, s{sW}, 9"); e(f"s_add_u32 s{t0}, s{t0}, {L_YP}")
        e(f"v_add_u32 v{TV+7}, s{t0}, v{TV+7}")
        e(f"s_cmp_lt_u32 s{sW}, 4")
        e(f"s_cselect_b32 s{t0}, 16, 18")
        e(f"v_mul_u32_u24 v27, s{t0}, v25")
        e("v_mul_u32_u24 v28, 9, v27")
        e(f"v_and_b32 v29, 15, v{vLANE}"); e("v_min_u32 v29, 8, v29"); e("v_add_u32 v28, v28, v29")
        e("v_lshlrev_b32 v28, 4, v28")
        e(f"s_mul_i32 s{t2}, s{sW}, 11264"); e(f"s_add_u32 s{t2}, s{t2}, {L_WW}")
        e(f"v_add_u32 v28, s{t2}, v28")
        e(f"v_lshlrev_b32 v{TV+2}, 2, v0"); e(f"v_add_u32 v{TV+2}, {L_OP}, v{TV+2}")
        e(f"v_lshlrev_b32 v{TV+3}, 3, v0")
        e(f"v_lshlrev_b32 v{TV+4}, 5, v26"); e(f"v_lshl_add_u32 v{TV+4}, v24, 4, v{TV+4}")
        e(f"v_lshlrev_b32 v{TV+5}, 1, v0"); e(f"v_add_u32 v{TV+5}, {L_VAL}, v{TV+5}")
        e(f"v_lshlrev_b32 v{TV+6}, 5, v25"); e(f"s_lshl_b32 s{t1}, s{sW}, 7"); e(f"s_add_u32 s{t1}, s{t1}, {L_VAL}")
        e(f"v_add_u32 v{TV+6}, s{t1}, v{TV+6}")
        e(f"v_min_u32 v30, 71, v0")
        e(f"v_lshlrev_b32 v{TV+8}, 2, v30"); e(f"v_add_u32 v{TV+8}, {L_YP}, v{TV+8}")
        e(f"v_lshlrev_b32 v{TV+9}, 4, v30")
        e(f"v_min_u32 v30, 143, v0"); e(f"v_lshlrev_b32 v{TV+10}, 3, v30")
        e(f"v_lshrrev_b32 v30, 1, v30"); e(f"v_lshlrev_b32 v{TV+13}, 1, v30")
        e(f"s_cmp_lt_u32 s{sW}, 4"); e("s_cbranch_scc0 L_pt_b")
        c("waves 0-3")
        for j in range(16): e(f"ds_read_b128 {vr(WT+4*j,4)}, v28 offset:{144*j}")
        e(f"s_mul_i32 s{t0}, s{sB}, 1152"); e(f"s_mul_i32 s{t1}, s{sS}, 144"); e(f"s_add_u32 s{t0}, s{t0}, s{t1}")
        mk_srd(rA, pX, None, size=2304)
        mk_srd(rB, pB2, None, size=1152)
        e(f"buffer_load_ushort v{TV+11}, v{TV+13}, {sr(rA,4)}, s{t0} offen nt")
        e(f"buffer_load_ushort v{TV+12}, v{TV+13}, {sr(rB,4)}, s{t1} offen nt")
        mk_srd(rA, pOUT, None, size=2304)
        e("s_waitcnt lgkmcnt(0)")
        e("s_branch L_pt_done")
        a.lab("L_pt_b")
        c("waves 4-7: MLP down projection for this column slice (72 hidden rows per wave)")
        e(f"s_mul_i32 s{t0}, s{sPAIR}, 288"); e(f"s_mul_i32 s{t1}, s{sW}, 72"); e(f"s_add_u32 s{t0}, s{t0}, s{t1}")
        e(f"s_sub_u32 s{t0}, s{t0}, 288"); e(f"s_lshl_b32 s{t0}, s{t0}, 3"); e(f"s_add_u32 s{t0}, s{t0}, {WS_HG}")
        e(f"v_lshlrev_b32 v30, 3, v{vLANE}")
        e(f"v_and_b32 v31, 7, v{vLANE}"); e("v_lshlrev_b32 v31, 3, v31")
        for j in range(18): e(f"ds_read_b128 {vr(WT+4*j,4)}, v28 offset:{144*j}")
        a.lab("L_gather_h")
        e(f"buffer_load_dwordx2 v[32:33], v30, {sr(rWS,4)}, s{t0} offen sc1")
        e(f"buffer_load_dwordx2 v[34:35], v31, {sr(rWS,4)}, s{t0} offen offset:512 sc1")
        e("s_waitcnt vmcnt(0)")
        e(f"v_xor_b32 v36, s{sTAG}, v33"); e(f"v_xor_b32 v37, s{sTAG}, v35"); e("v_or_b32 v36, v36, v37")
        e("v_cmp_ne_u32 vcc, 0, v36")
        e("s_cbranch_vccz L_h_ok")
        spin_check("L_h_ok")
        if P["SLEEP"]: e(f"s_sleep {P['SLEEP']}")
        e("s_branch L_gather_h")
        a.lab("L_h_ok")
        e(f"s_mul_i32 s{t1}, s{sW}, 144"); e(f"s_add_u32 s{t1}, s{t1}, {L_VALH - 576}")
        e(f"v_lshlrev_b32 v36, 1, v{vLANE}"); e(f"v_add_u32 v36, s{t1}, v36")
        e("ds_write_b16_d16_hi v36, v32")
        e(f"v_and_b32 v37, 7, v{vLANE}"); e("v_lshlrev_b32 v37, 1, v37"); e(f"v_add_u32 v37, s{t1}, v37")
        e("ds_write_b16_d16_hi v37, v34 offset:128")
        e("v_lshlrev_b32 v27, 1, v27"); e(f"v_add_u32 v27, s{t1}, v27")
        e("s_waitcnt lgkmcnt(0)")
        VPB = 32
        for t in range(9): e(f"ds_read_b32 v{VPB+t}, v27 offset:{4*t}")
        e("s_waitcnt lgkmcnt(0)")
        BB = 24
        def b5(j):
            for k in range(4):
                e(f"v_perm_b32 v{B5+4*(j%4)+k}, v{VPB+(j>>1)}, v{VPB+(j>>1)}, v{SELQ+(j&1)*4+k}")
        b5(0); b5(1); b5(2)
        for j in range(18):
            cc = "0" if j == 0 else vr(24, 4)
            e(f"v_mfma_f32_16x16x32_bf16 {vr(24,4)}, {vr(WT+4*j,4)}, {vr(B5+4*(j%4),4)}, {cc}")
            if j + 3 < 18: b5(j + 3)
        e(f"v_cndmask_b32 v28, v24, v26, {sr(sX1,2)}")
        e(f"v_cndmask_b32 v29, v25, v27, {sr(sX1,2)}")
        e(f"ds_write_b32 v{TV+7}, v28"); e(f"ds_write_b32 v{TV+7}, v29 offset:32")
        e("s_waitcnt lgkmcnt(0)")
        a.lab("L_pt_done")
    uid = [0]
    def tile(b, waits, dma=False, reissue=True, mode="S"):
        uid[0] += 1; u = uid[0]
        if waits: e(f"s_waitcnt vmcnt({NOUT})")
        for j in range(TL):
            e(f"v_mfma_f32_16x16x32_bf16 {vr(DB+4*j,4)}, {vr(kreg(b,j),4)}, {vr(BK,4)}, 0")
        if dma: dma_step()
        if mode == "D":
            e(f"v_readfirstlane_b32 s{t0}, v{vA}"); e(f"v_readfirstlane_b32 s{t1}, v{vA+1}")
            e(f"s_cmp_lg_u32 s{t1}, s{sTAG}"); e("s_cbranch_scc1 L_ctr_retry")
            a.lab("L_ctr_ok")
            lg = PUB.bit_length() - 1
            e(f"s_lshr_b32 s{t1}, s{t0}, {lg}"); e(f"s_and_b32 s{t2}, s{t0}, {PUB-1}")
            e(f"s_lshl_b32 s{t1}, s{t1}, 20"); e(f"s_add_u32 s{t2}, s{t2}, {PRIV}")
            e(f"s_mul_i32 s{t2}, s{t2}, {tile_bytes}"); e(f"s_add_u32 s{sNXT}, s{t1}, s{t2}")
            e(f"s_cmp_ge_u32 s{t0}, {8*PUB}")
            e(f"s_cselect_b32 s{sNXT}, {OOB}, s{sNXT}")
            e(f"s_cbranch_scc1 L_dskipk")
            issue_k(b, sNXT)
            issue_atomic()
            a.lab("L_dskipk")
        elif reissue:
            issue_k(b)
            if mode == "SA": issue_atomic()
        U = [SREG + j for j in range(TL)]
        if TL == 4:
            for j in range(TL):
                e(f"v_mov_b32_dpp v{U[j]}, v{DB+4*j} quad_perm:[0,0,0,0] row_mask:0xf bank_mask:0xf")
            for q in range(1, 4):
                for j in range(TL):
                    e(f"v_add_f32_dpp v{U[j]}, v{DB+4*j+q}, v{U[j]} quad_perm:[{q},{q},{q},{q}] row_mask:0xf bank_mask:0xf")
        else:
            W = [SREG + 4 + j for j in range(TL)]
            for j in range(TL):
                e(f"v_mov_b32_dpp v{U[j]}, v{DB+4*j} quad_perm:[0,0,0,0] row_mask:0xf bank_mask:0xf")
            for j in range(TL):
                e(f"v_mov_b32_dpp v{W[j]}, v{DB+4*j+2} quad_perm:[2,2,2,2] row_mask:0xf bank_mask:0xf")
            for j in range(TL):
                e(f"v_add_f32_dpp v{U[j]}, v{DB+4*j+1}, v{U[j]} quad_perm:[1,1,1,1] row_mask:0xf bank_mask:0xf")
            for j in range(TL):
                e(f"v_add_f32_dpp v{W[j]}, v{DB+4*j+3}, v{W[j]} quad_perm:[3,3,3,3] row_mask:0xf bank_mask:0xf")
            for j in range(TL):
                e(f"v_add_f32 v{U[j]}, v{U[j]}, v{W[j]}")
        for j in range(TL): bf16r(U[j], U[j])
        for j in range(TL): e(f"v_mul_f32 v{U[j]}, s{sSCL}, v{U[j]}")
        for j in range(TL): bf16r(U[j], U[j])
        m2 = vt[0]
        if TL == 1: e(f"v_max_f32 v{m2}, v{vM}, v{U[0]}")
        else:
            e(f"v_max3_f32 v{m2}, v{vM}, v{U[0]}, v{U[1]}")
            j = 2
            while j < TL:
                e(f"v_max3_f32 v{m2}, v{m2}, v{U[j]}, v{U[j+1]}"); j += 2
        cross_rows(m2, vt[1], "v_max_f32")
        e(f"v_mul_f32 v{vt[1]}, s{sL2E}, v{m2}")
        e(f"v_mov_b32 v{vM}, v{m2}")
        e(f"v_sub_f32 v{vt[2]}, v{vML}, v{vt[1]}")
        for j in range(TL): e(f"v_fma_f32 v{U[j]}, v{U[j]}, s{sL2E}, -v{vt[1]}")
        e(f"v_exp_f32 v{vt[2]}, v{vt[2]}")
        for j in range(TL): e(f"v_exp_f32 v{U[j]}, v{U[j]}")
        e(f"v_mov_b32 v{vML}, v{vt[1]}")
        e(f"v_fma_f32 v{vL}, v{vL}, v{vt[2]}, v{U[0]}")
        for v in range(4): e(f"v_mul_f32 v{ACC+v}, v{ACC+v}, v{vt[2]}")
        for j in range(1, TL): e(f"v_add_f32 v{vL}, v{vL}, v{U[j]}")
        for j in range(TL): e(f"v_cvt_pk_bf16_f32 v{U[j]}, v{U[j]}, v{U[j]}")
        for j in range(TL):
            for k in range(4): e(f"v_and_b32 v{DB+4*j+k}, v{U[j]}, v{MASK+k}")
        if mode == "D":
            e(f"s_cmp_ge_u32 s{sNXT}, {OOB}"); e("s_cbranch_scc1 L_dlast")
            e(f"s_waitcnt vmcnt({NOUT + 1})")
            for j in range(TL):
                e(f"v_mfma_f32_16x16x32_bf16 {vr(ACC,4)}, {vr(vreg(b,j),4)}, {vr(DB+4*j,4)}, {vr(ACC,4)}")
            issue_v(b, sNXT)
            e("s_branch L_loopD")
            a.lab("L_dlast")
            e("s_waitcnt vmcnt(0)")
            for j in range(TL):
                e(f"v_mfma_f32_16x16x32_bf16 {vr(ACC,4)}, {vr(vreg(b,j),4)}, {vr(DB+4*j,4)}, {vr(ACC,4)}")
            return
        if waits: e(f"s_waitcnt vmcnt({NOUT + (1 if mode == 'SA' else 0)})")
        for j in range(TL):
            e(f"v_mfma_f32_16x16x32_bf16 {vr(ACC,4)}, {vr(vreg(b,j),4)}, {vr(DB+4*j,4)}, {vr(ACC,4)}")
        if reissue: issue_v(b)
    c("---- peeled first tiles (landed: covered by earlier waits for waves 0-3; wait for the others)")
    if BONUS:
        e(f"s_cmp_lt_u32 s{sW}, 4"); e("s_cbranch_scc1 L_peel_lo")
        e(f"s_waitcnt vmcnt({1 + 2*TL*BONUS})")
        tile(0, False)
        for i in range(BONUS):
            e(f"s_waitcnt vmcnt({2*TL*(BONUS - i)})")
            tile(NB + i, False, reissue=False)
        e("s_branch L_peel_done")
        a.lab("L_peel_lo")
    e("s_waitcnt vmcnt(1)")
    for b in range(NB): tile(b, False)
    for b in range(NB, NBT): tile(b, False, reissue=False)
    if BONUS: a.lab("L_peel_done")
    N1, N2 = 6, 11
    assert NB == 1
    c("---- loop A: tiles + DMA of w1 (6 steps) then wo/w2 (11 steps)")
    e(f"s_mov_b32 s{sCNT}, {N1 + N2}")
    a.lab("L_loopA")
    e(f"s_cmp_eq_u32 s{sCNT}, {N2}"); e("s_cbranch_scc0 L_noswitch")
    dma_switch()
    a.lab("L_noswitch")
    tile(0, True, dma=True)
    e(f"s_sub_u32 s{sCNT}, s{sCNT}, 1"); e(f"s_cmp_lg_u32 s{sCNT}, 0"); e("s_cbranch_scc1 L_loopA")
    c("---- hidden slice: 18 MFMAs 16x16x16")
    e(f"v_lshrrev_b32 v24, 4, v{vLANE}"); e("v_mul_u32_u24 v24, 1440, v24")
    e(f"v_and_b32 v25, 15, v{vLANE}"); e("v_min_u32 v25, 8, v25"); e("v_lshl_add_u32 v24, v25, 3, v24")
    e(f"s_mul_i32 s{t0}, s{sW}, 6144"); e(f"s_add_u32 s{t0}, s{t0}, s{sDELTA}")
    if L_W1: e(f"s_add_u32 s{t0}, s{t0}, {L_W1}")
    e(f"v_add_u32 v24, s{t0}, v24")
    for j in range(18): e(f"ds_read_b64 {vr(HA+2*j,2)}, v24 offset:{80*j}")
    def hb(j):
        for k in range(2):
            e(f"v_perm_b32 v{HB+2*(j%4)+k}, v{XP+(j>>1)}, v{XP+(j>>1)}, v{SELH+(j&1)*2+k}")
    hb(0); hb(1); hb(2)
    e("s_waitcnt lgkmcnt(0)")
    for j in range(18):
        cc = "0" if j == 0 else vr(HACC, 4)
        e(f"v_mfma_f32_16x16x16_bf16 {vr(HACC,4)}, {vr(HA+2*j,2)}, {vr(HB+2*(j%4),2)}, {cc}")
        if j + 3 < 18: hb(j + 3)
    e(f"s_lshl_b32 s{t0}, s{sW}, 8"); e(f"s_add_u32 s{t0}, s{t0}, {L_HP}")
    e(f"v_lshlrev_b32 v26, 2, v{vLANE}"); e(f"v_add_u32 v26, s{t0}, v26")
    e(f"v_bfe_u32 v25, v{vLANE}, 2, 2")
    e(f"v_cmp_eq_u32 vcc, 1, v25"); e(f"v_cmp_eq_u32 {sr(t4,2)}, 2, v25"); e(f"v_cmp_eq_u32 {sr(sEX,2)}, 3, v25")
    e(f"v_cndmask_b32 v27, v{HACC}, v{HACC+1}, vcc")
    e(f"v_cndmask_b32 v27, v27, v{HACC+2}, {sr(t4,2)}")
    e(f"v_cndmask_b32 v27, v27, v{HACC+3}, {sr(sEX,2)}")
    e("ds_write_b32 v26, v27")
    e("s_waitcnt lgkmcnt(0)")
    e("s_barrier")
    e(f"s_cmp_eq_u32 s{sW}, 4"); e("s_cbranch_scc0 L_noh")
    c("wave 4: reduce + publish hidden slice")
    e(f"v_lshlrev_b32 v24, 2, v{vLANE}"); e(f"v_add_u32 v24, {L_HP}, v24")
    for w in range(8): e(f"ds_read_b32 v{25+w}, v24 offset:{256*w}")
    e("s_waitcnt lgkmcnt(0)")
    for w in range(1, 8): e(f"v_add_f32 v25, v25, v{25+w}")
    bf16r(25, 25)
    e(f"v_lshlrev_b32 v26, 16, v{vB1}")
    e("v_add_f32 v25, v25, v26"); bf16r(25, 25)
    e("v_max_f32 v25, 0, v25"); e("v_mul_f32 v24, v25, v25"); bf16r(24, 24)
    e(f"v_mov_b32 v25, s{sTAG}")
    e(f"s_mul_i32 s{t0}, s{sPAIR}, 288"); e(f"s_mul_i32 s{t1}, s{sS}, 36"); e(f"s_add_u32 s{t0}, s{t0}, s{t1}")
    e(f"s_lshl_b32 s{t0}, s{t0}, 3"); e(f"s_add_u32 s{t0}, s{t0}, {WS_HG}")
    e(f"v_lshlrev_b32 v26, 3, v{vLANE}")
    e(f"v_cmp_gt_u32 vcc, 36, v{vLANE}")
    e(f"s_and_saveexec_b64 {sr(sEX,2)}, vcc")
    e(f"buffer_store_dwordx2 v[24:25], v26, {sr(rWS,4)}, s{t0} offen sc1")
    e(f"s_mov_b64 exec, {sr(sEX,2)}")
    a.lab("L_noh")
    nA = N1 + N2
    c("---- main loop")
    assert (PRIV - 4*BONUS) % NW == 0
    NSTAT = (PRIV - 4*BONUS) // NW
    if P["DYN"]:
        nS = NSTAT - NBT - nA - 2
    else:
        nS = NSTAT - NBT - nA
    assert nS > 0
    e(f"s_mov_b32 s{sCNT}, {nS}")
    e(f"s_lshl_b32 s{sCTR}, s{sPS}, 7"); e(f"s_add_u32 s{sCTR}, s{sCTR}, {WS_CTR}")
    e(f"v_mov_b32 v{vA+2}, 0")
    a.raw(".p2align 6")
    a.lab("L_loop")
    tile(0, True)
    e(f"s_sub_u32 s{sCNT}, s{sCNT}, 1")
    e(f"s_cmp_lg_u32 s{sCNT}, 0")
    e("s_cbranch_scc1 L_loop")
    pretail()
    if P["DYN"]:
        tile(0, True, mode="SA")
        a.raw(".p2align 6")
        a.lab("L_loopD")
        tile(0, True, mode="D")
        e("s_branch L_stream_done")
        a.lab("L_ctr_retry")
        c("counter not initialised yet (tag mismatch): retry the grab")
        e("s_waitcnt vmcnt(0)")
        spin_check("L_ctr_giveup")
        if P["SLEEP"]: e(f"s_sleep {P['SLEEP']}")
        issue_atomic()
        e("s_waitcnt vmcnt(0)")
        e(f"v_readfirstlane_b32 s{t0}, v{vA}"); e(f"v_readfirstlane_b32 s{t1}, v{vA+1}")
        e(f"s_cmp_lg_u32 s{t1}, s{sTAG}"); e("s_cbranch_scc1 L_ctr_retry")
        e("s_branch L_ctr_ok")
        a.lab("L_ctr_giveup")
        e(f"s_mov_b32 s{t0}, {8*PUB}")
        e("s_branch L_ctr_ok")
        a.lab("L_stream_done")
    else:
        pass

    c("---- T1: combine the 8 waves of the workgroup")
    e("s_waitcnt vmcnt(0)")
    stamp(4)
    cross_rows(vL, vt[0], "v_add_f32")
    for v in range(4): e(f"ds_write_b32 v{TV+0}, v{ACC+v} offset:{32*v}")
    e(f"v_mov_b32 v26, v{vM}"); e(f"v_mov_b32 v27, v{vL}")
    e("s_mov_b64 exec, 0x101")
    e(f"ds_write_b64 v{TV+1}, v[26:27]")
    e("s_mov_b64 exec, -1")
    e("s_waitcnt lgkmcnt(0)")
    e("s_barrier")
    e(f"s_cmp_lt_u32 s{sW}, 4"); e("s_cbranch_scc0 L_bpub")
    c("waves 0-3: WG partial for (h = w>>1, t)")
    e(f"s_lshr_b32 s{t0}, s{sW}, 1")
    e(f"s_lshl_b32 s{t1}, s{t0}, 3"); e(f"s_add_u32 s{t1}, s{t1}, {L_MLP}")
    e(f"v_mov_b32 v24, s{t1}")
    for w in range(8): e(f"ds_read_b64 {vr(28+2*w,2)}, v24 offset:{16*w}")
    for w in range(8): e(f"ds_read_b32 v{44+w}, v{TV+2} offset:{1024*w}")
    e(f"s_lshl_b32 s{t1}, s{sPS}, 3"); e(f"s_or_b32 s{t1}, s{t1}, s{sSS}")
    e(f"s_lshl_b32 s{t2}, s{t1}, 11"); e(f"s_add_u32 s{t2}, s{t2}, {WS_OG}")
    e(f"v_mov_b32 v53, s{sTAG}")
    e("s_waitcnt lgkmcnt(8)")
    e("v_max3_f32 v26, v28, v30, v32"); e("v_max3_f32 v26, v26, v34, v36"); e("v_max3_f32 v26, v26, v38, v40"); e("v_max_f32 v26, v26, v42")
    for w in range(8): e(f"v_sub_f32 v{28+2*w}, v{28+2*w}, v26")
    for w in range(8): e(f"v_mul_f32 v{28+2*w}, s{sL2E}, v{28+2*w}")
    for w in range(8): e(f"v_exp_f32 v{28+2*w}, v{28+2*w}")
    e("s_waitcnt lgkmcnt(0)")
    e("v_mul_f32 v52, v28, v44"); e("v_mul_f32 v27, v28, v29")
    for w in range(1, 8):
        e(f"v_fmac_f32 v52, v{28+2*w}, v{44+w}"); e(f"v_fmac_f32 v27, v{28+2*w}, v{29+2*w}")
    e(f"buffer_store_dwordx2 v[52:53], v{TV+3}, {sr(rWS,4)}, s{t2} offen sc1")
    e(f"s_and_b32 s{t2}, s{sW}, 1"); e(f"s_cmp_eq_u32 s{t2}, 0"); e("s_cbranch_scc0 L_ml_done")
    e(f"v_cmp_eq_u32 vcc, 1, v{vLANE}")
    e(f"s_lshl_b32 s{t2}, s{t1}, 5"); e(f"s_lshl_b32 s{t3}, s{t0}, 3"); e(f"s_add_u32 s{t2}, s{t2}, s{t3}"); e(f"s_add_u32 s{t2}, s{t2}, {WS_MLG}")
    e("v_cndmask_b32 v56, v26, v27, vcc"); e(f"v_mov_b32 v57, s{sTAG}")
    e(f"v_lshlrev_b32 v58, 4, v{vLANE}")
    e("s_mov_b64 exec, 3")
    e(f"buffer_store_dwordx2 v[56:57], v58, {sr(rWS,4)}, s{t2} offen sc1")
    e("s_mov_b64 exec, -1")
    a.lab("L_ml_done")
    stamp(5, "tail")
    c("T4: poll ML granules of the group for head h")
    e(f"s_lshl_b32 s{t2}, s{sPAIR}, 8"); e(f"s_lshl_b32 s{t3}, s{t0}, 3"); e(f"s_add_u32 s{t2}, s{t2}, s{t3}"); e(f"s_add_u32 s{t2}, s{t2}, {WS_MLG}")
    e(f"s_lshl_b32 s{t3}, s{sPAIR}, 14"); e(f"s_add_u32 s{t3}, s{t3}, {WS_OG}")
    a.lab("L_poll_ml")
    e(f"buffer_load_dwordx2 v[26:27], v{TV+4}, {sr(rWS,4)}, s{t2} offen sc1")
    e("s_waitcnt vmcnt(0)")
    e(f"v_cmp_ne_u32 vcc, s{sTAG}, v27")
    e("s_cbranch_vccz L_ml_ok")
    spin_check("L_ml_ok")
    if P["SLEEP"]: e(f"s_sleep {P['SLEEP']}")
    e("s_branch L_poll_ml")
    a.lab("L_ml_ok")
    stamp(6, "tail")
    a.lab("L_gather_o")
    e(f"s_mov_b32 s{t2}, s{t3}")
    for s_ in range(8):
        e(f"buffer_load_dwordx2 {vr(28+2*s_,2)}, v{TV+3}, {sr(rWS,4)}, s{t2} offen sc1")
        if s_ < 7: e(f"s_add_u32 s{t2}, s{t2}, 2048")
    e("v_mov_b32 v44, v26")
    e("v_max_f32_dpp v44, v44, v44 quad_perm:[1,0,3,2] row_mask:0xf bank_mask:0xf")
    e("v_max_f32_dpp v44, v44, v44 quad_perm:[2,3,0,1] row_mask:0xf bank_mask:0xf")
    e("v_max_f32_dpp v44, v44, v44 row_half_mirror row_mask:0xf bank_mask:0xf")
    e("v_mov_b32_dpp v45, v26 row_ror:8 row_mask:0xf bank_mask:0xf")
    e("v_sub_f32 v46, v26, v44"); e(f"v_mul_f32 v46, s{sL2E}, v46"); e("v_exp_f32 v46, v46")
    e("v_mul_f32 v47, v46, v45")
    e("v_add_f32_dpp v47, v47, v47 quad_perm:[1,0,3,2] row_mask:0xf bank_mask:0xf")
    e("v_add_f32_dpp v47, v47, v47 quad_perm:[2,3,0,1] row_mask:0xf bank_mask:0xf")
    e("v_add_f32_dpp v47, v47, v47 row_half_mirror row_mask:0xf bank_mask:0xf")
    e("v_rcp_f32 v47, v47")
    e("v_mul_f32 v46, v46, v47")
    for s_ in range(8): e(f"v_readlane_b32 s{sWT+s_}, v46, {s_}")
    e("s_waitcnt vmcnt(0)")
    e(f"v_xor_b32 v48, s{sTAG}, v29")
    for s_ in range(1, 8):
        e(f"v_xor_b32 v49, s{sTAG}, v{29+2*s_}"); e("v_or_b32 v48, v48, v49")
    e("v_cmp_ne_u32 vcc, 0, v48")
    e("s_cbranch_vccz L_o_ok")
    spin_check("L_o_ok")
    e("s_branch L_gather_o")
    a.lab("L_o_ok")
    e(f"v_mul_f32 v48, s{sWT}, v28")
    for s_ in range(1, 8): e(f"v_fmac_f32 v48, s{sWT+s_}, v{28+2*s_}")
    e("v_cvt_pk_bf16_f32 v48, v48, v48")
    e(f"ds_write_b16 v{TV+5}, v48")
    if DEBUG:
        e(f"v_lshlrev_b32 v50, 16, v48")
        e(f"s_lshl_b32 s{t0}, s2, 10"); e(f"s_add_u32 s{t0}, s{t0}, {WS_DBG + 0x40000}")
        e("v_lshlrev_b32 v51, 2, v0")
        e(f"buffer_store_dword v50, v51, {sr(rWS,4)}, s{t0} offen")
    e("s_waitcnt lgkmcnt(0)")
    e("s_barrier")
    stamp(7, "tail")
    c("---- T5: attention output projection slice (64 rows per wave)")
    VP = 32
    e(f"ds_read_b128 {vr(VP,4)}, v{TV+6}"); e(f"ds_read_b128 {vr(VP+4,4)}, v{TV+6} offset:16")
    e(f"s_lshl_b32 s{t2}, s{sB}, 3"); e(f"s_or_b32 s{t2}, s{t2}, s{sS}"); e(f"s_lshl_b32 s{t2}, s{t2}, 4")
    e(f"s_mul_i32 s{t3}, s{t2}, 1152"); e(f"s_add_u32 s{t3}, s{t3}, {WS_YG}")
    e(f"s_mul_i32 s{t2}, s{sHKV}, 1152"); e(f"s_add_u32 s{t2}, s{t2}, s{t3}")
    def b5(j):
        for k in range(4):
            e(f"v_perm_b32 v{B5+4*(j%4)+k}, v{VP+(j>>1)}, v{VP+(j>>1)}, v{SELQ+(j&1)*4+k}")
    e("s_waitcnt lgkmcnt(0)")
    b5(0); b5(1); b5(2)
    for j in range(16):
        y = 20 if j % 2 == 0 else 24
        cc = "0" if j < 2 else vr(y, 4)
        e(f"v_mfma_f32_16x16x32_bf16 {vr(y,4)}, {vr(WT+4*j,4)}, {vr(B5+4*(j%4),4)}, {cc}")
        if j + 3 < 16: b5(j + 3)
    for v in range(4): e(f"v_add_f32 v{20+v}, v{20+v}, v{24+v}")
    e(f"v_cndmask_b32 v28, v20, v22, {sr(sX1,2)}")
    e(f"v_cndmask_b32 v29, v21, v23, {sr(sX1,2)}")
    e(f"ds_write_b32 v{TV+7}, v28"); e(f"ds_write_b32 v{TV+7}, v29 offset:32")
    e("s_waitcnt lgkmcnt(0)")
    e("s_barrier")
    e(f"s_cmp_lt_u32 s{sW}, 3"); e("s_cbranch_scc0 L_end")
    e(f"s_cmp_lt_u32 s{sW}, 2"); e("s_cbranch_scc0 L_ypub_done")
    c("threads t<72: sum the 4 partials, publish kind A")
    for w in range(4): e(f"ds_read_b32 v{28+w}, v{TV+8} offset:{512*w}")
    e("v_cmp_gt_u32 vcc, 72, v0")
    e("s_waitcnt lgkmcnt(0)")
    e("v_add_f32 v28, v28, v29"); e("v_add_f32 v30, v30, v31"); e("v_add_f32 v28, v28, v30")
    e(f"v_mov_b32 v29, s{sTAG}")
    e(f"s_and_saveexec_b64 {sr(sEX,2)}, vcc")
    e(f"buffer_store_dwordx2 v[28:29], v{TV+9}, {sr(rWS,4)}, s{t2} offen sc1")
    e(f"s_mov_b64 exec, {sr(sEX,2)}")
    a.lab("L_ypub_done")
    stamp(8, "tail")
    if P["PROF"] == 1: e("s_mov_b32 s14, 0")
    e(f"s_cmp_eq_u32 s{sHKV}, s{sS}"); e("s_cbranch_scc0 L_end")
    e("s_branch L_final")
    a.lab("L_bpub")
    c("waves 4,5: sum the 4 MLP partials, publish kind B; waves 4-7 end")
    e(f"s_cmp_lt_u32 s{sW}, 6"); e("s_cbranch_scc0 L_end")
    e(f"v_subrev_u32 v24, 256, v0"); e("v_min_u32 v25, 71, v24")
    e(f"v_lshlrev_b32 v26, 2, v25"); e(f"v_add_u32 v26, {L_YP + 2048}, v26")
    for w in range(4): e(f"ds_read_b32 v{28+w}, v26 offset:{512*w}")
    e(f"s_lshl_b32 s{t2}, s{sB}, 3"); e(f"s_or_b32 s{t2}, s{t2}, s{sS}"); e(f"s_lshl_b32 s{t2}, s{t2}, 4")
    e(f"s_add_u32 s{t2}, s{t2}, s{sHKV}"); e(f"s_mul_i32 s{t2}, s{t2}, 1152"); e(f"s_add_u32 s{t2}, s{t2}, {WS_YG + 8}")
    e("v_lshlrev_b32 v25, 4, v25")
    e("v_cmp_gt_u32 vcc, 72, v24")
    e("s_waitcnt lgkmcnt(0)")
    e("v_add_f32 v28, v28, v29"); e("v_add_f32 v30, v30, v31"); e("v_add_f32 v28, v28, v30")
    e(f"v_mov_b32 v29, s{sTAG}")
    e(f"s_and_saveexec_b64 {sr(sEX,2)}, vcc")
    e(f"buffer_store_dwordx2 v[28:29], v25, {sr(rWS,4)}, s{t2} offen sc1")
    e(f"s_mov_b64 exec, {sr(sEX,2)}")
    if P["PROF"] == 1: e("s_mov_b32 s14, 0")
    e("s_branch L_end")
    a.lab("L_final")
    c("---- T6: final reducer for (b, s)")
    G6 = 48
    a.lab("L_gather_y")
    e(f"s_mov_b32 s{t2}, s{t3}")
    for k in range(16):
        e(f"buffer_load_dwordx2 {vr(G6+2*k,2)}, v{TV+10}, {sr(rWS,4)}, s{t2} offen sc1")
        if k < 15: e(f"s_add_u32 s{t2}, s{t2}, 1152")
    e("s_waitcnt vmcnt(0)")
    e(f"v_xor_b32 v32, s{sTAG}, v{G6+1}")
    for k in range(1, 16):
        e(f"v_xor_b32 v33, s{sTAG}, v{G6+2*k+1}"); e("v_or_b32 v32, v32, v33")
    e("v_cmp_ne_u32 vcc, 0, v32")
    e("s_cbranch_vccz L_y_ok")
    spin_check("L_y_ok")
    e("s_branch L_gather_y")
    a.lab("L_y_ok")
    stamp(9, "tail")
    idx = [G6 + 2*k for k in range(16)]
    while len(idx) > 1:
        nxt = []
        for i in range(0, len(idx), 2):
            e(f"v_add_f32 v{idx[i]}, v{idx[i]}, v{idx[i+1]}"); nxt.append(idx[i])
        idx = nxt
    bf16r(32, G6)
    e("v_mov_b32_dpp v33, v32 quad_perm:[1,0,3,2] row_mask:0xf bank_mask:0xf")
    e(f"v_lshlrev_b32 v41, 16, v{TV+11}"); e(f"v_lshlrev_b32 v42, 16, v{TV+12}")
    e(f"s_mul_i32 s{t0}, s{sB}, 1152"); e(f"s_mul_i32 s{t1}, s{sS}, 144"); e(f"s_add_u32 s{t0}, s{t0}, s{t1}")
    e("v_add_f32 v32, v41, v32"); bf16r(32, 32)
    e("v_add_f32 v33, v33, v42"); bf16r(33, 33)
    e("v_add_f32 v32, v32, v33"); e("v_cvt_pk_bf16_f32 v32, v32, v32")
    e("v_and_b32 v33, 1, v0"); e("v_cmp_eq_u32 vcc, 0, v33")
    e(f"s_mov_b64 {sr(t4,2)}, vcc")
    e("v_cmp_gt_u32 vcc, 144, v0")
    e(f"s_and_b64 vcc, vcc, {sr(t4,2)}")
    e(f"s_and_saveexec_b64 {sr(sEX,2)}, vcc")
    e(f"buffer_store_short v32, v{TV+13}, {sr(rA,4)}, s{t0} offen")
    e(f"s_mov_b64 exec, {sr(sEX,2)}")
    e(f"s_or_b32 s{t1}, s{sS}, s{sW}"); e(f"s_cmp_eq_u32 s{t1}, 0"); e("s_cbranch_scc0 L_end")
    e(f"s_lshl_b32 s{t1}, s{sB}, 8")
    e(f"v_mov_b32 v33, s{sTAG}"); e("v_mov_b32 v34, 0")
    e("s_mov_b64 exec, 1")
    e(f"buffer_store_dword v33, v34, {sr(rWS,4)}, s{t1} offen sc1")
    a.lab("L_end")
    if P["PROF"] == 3:
        stamp(10)
        e(f"s_cmp_eq_u32 s{sW}, 0"); e("s_cbranch_scc0 L_exit")
        e("s_load_dwordx2 s[4:5], s[0:1], 88")
        e("s_waitcnt lgkmcnt(0)")
        mk_srd(rA, 4, None, size=256)
        e("s_mov_b64 exec, 1")
        e("v_mov_b32 v1, 0")
        for i, (st, inv) in enumerate([(0, 1), (0, 0), (3, 1), (3, 0), (4, 1), (4, 0), (10, 1), (10, 0)]):
            if inv: e(f"s_not_b32 s{t0}, s{STAMPS[st]}"); e(f"v_mov_b32 v2, s{t0}")
            else: e(f"v_mov_b32 v2, s{STAMPS[st]}")
            e(f"buffer_atomic_umax v2, v1, {sr(rA,4)}, 0 offen offset:{4*i}")
            e("s_nop 0")
    elif P["PROF"]:
        stamp(10)
        e("s_mov_b64 exec, 1")
        e(f"s_lshl_b32 s{t0}, s2, 3"); e(f"s_add_u32 s{t0}, s{t0}, s{sW}")
        e(f"s_lshl_b32 s{t0}, s{t0}, 6"); e(f"s_add_u32 s{t0}, s{t0}, {WS_PROF}")
        e("v_mov_b32 v1, 0")
        for i in range(11):
            e(f"v_mov_b32 v2, s{STAMPS[i]}")
            e(f"buffer_store_dword v2, v1, {sr(rWS,4)}, s{t0} offen offset:{4*i}")
            e("s_nop 0")
    a.lab("L_exit")
    e("s_endpgm")
    body, n = hazard.fix(a.L)
    nv = 256
    tail = ['.section .rodata,"a"', ".p2align 6", f".amdhsa_kernel {NAME}_kernel",
            f"  .amdhsa_next_free_vgpr {(nv+7)//8*8}", "  .amdhsa_next_free_sgpr 102", f"  .amdhsa_accum_offset {(nv+7)//8*8}",
            "  .amdhsa_group_segment_fixed_size 0", "  .amdhsa_kernarg_size 104", "  .amdhsa_user_sgpr_count 2",
            "  .amdhsa_user_sgpr_kernarg_segment_ptr 1", "  .amdhsa_system_sgpr_workgroup_id_x 1",
            "  .amdhsa_float_denorm_mode_32 3", ".end_amdhsa_kernel"]
    return "\n".join(hdr + body + tail) + "\n"

if __name__ == "__main__":
    out = sys.argv[1]
    kw = {}
    for arg in sys.argv[2:]:
        k, v = arg.split("=")
        kw[k] = int(v) if v.lstrip("-").isdigit() else v.replace("+", " ").replace("none", "")
    open(out, "w").write(gen(**kw))
```

```python
import sys
sys.path.insert(0, "gen")
import hazard
NAME = "parallel_sum__gqa_block_cached__dense_activation_squared_relu__decode"

DEFAULTS = dict(TL=2, NB=1, PRE=0, KVPOL="nt", WPOL="nt", DEBUG=0, SLEEP=1, SPIN=20000, PROF=0, CPF=0, PRIO=0, BAR0=1, PUBFRAC=8, DYN=1, SMAP=1, EARLY=0, BONUS=4, WPOL2="", PMAP=0, T4M=0)

WS_EPOCH = 0
WS_HG    = 0x1000
WS_MLG   = 0x14000
WS_OG    = 0x20000
WS_YG    = 0xA0000
WS_QG    = 0xF0000
WS_CTR   = 0x18000
WS_DBG   = 0x100000
WS_PROF  = 0x1C0000
WS_SIZE  = 0x200000

L_W1  = 0
L_WW  = 49152
L_OP  = 139264
L_HP  = 147456
L_QB  = 149504
L_MLP = 150016
L_VAL = 150144
L_VALH = L_VAL + 512
L_YP  = 151296
L_XN  = L_YP + 4096
L_END = L_XN + 1280

LOG2E = 0x3FB8AA3B
SCALE = 0x3DB504F3

class A:
    def __init__(s): s.L = []
    def e(s, x): s.L.append("  " + x)
    def lab(s, x): s.L.append(x + ":")
    def c(s, x): s.L.append("  ; " + x)
    def raw(s, x): s.L.append(x)
def vr(a, n): return f"v[{a}:{a+n-1}]"
def sr(a, n): return f"s[{a}:{a+n-1}]"

def gen(**kw):
    P = dict(DEFAULTS); P.update(kw)
    TL, NB, KVPOL, WPOL, DEBUG = P["TL"], P["NB"], P["KVPOL"], P["WPOL"], P["DEBUG"]
    NW = 8
    tile_bytes = TL * 1024
    ntiles = (1 << 20) // tile_bytes // NW
    assert ntiles % NB == 0 and TL in (1, 2, 4)
    a = A(); e = a.e; c = a.c
    hdr = []
    hdr.append(f"; params: {P}")
    hdr.append(f"; @launch grid=(256,1,1) block=(512,1,1) lds={(L_END + 255)//256*256}")
    a.raw('.amdgcn_target "amdgcn-amd-amdhsa--gfx950"')
    a.raw(".text"); a.raw(f".globl {NAME}_kernel"); a.raw(".p2align 8"); a.raw(f".type {NAME}_kernel,@function")
    a.lab(f"{NAME}_kernel")

    pX, pK, pV, pWQ = 8, 10, 12, 14
    pWO, pOUT = 16, 18
    pW1, pB1, pW2, pB2 = 20, 22, 24, 26
    pWS = 28
    sB, sHKV, sS, sPAIR, sW, sTAG = 30, 31, 32, 33, 34, 35
    rK, rV, rWS, rA, rB, rC = 36, 40, 44, 48, 52, 56
    sTOFF, sCNT = 60, 61
    t0, t1, t2, t3 = 62, 63, 64, 65
    sEQ = [66, 68, 70, 72]
    sX1 = 74
    sPS, sSS, sCUR, sNXT, sCTR = 76, 77, 78, 79, 80
    sWT = 82
    sSPIN = 90
    sL2E, sSCL = 91, 92
    sEX = 94
    t4, t5 = 96, 97
    sDOFF, sDLDS, sDM, sDP, sDELTA = 93, 100, 101, 5 if False else 7, 6
    vDQ = 46
    vLANE, vKOFF, vVOFF = 1, 2, 3
    BK = 4; MASK = 8
    vM, vL, vML = 12, 13, 14
    vt = [15, 16, 17, 18, 19]
    ACC = 20
    DB = 24
    SREG = 40
    KV0 = 48
    def kreg(b, j): return (KV0 + b * (8 * TL) if b < NB else 164 + (b - NB) * 8 * TL) + j * 4
    def vreg(b, j): return kreg(b, 0) + 4 * TL + j * 4
    BONUS = P["BONUS"]
    assert 164 + BONUS * 8 * TL <= 256
    PRE = P["PRE"]
    NBT = NB + PRE
    PR0 = KV0 + NBT * 8 * TL
    assert PR0 + 70 <= 164, 'prologue scratch area would overlap the v164+ region'
    WQT = PR0
    XP = PR0 + 20
    SELQ = PR0 + 30
    SELX = PR0 + 38
    SELH = PR0 + 42
    HA = 164
    HB = 200
    vB1, vMISC = PR0 + 62, 45
    D1, D2, HACC = 24, 28, 32
    BQ = [4, 8]

    def mk_srd(r, ptr, off_s=None, size=None, size_s=None):
        if off_s is not None:
            e(f"s_add_u32 s{r}, s{ptr}, s{off_s}"); e(f"s_addc_u32 s{r+1}, s{ptr+1}, 0")
            e(f"s_and_b32 s{r+1}, s{r+1}, 0xffff")
        else:
            e(f"s_mov_b32 s{r}, s{ptr}"); e(f"s_and_b32 s{r+1}, s{ptr+1}, 0xffff")
        if size_s is not None: e(f"s_mov_b32 s{r+2}, s{size_s}")
        else: e(f"s_mov_b32 s{r+2}, {size}")
        e(f"s_mov_b32 s{r+3}, 0x20000")
    def bf16r(d, s_): e(f"v_cvt_pk_bf16_f32 v{d}, 0, v{s_}")
    def cross_rows(x, y, op):
        e(f"v_mov_b32 v{y}, v{x}")
        e(f"v_permlane16_swap_b32 v{x}, v{y}"); e("s_nop 0")
        e(f"{op} v{x}, v{x}, v{y}")
        e(f"v_mov_b32 v{y}, v{x}")
        e(f"v_permlane32_swap_b32 v{x}, v{y}"); e("s_nop 0")
        e(f"{op} v{x}, v{x}, v{y}")
    def wave_reduce(x, y, op):
        for pat in ["quad_perm:[1,0,3,2]", "quad_perm:[2,3,0,1]", "row_half_mirror", "row_mirror"]:
            e(f"{op}_dpp v{x}, v{x}, v{x} {pat} row_mask:0xf bank_mask:0xf")
        cross_rows(x, y, op)
    STAMPS = [3, 0, 1, 98, 99, 10, 11, 12, 13, 14, 15]
    def stamp(i, mode="all"):
        if not P["PROF"]: return
        if mode == "pro" and P["PROF"] != 2: return
        if mode == "tail" and P["PROF"] != 1: return
        e("s_memrealtime s[4:5]"); e("s_waitcnt lgkmcnt(0)"); e(f"s_mov_b32 s{STAMPS[i]}, s4")
    def spin_check(okl):
        e(f"s_sub_u32 s{sSPIN}, s{sSPIN}, 1"); e(f"s_cmp_eq_u32 s{sSPIN}, 0"); e(f"s_cbranch_scc1 {okl}")

    c("---- phase 0: ids, pointers")
    e("s_cmp_ge_u32 s2, 256")
    e("s_cbranch_scc1 L_exit")
    e(f"s_load_dwordx8 {sr(8,8)}, s[0:1], 0")
    e(f"s_load_dwordx2 {sr(pWS,2)}, s[0:1], 96")
    e(f"s_load_dwordx8 {sr(20,8)}, s[0:1], 48")
    e(f"s_load_dwordx2 {sr(pWO,2)}, s[0:1], 32")
    e(f"s_load_dwordx2 {sr(pOUT,2)}, s[0:1], 80")
    if P["CPF"] & 1:
        c("pull the kernel's own code into L2 (read-only, speed only)")
        e("s_getpc_b64 s[4:5]")
        a.lab("L_pc")
        e("v_lshlrev_b32 v46, 7, v0")
        e("v_cmp_gt_u32 vcc, L_exit-L_pc, v46")
        e(f"s_and_saveexec_b64 {sr(sEX,2)}, vcc")
        e("s_cbranch_execz L_nocpf")
        e("global_load_dword v47, v46, s[4:5] nt")
        a.lab("L_nocpf")
        e(f"s_mov_b64 exec, {sr(sEX,2)}")
    stamp(0)
    e(f"s_and_b32 s{t0}, s2, 7")
    e(f"s_lshr_b32 s{t1}, s2, 3")
    e(f"s_and_b32 s{sS}, s{t1}, 7")
    e(f"s_bfe_u32 s{t2}, s{t1}, 0x10003")
    e(f"s_lshr_b32 s{sB}, s{t1}, 4")
    e(f"s_lshl_b32 s{t2}, s{t2}, 3")
    e(f"s_or_b32 s{sHKV}, s{t0}, s{t2}")
    e(f"s_lshl_b32 s{sPAIR}, s{sB}, 4")
    e(f"s_or_b32 s{sPAIR}, s{sPAIR}, s{sHKV}")
    if P["SMAP"]:
        e(f"s_lshr_b32 s{sPS}, s2, 3"); e(f"s_and_b32 s{sSS}, s2, 7")
    else:
        e(f"s_mov_b32 s{sPS}, s{sPAIR}"); e(f"s_mov_b32 s{sSS}, s{sS}")
    e(f"v_and_b32 v{vLANE}, 63, v0")
    e(f"v_lshrrev_b32 v{vt[0]}, 6, v0")
    e(f"v_mul_u32_u24 v5, 24, v{vLANE}")
    e(f"v_readfirstlane_b32 s{sW}, v{vt[0]}")
    vG, vR = vt[1], vt[2]
    e(f"v_lshrrev_b32 v{vG}, 4, v{vLANE}")
    e(f"v_and_b32 v{vR}, 15, v{vLANE}")
    e(f"v_lshrrev_b32 v{vt[3]}, 2, v{vR}")
    e(f"v_mul_u32_u24 v4, 18, v{vG}"); e(f"v_add_u32 v4, v4, v{vt[3]}"); e("v_lshlrev_b32 v4, 13, v4")
    e(f"v_and_b32 v{vt[4]}, 3, v{vR}")
    e(f"v_lshl_add_u32 v4, v{vt[4]}, 4, v4")
    e(f"s_mul_i32 s{t0}, s{sB}, 1152")
    e(f"s_lshl_b32 s{t3}, s{sB}, 8")
    e(f"s_lshl_b32 s{t1}, s{sHKV}, 9"); e(f"s_lshl_b32 s{t2}, s{sS}, 6"); e(f"s_add_u32 s{t1}, s{t1}, s{t2}")
    e(f"s_sub_u32 s{t4}, {576*8192}, s{t1}")
    e(f"s_mul_i32 s{t2}, s{sW}, {72*8192}")
    if P["PRIO"]:
        e(f"s_cmp_ge_u32 s{sW}, 4"); e("s_cbranch_scc0 L_noprio"); e("s_setprio 1"); a.lab("L_noprio")
    e("s_waitcnt lgkmcnt(0)")
    XS = 24
    mk_srd(rA, pX, off_s=t0, size=1152)
    e(f"s_cmp_eq_u32 s{sW}, 0"); e("s_cbranch_scc0 L_nox")
    e(f"buffer_load_dwordx4 {vr(XS,4)}, v5, {sr(rA,4)}, 0 offen nt")
    e(f"buffer_load_dwordx2 {vr(XS+4,2)}, v5, {sr(rA,4)}, 0 offen offset:16 nt")
    a.lab("L_nox")
    mk_srd(rB, pWQ, off_s=t1, size_s=t4)
    for t in range(5):
        e(f"buffer_load_dwordx4 {vr(WQT+4*t,4)}, v4, {sr(rB,4)}, s{t2} offen {WPOL}")
        if t < 4: e(f"s_add_u32 s{t2}, s{t2}, {4*8192}")
    e(f"s_load_dword s{sTAG}, {sr(pWS,2)}, s{t3}")
    stamp(1, "pro")
    c("---- lane constants / masks / selectors")
    e(f"s_mov_b32 s{sL2E}, {LOG2E:#x}")
    e(f"s_mov_b32 s{sSCL}, {SCALE:#x}")
    e(f"v_lshlrev_b32 v{vt[3]}, 8, v{vt[3]}")
    e(f"v_lshl_add_u32 v{vt[3]}, v{vG}, 6, v{vt[3]}")
    e(f"v_lshl_add_u32 v{vKOFF}, v{vt[4]}, 4, v{vt[3]}")
    e(f"v_lshlrev_b32 v{vVOFF}, 4, v{vLANE}")
    e(f"v_mul_u32_u24 v{vMISC}, 36, v{vG}")
    e(f"v_and_b32 v{vt[0]}, 7, v{vLANE}")
    e(f"v_lshrrev_b32 v{vt[1]}, 1, v{vt[0]}")
    for k in range(4): e(f"v_cmp_eq_u32 {sr(sEQ[k],2)}, {k}, v{vt[1]}")
    e(f"v_bfe_u32 v{vt[1]}, v{vLANE}, 3, 1")
    e(f"v_cmp_eq_u32 {sr(sX1,2)}, 1, v{vt[1]}")
    def make_selq(SEL, ta, tb, tc):
        e(f"v_and_b32 v{ta}, 1, v{vLANE}")
        e(f"v_cmp_eq_u32 vcc, 1, v{ta}")
        e(f"v_mov_b32 v{ta}, 0x0c0c0100"); e(f"v_mov_b32 v{tb}, 0x01000c0c")
        e(f"v_cndmask_b32 v{ta}, v{ta}, v{tb}, vcc")
        e(f"v_mov_b32 v{tb}, 0x0c0c0302"); e(f"v_mov_b32 v{tc}, 0x03020c0c")
        e(f"v_cndmask_b32 v{tb}, v{tb}, v{tc}, vcc")
        e(f"v_mov_b32 v{tc}, 0x0c0c0c0c")
        for k in range(4):
            e(f"v_cndmask_b32 v{SEL+k}, v{tc}, v{ta}, {sr(sEQ[k],2)}")
            e(f"v_cndmask_b32 v{SEL+4+k}, v{tc}, v{tb}, {sr(sEQ[k],2)}")
    make_selq(SELQ, 6, 7, 8)
    for k in range(4):
        e(f"v_cndmask_b32 v{SELX+k}, v{SELQ+k}, v{SELQ+4+k}, {sr(sX1,2)}")
    e(f"v_bfe_u32 v9, v{vLANE}, 1, 1")
    e("v_cmp_eq_u32 vcc, 1, v9")
    e(f"v_cndmask_b32 v{SELH+0}, v6, v8, vcc"); e(f"v_cndmask_b32 v{SELH+1}, v8, v6, vcc")
    e(f"v_cndmask_b32 v{SELH+2}, v7, v8, vcc"); e(f"v_cndmask_b32 v{SELH+3}, v8, v7, vcc")
    c("---- K/V tile 0 prefetch")
    e(f"s_lshl_b32 s{t0}, s{sPS}, 23")
    mk_srd(rK, pK, off_s=t0, size=1 << 23)
    mk_srd(rV, pV, off_s=t0, size=1 << 23)
    e(f"s_mul_i32 s{sTOFF}, s{sW}, {tile_bytes}"); e(f"s_lshl_b32 s{t0}, s{sSS}, 20"); e(f"s_add_u32 s{sTOFF}, s{sTOFF}, s{t0}")
    if BONUS: e(f"s_add_u32 s{sTOFF}, s{sTOFF}, {4*BONUS*tile_bytes}")
    def issue_k(b, so=None):
        for j in range(TL):
            e(f"buffer_load_dwordx4 {vr(kreg(b,j),4)}, v{vKOFF}, {sr(rK,4)}, s{so or sTOFF} offen offset:{j*1024} {KVPOL}")
    def issue_v(b, so=None):
        for j in range(TL):
            e(f"buffer_load_dwordx4 {vr(vreg(b,j),4)}, v{vVOFF}, {sr(rV,4)}, s{so or sTOFF} offen offset:{j*1024} {KVPOL}")
        if so is None: e(f"s_add_u32 s{sTOFF}, s{sTOFF}, {tile_bytes*NW}")
    e("s_barrier")
    def issue_kv_all():
        for b in range(NB):
            issue_k(b); issue_v(b)
    def issue_kv_pre():
        for b in range(NB, NBT):
            issue_k(b); issue_v(b)
    nKV0 = NB * 2 * TL
    e(f"s_cmp_eq_u32 s{sW}, 0"); e("s_cbranch_scc1 L_ln")
    issue_kv_all()
    stamp(2, "pro")
    e("s_branch L_ln_done")
    a.lab("L_ln")
    c("---- LayerNorm by wave 0 (lanes < 48 hold 12 elements each)")
    e("s_waitcnt vmcnt(5)")
    stamp(5, "pro")
    XF = 30
    for i in range(6):
        e(f"v_lshlrev_b32 v{XF+2*i}, 16, v{XS+i}")
        e(f"v_and_b32 v{XF+2*i+1}, 0xffff0000, v{XS+i}")
    e(f"v_pk_add_f32 v[12:13], {vr(XF,2)}, {vr(XF+2,2)}")
    e(f"v_pk_add_f32 v[14:15], {vr(XF+4,2)}, {vr(XF+6,2)}")
    e(f"v_pk_add_f32 v[16:17], {vr(XF+8,2)}, {vr(XF+10,2)}")
    e("v_pk_add_f32 v[12:13], v[12:13], v[14:15]")
    e("v_pk_add_f32 v[12:13], v[12:13], v[16:17]")
    e("v_add_f32 v14, v12, v13")
    wave_reduce(14, 15, "v_add_f32")
    e(f"v_mul_f32 v14, {0xBAE38E39:#x}, v14")
    e("v_mov_b32 v15, v14")
    e(f"v_pk_add_f32 v[12:13], {vr(XF,2)}, v[14:15]")
    e("v_pk_mul_f32 v[16:17], v[12:13], v[12:13]")
    for i in range(1, 6):
        e(f"v_pk_add_f32 v[12:13], {vr(XF+2*i,2)}, v[14:15]")
        e("v_pk_fma_f32 v[16:17], v[12:13], v[12:13], v[16:17]")
    e("v_add_f32 v16, v16, v17")
    e(f"v_cmp_gt_u32 vcc, 48, v{vLANE}")
    e("v_cndmask_b32 v16, 0, v16, vcc")
    wave_reduce(16, 17, "v_add_f32")
    e(f"v_mul_f32 v16, {0x3AE38E39:#x}, v16")
    bf16r(16, 16)
    e(f"v_add_f32 v16, {0x3727C5AC:#x}, v16")
    bf16r(16, 16)
    e("v_sqrt_f32 v16, v16")
    bf16r(16, 16)
    e("v_rcp_f32 v16, v16")
    bf16r(14, 14)
    e("v_mov_b32 v15, v14")
    e("v_mov_b32 v17, v16")
    for i in range(6):
        e(f"v_pk_add_f32 {vr(XF+2*i,2)}, {vr(XF+2*i,2)}, v[14:15]")
    for i in range(6):
        e(f"v_cvt_pk_bf16_f32 v{XS+i}, v{XF+2*i}, v{XF+2*i+1}")
    for i in range(6):
        e(f"v_lshlrev_b32 v{XF+2*i}, 16, v{XS+i}")
        e(f"v_and_b32 v{XF+2*i+1}, 0xffff0000, v{XS+i}")
    for i in range(6):
        e(f"v_pk_mul_f32 {vr(XF+2*i,2)}, {vr(XF+2*i,2)}, v[16:17]")
    for i in range(6):
        e(f"v_cvt_pk_bf16_f32 v{XS+i}, v{XF+2*i}, v{XF+2*i+1}")
    e(f"v_add_u32 v5, {L_XN}, v5")
    e("s_mov_b32 exec_hi, 0xffff")
    for i in range(3): e(f"ds_write_b64 v5, {vr(XS+2*i,2)} offset:{8*i}")
    e("s_mov_b32 exec_hi, -1")
    issue_kv_all()
    e("s_waitcnt lgkmcnt(0)")
    a.lab("L_ln_done")
    e(f"s_mul_i32 s{t0}, s{sW}, 144"); e(f"s_add_u32 s{t0}, s{t0}, {L_XN}")
    e(f"v_add_u32 v{vMISC}, s{t0}, v{vMISC}")
    e("s_barrier")
    for i in range(4): e(f"ds_read2_b32 {vr(XP+2*i,2)}, v{vMISC} offset0:{2*i} offset1:{2*i+1}")
    e(f"ds_read_b32 v{XP+8}, v{vMISC} offset:32")
    e("s_waitcnt lgkmcnt(0)")
    stamp(6, "pro")
    c("---- q slice: 32 columns, 9 MFMAs")
    def bq(setr, pair):
        for k in range(4): e(f"v_perm_b32 v{setr+k}, v{XP+pair}, v{XP+pair}, v{SELX+k}")
    bq(BQ[0], 0); bq(BQ[1], 1)
    e(f"s_waitcnt vmcnt({nKV0})")
    for t in range(5):
        cc = "0" if t == 0 else vr(D1, 4)
        e(f"v_mfma_f32_16x16x32_bf16 {vr(D1,4)}, {vr(WQT+4*t,4)}, {vr(BQ[0],4)}, {cc}")
        if t < 4:
            cc = "0" if t == 0 else vr(D2, 4)
            e(f"v_mfma_f32_16x16x32_bf16 {vr(D2,4)}, {vr(WQT+4*t,4)}, {vr(BQ[1],4)}, {cc}")
            bq(BQ[0], 2*t + 2)
            if t < 3: bq(BQ[1], 2*t + 3)
    stamp(7, "pro")
    e(f"v_lshrrev_b32 v4, 4, v{vLANE}"); e("v_lshlrev_b32 v4, 7, v4")
    e(f"v_and_b32 v5, 7, v{vLANE}"); e("v_lshl_add_u32 v4, v5, 2, v4")
    e(f"s_lshl_b32 s{t0}, s{sW}, 9"); e(f"s_add_u32 s{t0}, s{t0}, {L_OP}")
    e(f"v_add_u32 v4, s{t0}, v4")
    e(f"s_mov_b32 s{t4}, 0"); e(f"s_mov_b32 s{t5}, -1")
    for v in range(4):
        e(f"v_cndmask_b32 v{5+v}, v{D1+v}, v{D2+v}, {sr(t4,2)}")
    e(f"s_mov_b32 s{t4}, 0xff0000ff"); e(f"s_mov_b32 s{t5}, 0xff0000ff")
    e(f"s_mov_b64 exec, {sr(t4,2)}")
    for v in range(4):
        e(f"ds_write_b32 v4, v{5+v} offset:{32*v}")
    e("s_mov_b64 exec, -1")
    mk_srd(rWS, pWS, None, size=WS_SIZE)
    e("s_waitcnt lgkmcnt(0)")
    e(f"s_mul_i32 s{sTAG}, s{sTAG}, 1664525"); e(f"s_add_u32 s{sTAG}, s{sTAG}, 1013904223")
    e(f"s_mov_b32 s{sSPIN}, {P['SPIN']}")
    e("s_barrier")
    stamp(8, "pro")
    e(f"s_cmp_eq_u32 s{sW}, 0"); e("s_cbranch_scc0 L_notw0")
    c("wave 0: reduce + publish the q slice")
    e(f"v_lshrrev_b32 v4, 5, v{vLANE}"); e("v_lshlrev_b32 v4, 11, v4")
    e(f"v_and_b32 v5, 31, v{vLANE}"); e("v_lshl_add_u32 v4, v5, 2, v4"); e(f"v_add_u32 v4, {L_OP}, v4")
    for i in range(16): e(f"ds_read_b32 v{24+i}, v4 offset:{128*i}")
    e("s_waitcnt lgkmcnt(0)")
    idx = [24 + i for i in range(16)]
    while len(idx) > 1:
        nxt = []
        for i in range(0, len(idx), 2):
            e(f"v_add_f32 v{idx[i]}, v{idx[i]}, v{idx[i+1]}"); nxt.append(idx[i])
        idx = nxt
    e("v_mov_b32 v25, v24"); e("v_permlane32_swap_b32 v24, v25"); e("s_nop 0"); e("v_add_f32 v24, v24, v25")
    bf16r(24, 24)
    e(f"v_mov_b32 v25, s{sTAG}")
    e(f"s_lshl_b32 s{t0}, s{sPAIR}, 8"); e(f"s_lshl_b32 s{t1}, s{sS}, 5"); e(f"s_add_u32 s{t0}, s{t0}, s{t1}")
    e(f"s_lshl_b32 s{t0}, s{t0}, 3"); e(f"s_add_u32 s{t0}, s{t0}, {WS_QG}")
    e("v_lshlrev_b32 v5, 3, v5")
    e("s_mov_b32 exec_hi, 0")
    e(f"buffer_store_dwordx2 v[24:25], v5, {sr(rWS,4)}, s{t0} offen sc1")
    e("s_mov_b32 exec_hi, -1")
    if P["DYN"]:
        e(f"s_cmp_eq_u32 s{sSS}, 0"); e("s_cbranch_scc0 L_notw0")
        e(f"s_lshl_b32 s{t0}, s{sPS}, 7"); e(f"s_add_u32 s{t0}, s{t0}, {WS_CTR}")
        e("v_mov_b32 v24, 0"); e(f"v_mov_b32 v26, 0"); e(f"v_mov_b32 v27, s{sTAG}")
        e("s_mov_b64 exec, 1")
        e(f"buffer_store_dwordx2 v[26:27], v24, {sr(rWS,4)}, s{t0} offen sc1")
        e("s_mov_b64 exec, -1")
    a.lab("L_notw0")
    issue_kv_pre()
    c("DMA setup: phase 1 = w1 slice (6 steps), phase 2 = wo/w2 slice (11 steps)")
    e(f"s_mul_i32 s{t0}, s{sHKV}, 576"); e(f"s_mul_i32 s{t1}, s{sS}, 72"); e(f"s_add_u32 s{t0}, s{t0}, s{t1}")
    mk_srd(rA, pB1, None, size=4608*2)
    e(f"v_lshlrev_b32 v16, 1, v{vLANE}")
    e(f"buffer_load_ushort v{vB1}, v16, {sr(rA,4)}, s{t0} offen nt")
    e(f"s_and_b32 s{sDELTA}, s{t0}, 15")
    e(f"s_andn2_b32 s{t0}, s{t0}, 15")
    e(f"s_mul_i32 s{t1}, s{sW}, {72*9216}")
    e(f"s_add_u32 s{sDOFF}, s{t0}, s{t1}")
    mk_srd(rC, pW1, None, size=576*9216)
    e(f"s_mul_i32 s{sDLDS}, s{sW}, 6144")
    if L_W1: e(f"s_add_u32 s{sDLDS}, s{sDLDS}, {L_W1}")
    e(f"s_movk_i32 s{sDM}, 13108"); e(f"s_movk_i32 s{sDP}, {9216-80}")
    e(f"v_mov_b32 v{vDQ}, v{vLANE}")
    def dma_switch():
        e(f"s_cmp_lt_u32 s{sW}, 4")
        e(f"s_cselect_b32 s{rC}, s{pWO}, s{pW2}")
        e(f"s_cselect_b32 s{rC+1}, s{pWO+1}, s{pW2+1}")
        e(f"s_mov_b32 s{t4}, {4096*1152}")
        e(f"s_cselect_b32 s{rC+2}, s{t4}, {4608*1152}")
        e(f"s_and_b32 s{rC+1}, s{rC+1}, 0xffff")
        e(f"s_mov_b32 s{rC+3}, 0x20000")
        e(f"s_lshl_b32 s{t0}, s{sHKV}, 8"); e(f"s_lshl_b32 s{t1}, s{sW}, 6"); e(f"s_add_u32 s{t0}, s{t0}, s{t1}")
        e(f"s_mul_i32 s{t1}, s{sHKV}, 288"); e(f"s_mul_i32 s{t2}, s{sW}, 72"); e(f"s_add_u32 s{t1}, s{t1}, s{t2}")
        e(f"s_sub_u32 s{t1}, s{t1}, 288")
        e(f"s_cmp_lt_u32 s{sW}, 4")
        e(f"s_cselect_b32 s{t0}, s{t0}, s{t1}")
        e(f"s_mul_i32 s{t0}, s{t0}, 1152"); e(f"s_mul_i32 s{t1}, s{sS}, 144"); e(f"s_add_u32 s{sDOFF}, s{t0}, s{t1}")
        e(f"s_mul_i32 s{sDLDS}, s{sW}, 11264"); e(f"s_add_u32 s{sDLDS}, s{sDLDS}, {L_WW}")
        e(f"s_movk_i32 s{sDM}, 7282"); e(f"s_movk_i32 s{sDP}, 1008")
        e(f"v_mov_b32 v{vDQ}, v{vLANE}")
    def dma_step():
        e(f"v_mul_u32_u24 v47, s{sDM}, v{vDQ}"); e("v_lshrrev_b32 v47, 16, v47")
        e(f"v_mul_u32_u24 v47, s{sDP}, v47")
        e(f"v_lshl_add_u32 v47, v{vDQ}, 4, v47")
        e(f"s_mov_b32 m0, s{sDLDS}")
        e(f"v_add_u32 v{vDQ}, 64, v{vDQ}")
        e(f"buffer_load_dwordx4 v47, {sr(rC,4)}, s{sDOFF} offen {P['WPOL2']} lds")
        e(f"s_add_u32 s{sDLDS}, s{sDLDS}, 1024")
    e(f"v_and_b32 v16, 1, v{vLANE}"); e("v_cmp_eq_u32 vcc, 1, v16")
    e("v_mov_b32 v16, 0xffff"); e("v_mov_b32 v17, 0xffff0000")
    e("v_cndmask_b32 v16, v16, v17, vcc")
    for k in range(4): e(f"v_cndmask_b32 v{MASK+k}, 0, v16, {sr(sEQ[k],2)}")
    e(f"v_mov_b32 v{vM}, 0xff800000"); e(f"v_mov_b32 v{vML}, 0xff800000"); e(f"v_mov_b32 v{vL}, 0")
    for v in range(4): e(f"v_mov_b32 v{ACC+v}, 0")
    if BONUS:
        e(f"s_cmp_lt_u32 s{sW}, 4"); e("s_cbranch_scc1 L_nobonus")
        e(f"s_sub_u32 s{t0}, s{sW}, 4"); e(f"s_mul_i32 s{t0}, s{t0}, {BONUS*tile_bytes}")
        e(f"s_lshl_b32 s{t1}, s{sSS}, 20"); e(f"s_add_u32 s{t0}, s{t0}, s{t1}")
        for i in range(BONUS):
            issue_k(NB + i, t0); issue_v(NB + i, t0)
            if i + 1 < BONUS: e(f"s_add_u32 s{t0}, s{t0}, {tile_bytes}")
        a.lab("L_nobonus")
    if P["EARLY"]:
        e(f"s_cmp_lt_u32 s{sW}, 4"); e("s_cbranch_scc1 L_noearly")
        for i in range(P["EARLY"]): dma_step()
        e(f"s_mul_i32 s{sDLDS}, s{sW}, 6144"); e(f"v_mov_b32 v{vDQ}, v{vLANE}")
        a.lab("L_noearly")
    e(f"s_cmp_lt_u32 s{sW}, 4"); e("s_cbranch_scc0 L_pro_join")
    c("waves 0-3: gather q of the group")
    e(f"s_lshl_b32 s{t0}, s{sPS}, 11"); e(f"s_add_u32 s{t0}, s{t0}, {WS_QG}")
    e("v_lshlrev_b32 v4, 3, v0")
    a.lab("L_gather_q")
    e(f"buffer_load_dwordx2 v[6:7], v4, {sr(rWS,4)}, s{t0} offen sc1")
    e("s_waitcnt vmcnt(0)")
    e(f"v_cmp_ne_u32 vcc, s{sTAG}, v7")
    e("s_cbranch_vccz L_q_ok")
    spin_check("L_q_ok")
    if P["SLEEP"]: e(f"s_sleep {P['SLEEP']}")
    e("s_branch L_gather_q")
    a.lab("L_q_ok")
    e(f"v_lshlrev_b32 v4, 1, v0"); e(f"v_add_u32 v4, {L_QB}, v4")
    e("ds_write_b16_d16_hi v4, v6")
    if DEBUG:
        e(f"s_lshl_b32 s{t0}, s2, 10"); e(f"s_add_u32 s{t0}, s{t0}, {WS_DBG}")
        e("v_lshlrev_b32 v7, 2, v0")
        e(f"buffer_store_dword v6, v7, {sr(rWS,4)}, s{t0} offen")
    a.lab("L_pro_join")
    stamp(9, "pro")
    e("s_waitcnt lgkmcnt(0)")
    e("s_barrier")
    c("BK operand: QB + h*256 + (a+4g)*16")
    e(f"v_bfe_u32 v15, v{vLANE}, 3, 1"); e("v_lshlrev_b32 v15, 8, v15")
    e(f"v_lshrrev_b32 v16, 4, v{vLANE}"); e("v_lshl_add_u32 v15, v16, 6, v15")
    e(f"v_and_b32 v16, 3, v{vLANE}"); e("v_lshl_add_u32 v15, v16, 4, v15")
    e(f"v_add_u32 v15, {L_QB}, v15")
    e(f"ds_read_b128 {vr(BK,4)}, v15")
    e("s_waitcnt lgkmcnt(0)")
    stamp(3)

    NOUT = 2 * TL * NB - TL
    vA = PR0 + 64
    RANGE = (1 << 20) // tile_bytes
    PUB = RANGE // P["PUBFRAC"] if P["DYN"] else 0
    PRIV = RANGE - PUB
    OOB = 1 << 23
    def issue_atomic():
        e(f"v_mov_b32 v{vA}, 1"); e(f"v_mov_b32 v{vA+1}, 0"); e(f"v_mov_b32 v{vA+2}, 0")
        e("s_mov_b64 exec, 1")
        e(f"buffer_atomic_add_x2 {vr(vA,2)}, v{vA+2}, {sr(rWS,4)}, s{sCTR} offen sc0")
        e("s_mov_b64 exec, -1")
    WT = 164; TV = 236; B5 = PR0 + 46
    NV = 256

    def pretail():
        c("---- pre-tail: everything of the tail that does not depend on the attention result")
        if P["CPF"] & 2:
            e("s_getpc_b64 s[4:5]")
            a.lab("L_pc2")
            e(f"v_lshlrev_b32 v{TV+14}, 7, v{vLANE}")
            e(f"v_add_u32 v{TV+14}, L_stream_done-L_pc2, v{TV+14}")
            e(f"v_cmp_gt_u32 vcc, L_exit-L_pc2, v{TV+14}")
            e(f"s_and_saveexec_b64 {sr(sEX,2)}, vcc")
            e("s_cbranch_execz L_nocpf2")
            e(f"global_load_dword v{TV+15}, v{TV+14}, s[4:5]")
            a.lab("L_nocpf2")
            e(f"s_mov_b64 exec, {sr(sEX,2)}")
        e(f"v_bfe_u32 v24, v{vLANE}, 3, 1"); e(f"v_lshlrev_b32 v{TV+0}, 9, v24")
        e(f"v_lshrrev_b32 v25, 4, v{vLANE}"); e(f"v_lshl_add_u32 v{TV+0}, v25, 7, v{TV+0}")
        e(f"v_and_b32 v26, 7, v{vLANE}"); e(f"v_lshl_add_u32 v{TV+0}, v26, 2, v{TV+0}")
        e(f"s_lshl_b32 s{t0}, s{sW}, 10"); e(f"s_add_u32 s{t0}, s{t0}, {L_OP}")
        e(f"v_add_u32 v{TV+0}, s{t0}, v{TV+0}")
        e(f"v_lshlrev_b32 v{TV+1}, 3, v24")
        e(f"s_lshl_b32 s{t0}, s{sW}, 4"); e(f"s_add_u32 s{t0}, s{t0}, {L_MLP}")
        e(f"v_add_u32 v{TV+1}, s{t0}, v{TV+1}")
        e(f"v_lshlrev_b32 v{TV+7}, 7, v25"); e(f"v_lshl_add_u32 v{TV+7}, v24, 6, v{TV+7}"); e(f"v_lshl_add_u32 v{TV+7}, v26, 2, v{TV+7}")
        e(f"s_lshl_b32 s{t0}, s{sW}, 9"); e(f"s_add_u32 s{t0}, s{t0}, {L_YP}")
        e(f"v_add_u32 v{TV+7}, s{t0}, v{TV+7}")
        e(f"s_cmp_lt_u32 s{sW}, 4")
        e(f"s_cselect_b32 s{t0}, 16, 18")
        e(f"v_mul_u32_u24 v27, s{t0}, v25")
        e("v_mul_u32_u24 v28, 9, v27")
        e(f"v_and_b32 v29, 15, v{vLANE}"); e("v_min_u32 v29, 8, v29"); e("v_add_u32 v28, v28, v29")
        e("v_lshlrev_b32 v28, 4, v28")
        e(f"s_mul_i32 s{t2}, s{sW}, 11264"); e(f"s_add_u32 s{t2}, s{t2}, {L_WW}")
        e(f"v_add_u32 v28, s{t2}, v28")
        e(f"v_lshlrev_b32 v{TV+2}, 2, v0"); e(f"v_add_u32 v{TV+2}, {L_OP}, v{TV+2}")
        e(f"v_lshlrev_b32 v{TV+3}, 3, v0")
        e(f"v_lshlrev_b32 v{TV+4}, 5, v26"); e(f"v_lshl_add_u32 v{TV+4}, v24, 4, v{TV+4}")
        e(f"v_lshlrev_b32 v{TV+5}, 1, v0"); e(f"v_add_u32 v{TV+5}, {L_VAL}, v{TV+5}")
        e(f"v_lshlrev_b32 v{TV+6}, 5, v25"); e(f"s_lshl_b32 s{t1}, s{sW}, 7"); e(f"s_add_u32 s{t1}, s{t1}, {L_VAL}")
        e(f"v_add_u32 v{TV+6}, s{t1}, v{TV+6}")
        e(f"v_min_u32 v30, 71, v0")
        e(f"v_lshlrev_b32 v{TV+8}, 2, v30"); e(f"v_add_u32 v{TV+8}, {L_YP}, v{TV+8}")
        e(f"v_lshlrev_b32 v{TV+9}, 4, v30")
        e(f"v_min_u32 v30, 143, v0"); e(f"v_lshlrev_b32 v{TV+10}, 3, v30")
        e(f"v_lshrrev_b32 v30, 1, v30"); e(f"v_lshlrev_b32 v{TV+13}, 1, v30")
        e(f"s_cmp_lt_u32 s{sW}, 4"); e("s_cbranch_scc0 L_pt_b")
        c("waves 0-3")
        for j in range(16): e(f"ds_read_b128 {vr(WT+4*j,4)}, v28 offset:{144*j}")
        e(f"s_mul_i32 s{t0}, s{sB}, 1152"); e(f"s_mul_i32 s{t1}, s{sS}, 144"); e(f"s_add_u32 s{t0}, s{t0}, s{t1}")
        mk_srd(rA, pX, None, size=2304)
        mk_srd(rB, pB2, None, size=1152)
        e(f"buffer_load_ushort v{TV+11}, v{TV+13}, {sr(rA,4)}, s{t0} offen nt")
        e(f"buffer_load_ushort v{TV+12}, v{TV+13}, {sr(rB,4)}, s{t1} offen nt")
        mk_srd(rA, pOUT, None, size=2304)
        e("s_waitcnt lgkmcnt(0)")
        e("s_branch L_pt_done")
        a.lab("L_pt_b")
        c("waves 4-7: MLP down projection for this column slice (72 hidden rows per wave)")
        e(f"s_mul_i32 s{t0}, s{sPAIR}, 288"); e(f"s_mul_i32 s{t1}, s{sW}, 72"); e(f"s_add_u32 s{t0}, s{t0}, s{t1}")
        e(f"s_sub_u32 s{t0}, s{t0}, 288"); e(f"s_lshl_b32 s{t0}, s{t0}, 3"); e(f"s_add_u32 s{t0}, s{t0}, {WS_HG}")
        e(f"v_lshlrev_b32 v30, 3, v{vLANE}")
        e(f"v_and_b32 v31, 7, v{vLANE}"); e("v_lshlrev_b32 v31, 3, v31")
        for j in range(18): e(f"ds_read_b128 {vr(WT+4*j,4)}, v28 offset:{144*j}")
        a.lab("L_gather_h")
        e(f"buffer_load_dwordx2 v[32:33], v30, {sr(rWS,4)}, s{t0} offen sc1")
        e(f"buffer_load_dwordx2 v[34:35], v31, {sr(rWS,4)}, s{t0} offen offset:512 sc1")
        e("s_waitcnt vmcnt(0)")
        e(f"v_xor_b32 v36, s{sTAG}, v33"); e(f"v_xor_b32 v37, s{sTAG}, v35"); e("v_or_b32 v36, v36, v37")
        e("v_cmp_ne_u32 vcc, 0, v36")
        e("s_cbranch_vccz L_h_ok")
        spin_check("L_h_ok")
        if P["SLEEP"]: e(f"s_sleep {P['SLEEP']}")
        e("s_branch L_gather_h")
        a.lab("L_h_ok")
        e(f"s_mul_i32 s{t1}, s{sW}, 144"); e(f"s_add_u32 s{t1}, s{t1}, {L_VALH - 576}")
        e(f"v_lshlrev_b32 v36, 1, v{vLANE}"); e(f"v_add_u32 v36, s{t1}, v36")
        e("ds_write_b16_d16_hi v36, v32")
        e(f"v_and_b32 v37, 7, v{vLANE}"); e("v_lshlrev_b32 v37, 1, v37"); e(f"v_add_u32 v37, s{t1}, v37")
        e("ds_write_b16_d16_hi v37, v34 offset:128")
        e("v_lshlrev_b32 v27, 1, v27"); e(f"v_add_u32 v27, s{t1}, v27")
        e("s_waitcnt lgkmcnt(0)")
        VPB = 32
        for t in range(9): e(f"ds_read_b32 v{VPB+t}, v27 offset:{4*t}")
        e("s_waitcnt lgkmcnt(0)")
        BB = 24
        def b5(j):
            for k in range(4):
                e(f"v_perm_b32 v{B5+4*(j%4)+k}, v{VPB+(j>>1)}, v{VPB+(j>>1)}, v{SELQ+(j&1)*4+k}")
        b5(0); b5(1); b5(2)
        for j in range(18):
            cc = "0" if j == 0 else vr(24, 4)
            e(f"v_mfma_f32_16x16x32_bf16 {vr(24,4)}, {vr(WT+4*j,4)}, {vr(B5+4*(j%4),4)}, {cc}")
            if j + 3 < 18: b5(j + 3)
        e(f"v_cndmask_b32 v28, v24, v26, {sr(sX1,2)}")
        e(f"v_cndmask_b32 v29, v25, v27, {sr(sX1,2)}")
        e(f"ds_write_b32 v{TV+7}, v28"); e(f"ds_write_b32 v{TV+7}, v29 offset:32")
        e("s_waitcnt lgkmcnt(0)")
        a.lab("L_pt_done")
    uid = [0]
    def tile(b, waits, dma=False, reissue=True, mode="S"):
        uid[0] += 1; u = uid[0]
        if waits: e(f"s_waitcnt vmcnt({NOUT})")
        for j in range(TL):
            e(f"v_mfma_f32_16x16x32_bf16 {vr(DB+4*j,4)}, {vr(kreg(b,j),4)}, {vr(BK,4)}, 0")
        if dma: dma_step()
        if mode == "D":
            e(f"v_readfirstlane_b32 s{t0}, v{vA}"); e(f"v_readfirstlane_b32 s{t1}, v{vA+1}")
            e(f"s_cmp_lg_u32 s{t1}, s{sTAG}"); e("s_cbranch_scc1 L_ctr_retry")
            a.lab("L_ctr_ok")
            lg = PUB.bit_length() - 1
            if P["PMAP"]:
                e(f"s_and_b32 s{t1}, s{t0}, 7"); e(f"s_lshr_b32 s{t2}, s{t0}, 3")
            else:
                e(f"s_lshr_b32 s{t1}, s{t0}, {lg}"); e(f"s_and_b32 s{t2}, s{t0}, {PUB-1}")
            e(f"s_lshl_b32 s{t1}, s{t1}, 20"); e(f"s_add_u32 s{t2}, s{t2}, {PRIV}")
            e(f"s_mul_i32 s{t2}, s{t2}, {tile_bytes}"); e(f"s_add_u32 s{sNXT}, s{t1}, s{t2}")
            e(f"s_cmp_ge_u32 s{t0}, {8*PUB}")
            e(f"s_cselect_b32 s{sNXT}, {OOB}, s{sNXT}")
            e(f"s_cbranch_scc1 L_dskipk")
            issue_k(b, sNXT)
            issue_atomic()
            a.lab("L_dskipk")
        elif reissue:
            issue_k(b)
            if mode == "SA": issue_atomic()
        U = [SREG + j for j in range(TL)]
        if TL == 4:
            for j in range(TL):
                e(f"v_mov_b32_dpp v{U[j]}, v{DB+4*j} quad_perm:[0,0,0,0] row_mask:0xf bank_mask:0xf")
            for q in range(1, 4):
                for j in range(TL):
                    e(f"v_add_f32_dpp v{U[j]}, v{DB+4*j+q}, v{U[j]} quad_perm:[{q},{q},{q},{q}] row_mask:0xf bank_mask:0xf")
        else:
            W = [SREG + 4 + j for j in range(TL)]
            for j in range(TL):
                e(f"v_mov_b32_dpp v{U[j]}, v{DB+4*j} quad_perm:[0,0,0,0] row_mask:0xf bank_mask:0xf")
            for j in range(TL):
                e(f"v_mov_b32_dpp v{W[j]}, v{DB+4*j+2} quad_perm:[2,2,2,2] row_mask:0xf bank_mask:0xf")
            for j in range(TL):
                e(f"v_add_f32_dpp v{U[j]}, v{DB+4*j+1}, v{U[j]} quad_perm:[1,1,1,1] row_mask:0xf bank_mask:0xf")
            for j in range(TL):
                e(f"v_add_f32_dpp v{W[j]}, v{DB+4*j+3}, v{W[j]} quad_perm:[3,3,3,3] row_mask:0xf bank_mask:0xf")
            for j in range(TL):
                e(f"v_add_f32 v{U[j]}, v{U[j]}, v{W[j]}")
        for j in range(TL): bf16r(U[j], U[j])
        for j in range(TL): e(f"v_mul_f32 v{U[j]}, s{sSCL}, v{U[j]}")
        for j in range(TL): bf16r(U[j], U[j])
        m2 = vt[0]
        if TL == 1: e(f"v_max_f32 v{m2}, v{vM}, v{U[0]}")
        else:
            e(f"v_max3_f32 v{m2}, v{vM}, v{U[0]}, v{U[1]}")
            j = 2
            while j < TL:
                e(f"v_max3_f32 v{m2}, v{m2}, v{U[j]}, v{U[j+1]}"); j += 2
        cross_rows(m2, vt[1], "v_max_f32")
        e(f"v_mul_f32 v{vt[1]}, s{sL2E}, v{m2}")
        e(f"v_mov_b32 v{vM}, v{m2}")
        e(f"v_sub_f32 v{vt[2]}, v{vML}, v{vt[1]}")
        for j in range(TL): e(f"v_fma_f32 v{U[j]}, v{U[j]}, s{sL2E}, -v{vt[1]}")
        e(f"v_exp_f32 v{vt[2]}, v{vt[2]}")
        for j in range(TL): e(f"v_exp_f32 v{U[j]}, v{U[j]}")
        e(f"v_mov_b32 v{vML}, v{vt[1]}")
        e(f"v_fma_f32 v{vL}, v{vL}, v{vt[2]}, v{U[0]}")
        for v in range(4): e(f"v_mul_f32 v{ACC+v}, v{ACC+v}, v{vt[2]}")
        for j in range(1, TL): e(f"v_add_f32 v{vL}, v{vL}, v{U[j]}")
        for j in range(TL): e(f"v_cvt_pk_bf16_f32 v{U[j]}, v{U[j]}, v{U[j]}")
        for j in range(TL):
            for k in range(4): e(f"v_and_b32 v{DB+4*j+k}, v{U[j]}, v{MASK+k}")
        if mode == "D":
            e(f"s_cmp_ge_u32 s{sNXT}, {OOB}"); e("s_cbranch_scc1 L_dlast")
            e(f"s_waitcnt vmcnt({NOUT + 1})")
            for j in range(TL):
                e(f"v_mfma_f32_16x16x32_bf16 {vr(ACC,4)}, {vr(vreg(b,j),4)}, {vr(DB+4*j,4)}, {vr(ACC,4)}")
            issue_v(b, sNXT)
            e("s_branch L_loopD")
            a.lab("L_dlast")
            e("s_waitcnt vmcnt(0)")
            for j in range(TL):
                e(f"v_mfma_f32_16x16x32_bf16 {vr(ACC,4)}, {vr(vreg(b,j),4)}, {vr(DB+4*j,4)}, {vr(ACC,4)}")
            return
        if waits: e(f"s_waitcnt vmcnt({NOUT + (1 if mode == 'SA' else 0)})")
        for j in range(TL):
            e(f"v_mfma_f32_16x16x32_bf16 {vr(ACC,4)}, {vr(vreg(b,j),4)}, {vr(DB+4*j,4)}, {vr(ACC,4)}")
        if reissue: issue_v(b)
    c("---- peeled first tiles (landed: covered by earlier waits for waves 0-3; wait for the others)")
    if BONUS:
        e(f"s_cmp_lt_u32 s{sW}, 4"); e("s_cbranch_scc1 L_peel_lo")
        e(f"s_waitcnt vmcnt({1 + 2*TL*BONUS})")
        tile(0, False)
        for i in range(BONUS):
            e(f"s_waitcnt vmcnt({2*TL*(BONUS - i)})")
            tile(NB + i, False, reissue=False)
        e("s_branch L_peel_done")
        a.lab("L_peel_lo")
    e("s_waitcnt vmcnt(1)")
    for b in range(NB): tile(b, False)
    for b in range(NB, NBT): tile(b, False, reissue=False)
    if BONUS: a.lab("L_peel_done")
    N1, N2 = 6, 11
    assert NB == 1
    c("---- loop A: tiles + DMA of w1 (6 steps) then wo/w2 (11 steps)")
    e(f"s_mov_b32 s{sCNT}, {N1 + N2}")
    a.lab("L_loopA")
    e(f"s_cmp_eq_u32 s{sCNT}, {N2}"); e("s_cbranch_scc0 L_noswitch")
    dma_switch()
    a.lab("L_noswitch")
    tile(0, True, dma=True)
    e(f"s_sub_u32 s{sCNT}, s{sCNT}, 1"); e(f"s_cmp_lg_u32 s{sCNT}, 0"); e("s_cbranch_scc1 L_loopA")
    c("---- hidden slice: 18 MFMAs 16x16x16")
    e(f"v_lshrrev_b32 v24, 4, v{vLANE}"); e("v_mul_u32_u24 v24, 1440, v24")
    e(f"v_and_b32 v25, 15, v{vLANE}"); e("v_min_u32 v25, 8, v25"); e("v_lshl_add_u32 v24, v25, 3, v24")
    e(f"s_mul_i32 s{t0}, s{sW}, 6144"); e(f"s_add_u32 s{t0}, s{t0}, s{sDELTA}")
    if L_W1: e(f"s_add_u32 s{t0}, s{t0}, {L_W1}")
    e(f"v_add_u32 v24, s{t0}, v24")
    for j in range(18): e(f"ds_read_b64 {vr(HA+2*j,2)}, v24 offset:{80*j}")
    def hb(j):
        for k in range(2):
            e(f"v_perm_b32 v{HB+2*(j%4)+k}, v{XP+(j>>1)}, v{XP+(j>>1)}, v{SELH+(j&1)*2+k}")
    hb(0); hb(1); hb(2)
    e("s_waitcnt lgkmcnt(0)")
    for j in range(18):
        cc = "0" if j == 0 else vr(HACC, 4)
        e(f"v_mfma_f32_16x16x16_bf16 {vr(HACC,4)}, {vr(HA+2*j,2)}, {vr(HB+2*(j%4),2)}, {cc}")
        if j + 3 < 18: hb(j + 3)
    e(f"s_lshl_b32 s{t0}, s{sW}, 8"); e(f"s_add_u32 s{t0}, s{t0}, {L_HP}")
    e(f"v_lshlrev_b32 v26, 2, v{vLANE}"); e(f"v_add_u32 v26, s{t0}, v26")
    e(f"v_bfe_u32 v25, v{vLANE}, 2, 2")
    e(f"v_cmp_eq_u32 vcc, 1, v25"); e(f"v_cmp_eq_u32 {sr(t4,2)}, 2, v25"); e(f"v_cmp_eq_u32 {sr(sEX,2)}, 3, v25")
    e(f"v_cndmask_b32 v27, v{HACC}, v{HACC+1}, vcc")
    e(f"v_cndmask_b32 v27, v27, v{HACC+2}, {sr(t4,2)}")
    e(f"v_cndmask_b32 v27, v27, v{HACC+3}, {sr(sEX,2)}")
    e("ds_write_b32 v26, v27")
    e("s_waitcnt lgkmcnt(0)")
    e("s_barrier")
    e(f"s_cmp_eq_u32 s{sW}, 4"); e("s_cbranch_scc0 L_noh")
    c("wave 4: reduce + publish hidden slice")
    e(f"v_lshlrev_b32 v24, 2, v{vLANE}"); e(f"v_add_u32 v24, {L_HP}, v24")
    for w in range(8): e(f"ds_read_b32 v{25+w}, v24 offset:{256*w}")
    e("s_waitcnt lgkmcnt(0)")
    for w in range(1, 8): e(f"v_add_f32 v25, v25, v{25+w}")
    bf16r(25, 25)
    e(f"v_lshlrev_b32 v26, 16, v{vB1}")
    e("v_add_f32 v25, v25, v26"); bf16r(25, 25)
    e("v_max_f32 v25, 0, v25"); e("v_mul_f32 v24, v25, v25"); bf16r(24, 24)
    e(f"v_mov_b32 v25, s{sTAG}")
    e(f"s_mul_i32 s{t0}, s{sPAIR}, 288"); e(f"s_mul_i32 s{t1}, s{sS}, 36"); e(f"s_add_u32 s{t0}, s{t0}, s{t1}")
    e(f"s_lshl_b32 s{t0}, s{t0}, 3"); e(f"s_add_u32 s{t0}, s{t0}, {WS_HG}")
    e(f"v_lshlrev_b32 v26, 3, v{vLANE}")
    e(f"v_cmp_gt_u32 vcc, 36, v{vLANE}")
    e(f"s_and_saveexec_b64 {sr(sEX,2)}, vcc")
    e(f"buffer_store_dwordx2 v[24:25], v26, {sr(rWS,4)}, s{t0} offen sc1")
    e(f"s_mov_b64 exec, {sr(sEX,2)}")
    a.lab("L_noh")
    nA = N1 + N2
    c("---- main loop")
    assert (PRIV - 4*BONUS) % NW == 0
    NSTAT = (PRIV - 4*BONUS) // NW
    if P["DYN"]:
        nS = NSTAT - NBT - nA - 2
    else:
        nS = NSTAT - NBT - nA
    assert nS > 0
    e(f"s_mov_b32 s{sCNT}, {nS}")
    e(f"s_lshl_b32 s{sCTR}, s{sPS}, 7"); e(f"s_add_u32 s{sCTR}, s{sCTR}, {WS_CTR}")
    e(f"v_mov_b32 v{vA+2}, 0")
    a.raw(".p2align 6")
    a.lab("L_loop")
    tile(0, True)
    e(f"s_sub_u32 s{sCNT}, s{sCNT}, 1")
    e(f"s_cmp_lg_u32 s{sCNT}, 0")
    e("s_cbranch_scc1 L_loop")
    pretail()
    if P["DYN"]:
        tile(0, True, mode="SA")
        a.raw(".p2align 6")
        a.lab("L_loopD")
        tile(0, True, mode="D")
        e("s_branch L_stream_done")
        a.lab("L_ctr_retry")
        c("counter not initialised yet (tag mismatch): retry the grab")
        e("s_waitcnt vmcnt(0)")
        spin_check("L_ctr_giveup")
        if P["SLEEP"]: e(f"s_sleep {P['SLEEP']}")
        issue_atomic()
        e("s_waitcnt vmcnt(0)")
        e(f"v_readfirstlane_b32 s{t0}, v{vA}"); e(f"v_readfirstlane_b32 s{t1}, v{vA+1}")
        e(f"s_cmp_lg_u32 s{t1}, s{sTAG}"); e("s_cbranch_scc1 L_ctr_retry")
        e("s_branch L_ctr_ok")
        a.lab("L_ctr_giveup")
        e(f"s_mov_b32 s{t0}, {8*PUB}")
        e("s_branch L_ctr_ok")
        a.lab("L_stream_done")
    else:
        pass

    c("---- T1: combine the 8 waves of the workgroup")
    e("s_waitcnt vmcnt(0)")
    stamp(4)
    cross_rows(vL, vt[0], "v_add_f32")
    for v in range(4): e(f"ds_write_b32 v{TV+0}, v{ACC+v} offset:{32*v}")
    e(f"v_mov_b32 v26, v{vM}"); e(f"v_mov_b32 v27, v{vL}")
    e("s_mov_b64 exec, 0x101")
    e(f"ds_write_b64 v{TV+1}, v[26:27]")
    e("s_mov_b64 exec, -1")
    e("s_waitcnt lgkmcnt(0)")
    e("s_barrier")
    e(f"s_cmp_lt_u32 s{sW}, 4"); e("s_cbranch_scc0 L_bpub")
    c("waves 0-3: WG partial for (h = w>>1, t)")
    e(f"s_lshr_b32 s{t0}, s{sW}, 1")
    e(f"s_lshl_b32 s{t1}, s{t0}, 3"); e(f"s_add_u32 s{t1}, s{t1}, {L_MLP}")
    e(f"v_mov_b32 v24, s{t1}")
    for w in range(8): e(f"ds_read_b64 {vr(28+2*w,2)}, v24 offset:{16*w}")
    for w in range(8): e(f"ds_read_b32 v{44+w}, v{TV+2} offset:{1024*w}")
    e(f"s_lshl_b32 s{t1}, s{sPS}, 3"); e(f"s_or_b32 s{t1}, s{t1}, s{sSS}")
    e(f"s_lshl_b32 s{t2}, s{t1}, 11"); e(f"s_add_u32 s{t2}, s{t2}, {WS_OG}")
    e(f"v_mov_b32 v53, s{sTAG}")
    e("s_waitcnt lgkmcnt(8)")
    e("v_max3_f32 v26, v28, v30, v32"); e("v_max3_f32 v26, v26, v34, v36"); e("v_max3_f32 v26, v26, v38, v40"); e("v_max_f32 v26, v26, v42")
    for w in range(8): e(f"v_sub_f32 v{28+2*w}, v{28+2*w}, v26")
    for w in range(8): e(f"v_mul_f32 v{28+2*w}, s{sL2E}, v{28+2*w}")
    for w in range(8): e(f"v_exp_f32 v{28+2*w}, v{28+2*w}")
    e("s_waitcnt lgkmcnt(0)")
    e("v_mul_f32 v52, v28, v44"); e("v_mul_f32 v27, v28, v29")
    for w in range(1, 8):
        e(f"v_fmac_f32 v52, v{28+2*w}, v{44+w}"); e(f"v_fmac_f32 v27, v{28+2*w}, v{29+2*w}")
    e(f"buffer_store_dwordx2 v[52:53], v{TV+3}, {sr(rWS,4)}, s{t2} offen sc1")
    e(f"s_and_b32 s{t2}, s{sW}, 1"); e(f"s_cmp_eq_u32 s{t2}, 0"); e("s_cbranch_scc0 L_ml_done")
    e(f"v_cmp_eq_u32 vcc, 1, v{vLANE}")
    e(f"s_lshl_b32 s{t2}, s{t1}, 5"); e(f"s_lshl_b32 s{t3}, s{t0}, 3"); e(f"s_add_u32 s{t2}, s{t2}, s{t3}"); e(f"s_add_u32 s{t2}, s{t2}, {WS_MLG}")
    e("v_cndmask_b32 v56, v26, v27, vcc"); e(f"v_mov_b32 v57, s{sTAG}")
    e(f"v_lshlrev_b32 v58, 4, v{vLANE}")
    e("s_mov_b64 exec, 3")
    e(f"buffer_store_dwordx2 v[56:57], v58, {sr(rWS,4)}, s{t2} offen sc1")
    e("s_mov_b64 exec, -1")
    a.lab("L_ml_done")
    stamp(5, "tail")
    c("T4: poll ML granules of the group for head h")
    e(f"s_lshl_b32 s{t2}, s{sPAIR}, 8"); e(f"s_lshl_b32 s{t3}, s{t0}, 3"); e(f"s_add_u32 s{t2}, s{t2}, s{t3}"); e(f"s_add_u32 s{t2}, s{t2}, {WS_MLG}")
    e(f"s_lshl_b32 s{t3}, s{sPAIR}, 14"); e(f"s_add_u32 s{t3}, s{t3}, {WS_OG}")
    def weights():
        e("v_mov_b32 v44, v26")
        e("v_max_f32_dpp v44, v44, v44 quad_perm:[1,0,3,2] row_mask:0xf bank_mask:0xf")
        e("v_max_f32_dpp v44, v44, v44 quad_perm:[2,3,0,1] row_mask:0xf bank_mask:0xf")
        e("v_max_f32_dpp v44, v44, v44 row_half_mirror row_mask:0xf bank_mask:0xf")
        e("v_mov_b32_dpp v45, v26 row_ror:8 row_mask:0xf bank_mask:0xf")
        e("v_sub_f32 v46, v26, v44"); e(f"v_mul_f32 v46, s{sL2E}, v46"); e("v_exp_f32 v46, v46")
        e("v_mul_f32 v47, v46, v45")
        e("v_add_f32_dpp v47, v47, v47 quad_perm:[1,0,3,2] row_mask:0xf bank_mask:0xf")
        e("v_add_f32_dpp v47, v47, v47 quad_perm:[2,3,0,1] row_mask:0xf bank_mask:0xf")
        e("v_add_f32_dpp v47, v47, v47 row_half_mirror row_mask:0xf bank_mask:0xf")
        e("v_rcp_f32 v47, v47")
        e("v_mul_f32 v46, v46, v47")
        for s_ in range(8): e(f"v_readlane_b32 s{sWT+s_}, v46, {s_}")
    if P["T4M"]:
        sHAVE = sCNT
        e(f"s_mov_b32 s{sHAVE}, 0")
        a.lab("L_t4")
        e(f"buffer_load_dwordx2 v[26:27], v{TV+4}, {sr(rWS,4)}, s{t2} offen sc1")
        for s_ in range(8):
            e(f"s_bitcmp1_b32 s{sHAVE}, {s_}"); e(f"s_cbranch_scc1 L_t4a{s_}")
            e(f"s_add_u32 s{t0}, s{t3}, {2048*s_}")
            e(f"buffer_load_dwordx2 {vr(28+2*s_,2)}, v{TV+3}, {sr(rWS,4)}, s{t0} offen sc1")
            a.lab(f"L_t4a{s_}")
        e("s_waitcnt vmcnt(0)")
        for s_ in range(8):
            e(f"v_cmp_ne_u32 vcc, s{sTAG}, v{29+2*s_}")
            e("s_cmp_eq_u64 vcc, 0")
            e(f"s_cselect_b32 s{t0}, {1 << s_}, 0")
            e(f"s_or_b32 s{sHAVE}, s{sHAVE}, s{t0}")
        e(f"v_cmp_ne_u32 vcc, s{sTAG}, v27")
        e("s_cmp_eq_u64 vcc, 0")
        e(f"s_cselect_b32 s{t0}, 0x100, 0")
        e(f"s_or_b32 s{t0}, s{t0}, s{sHAVE}")
        e(f"s_cmp_eq_u32 s{t0}, 0x1ff"); e("s_cbranch_scc1 L_ml_ok")
        spin_check("L_ml_ok")
        e(f"s_bcnt1_i32_b32 s{t0}, s{sHAVE}"); e(f"s_cmp_ge_u32 s{t0}, 6"); e("s_cbranch_scc1 L_t4")
        e("s_sleep 6")
        e("s_branch L_t4")
        a.lab("L_ml_ok")
        stamp(6, "tail")
        weights()
    else:
        a.lab("L_poll_ml")
        e(f"buffer_load_dwordx2 v[26:27], v{TV+4}, {sr(rWS,4)}, s{t2} offen sc1")
        e("s_waitcnt vmcnt(0)")
        e(f"v_cmp_ne_u32 vcc, s{sTAG}, v27")
        e("s_cbranch_vccz L_ml_ok")
        spin_check("L_ml_ok")
        if P["SLEEP"]: e(f"s_sleep {P['SLEEP']}")
        e("s_branch L_poll_ml")
        a.lab("L_ml_ok")
        stamp(6, "tail")
        a.lab("L_gather_o")
        e(f"s_mov_b32 s{t2}, s{t3}")
        for s_ in range(8):
            e(f"buffer_load_dwordx2 {vr(28+2*s_,2)}, v{TV+3}, {sr(rWS,4)}, s{t2} offen sc1")
            if s_ < 7: e(f"s_add_u32 s{t2}, s{t2}, 2048")
        e("v_mov_b32 v44, v26")
        e("v_max_f32_dpp v44, v44, v44 quad_perm:[1,0,3,2] row_mask:0xf bank_mask:0xf")
        e("v_max_f32_dpp v44, v44, v44 quad_perm:[2,3,0,1] row_mask:0xf bank_mask:0xf")
        e("v_max_f32_dpp v44, v44, v44 row_half_mirror row_mask:0xf bank_mask:0xf")
        e("v_mov_b32_dpp v45, v26 row_ror:8 row_mask:0xf bank_mask:0xf")
        e("v_sub_f32 v46, v26, v44"); e(f"v_mul_f32 v46, s{sL2E}, v46"); e("v_exp_f32 v46, v46")
        e("v_mul_f32 v47, v46, v45")
        e("v_add_f32_dpp v47, v47, v47 quad_perm:[1,0,3,2] row_mask:0xf bank_mask:0xf")
        e("v_add_f32_dpp v47, v47, v47 quad_perm:[2,3,0,1] row_mask:0xf bank_mask:0xf")
        e("v_add_f32_dpp v47, v47, v47 row_half_mirror row_mask:0xf bank_mask:0xf")
        e("v_rcp_f32 v47, v47")
        e("v_mul_f32 v46, v46, v47")
        for s_ in range(8): e(f"v_readlane_b32 s{sWT+s_}, v46, {s_}")
        e("s_waitcnt vmcnt(0)")
        e(f"v_xor_b32 v48, s{sTAG}, v29")
        for s_ in range(1, 8):
            e(f"v_xor_b32 v49, s{sTAG}, v{29+2*s_}"); e("v_or_b32 v48, v48, v49")
        e("v_cmp_ne_u32 vcc, 0, v48")
        e("s_cbranch_vccz L_o_ok")
        spin_check("L_o_ok")
        e("s_branch L_gather_o")
    a.lab("L_o_ok")
    e(f"v_mul_f32 v48, s{sWT}, v28")
    for s_ in range(1, 8): e(f"v_fmac_f32 v48, s{sWT+s_}, v{28+2*s_}")
    e("v_cvt_pk_bf16_f32 v48, v48, v48")
    e(f"ds_write_b16 v{TV+5}, v48")
    if DEBUG:
        e(f"v_lshlrev_b32 v50, 16, v48")
        e(f"s_lshl_b32 s{t0}, s2, 10"); e(f"s_add_u32 s{t0}, s{t0}, {WS_DBG + 0x40000}")
        e("v_lshlrev_b32 v51, 2, v0")
        e(f"buffer_store_dword v50, v51, {sr(rWS,4)}, s{t0} offen")
    e("s_waitcnt lgkmcnt(0)")
    e("s_barrier")
    stamp(7, "tail")
    c("---- T5: attention output projection slice (64 rows per wave)")
    VP = 32
    e(f"ds_read_b128 {vr(VP,4)}, v{TV+6}"); e(f"ds_read_b128 {vr(VP+4,4)}, v{TV+6} offset:16")
    e(f"s_lshl_b32 s{t2}, s{sB}, 3"); e(f"s_or_b32 s{t2}, s{t2}, s{sS}"); e(f"s_lshl_b32 s{t2}, s{t2}, 4")
    e(f"s_mul_i32 s{t3}, s{t2}, 1152"); e(f"s_add_u32 s{t3}, s{t3}, {WS_YG}")
    e(f"s_mul_i32 s{t2}, s{sHKV}, 1152"); e(f"s_add_u32 s{t2}, s{t2}, s{t3}")
    def b5(j):
        for k in range(4):
            e(f"v_perm_b32 v{B5+4*(j%4)+k}, v{VP+(j>>1)}, v{VP+(j>>1)}, v{SELQ+(j&1)*4+k}")
    e("s_waitcnt lgkmcnt(0)")
    b5(0); b5(1); b5(2)
    for j in range(16):
        y = 20 if j % 2 == 0 else 24
        cc = "0" if j < 2 else vr(y, 4)
        e(f"v_mfma_f32_16x16x32_bf16 {vr(y,4)}, {vr(WT+4*j,4)}, {vr(B5+4*(j%4),4)}, {cc}")
        if j + 3 < 16: b5(j + 3)
    for v in range(4): e(f"v_add_f32 v{20+v}, v{20+v}, v{24+v}")
    e(f"v_cndmask_b32 v28, v20, v22, {sr(sX1,2)}")
    e(f"v_cndmask_b32 v29, v21, v23, {sr(sX1,2)}")
    e(f"ds_write_b32 v{TV+7}, v28"); e(f"ds_write_b32 v{TV+7}, v29 offset:32")
    e("s_waitcnt lgkmcnt(0)")
    e("s_barrier")
    e(f"s_cmp_lt_u32 s{sW}, 3"); e("s_cbranch_scc0 L_end")
    e(f"s_cmp_lt_u32 s{sW}, 2"); e("s_cbranch_scc0 L_ypub_done")
    c("threads t<72: sum the 4 partials, publish kind A")
    for w in range(4): e(f"ds_read_b32 v{28+w}, v{TV+8} offset:{512*w}")
    e("v_cmp_gt_u32 vcc, 72, v0")
    e("s_waitcnt lgkmcnt(0)")
    e("v_add_f32 v28, v28, v29"); e("v_add_f32 v30, v30, v31"); e("v_add_f32 v28, v28, v30")
    e(f"v_mov_b32 v29, s{sTAG}")
    e(f"s_and_saveexec_b64 {sr(sEX,2)}, vcc")
    e(f"buffer_store_dwordx2 v[28:29], v{TV+9}, {sr(rWS,4)}, s{t2} offen sc1")
    e(f"s_mov_b64 exec, {sr(sEX,2)}")
    a.lab("L_ypub_done")
    stamp(8, "tail")
    if P["PROF"] == 1: e("s_mov_b32 s14, 0")
    e(f"s_cmp_eq_u32 s{sHKV}, s{sS}"); e("s_cbranch_scc0 L_end")
    e("s_branch L_final")
    a.lab("L_bpub")
    c("waves 4,5: sum the 4 MLP partials, publish kind B; waves 4-7 end")
    e(f"s_cmp_lt_u32 s{sW}, 6"); e("s_cbranch_scc0 L_end")
    e(f"v_subrev_u32 v24, 256, v0"); e("v_min_u32 v25, 71, v24")
    e(f"v_lshlrev_b32 v26, 2, v25"); e(f"v_add_u32 v26, {L_YP + 2048}, v26")
    for w in range(4): e(f"ds_read_b32 v{28+w}, v26 offset:{512*w}")
    e(f"s_lshl_b32 s{t2}, s{sB}, 3"); e(f"s_or_b32 s{t2}, s{t2}, s{sS}"); e(f"s_lshl_b32 s{t2}, s{t2}, 4")
    e(f"s_add_u32 s{t2}, s{t2}, s{sHKV}"); e(f"s_mul_i32 s{t2}, s{t2}, 1152"); e(f"s_add_u32 s{t2}, s{t2}, {WS_YG + 8}")
    e("v_lshlrev_b32 v25, 4, v25")
    e("v_cmp_gt_u32 vcc, 72, v24")
    e("s_waitcnt lgkmcnt(0)")
    e("v_add_f32 v28, v28, v29"); e("v_add_f32 v30, v30, v31"); e("v_add_f32 v28, v28, v30")
    e(f"v_mov_b32 v29, s{sTAG}")
    e(f"s_and_saveexec_b64 {sr(sEX,2)}, vcc")
    e(f"buffer_store_dwordx2 v[28:29], v25, {sr(rWS,4)}, s{t2} offen sc1")
    e(f"s_mov_b64 exec, {sr(sEX,2)}")
    if P["PROF"] == 1: e("s_mov_b32 s14, 0")
    e("s_branch L_end")
    a.lab("L_final")
    c("---- T6: final reducer for (b, s)")
    G6 = 48
    a.lab("L_gather_y")
    e(f"s_mov_b32 s{t2}, s{t3}")
    for k in range(16):
        e(f"buffer_load_dwordx2 {vr(G6+2*k,2)}, v{TV+10}, {sr(rWS,4)}, s{t2} offen sc1")
        if k < 15: e(f"s_add_u32 s{t2}, s{t2}, 1152")
    e("s_waitcnt vmcnt(0)")
    e(f"v_xor_b32 v32, s{sTAG}, v{G6+1}")
    for k in range(1, 16):
        e(f"v_xor_b32 v33, s{sTAG}, v{G6+2*k+1}"); e("v_or_b32 v32, v32, v33")
    e("v_cmp_ne_u32 vcc, 0, v32")
    e("s_cbranch_vccz L_y_ok")
    spin_check("L_y_ok")
    e("s_branch L_gather_y")
    a.lab("L_y_ok")
    stamp(9, "tail")
    idx = [G6 + 2*k for k in range(16)]
    while len(idx) > 1:
        nxt = []
        for i in range(0, len(idx), 2):
            e(f"v_add_f32 v{idx[i]}, v{idx[i]}, v{idx[i+1]}"); nxt.append(idx[i])
        idx = nxt
    bf16r(32, G6)
    e("v_mov_b32_dpp v33, v32 quad_perm:[1,0,3,2] row_mask:0xf bank_mask:0xf")
    e(f"v_lshlrev_b32 v41, 16, v{TV+11}"); e(f"v_lshlrev_b32 v42, 16, v{TV+12}")
    e(f"s_mul_i32 s{t0}, s{sB}, 1152"); e(f"s_mul_i32 s{t1}, s{sS}, 144"); e(f"s_add_u32 s{t0}, s{t0}, s{t1}")
    e("v_add_f32 v32, v41, v32"); bf16r(32, 32)
    e("v_add_f32 v33, v33, v42"); bf16r(33, 33)
    e("v_add_f32 v32, v32, v33"); e("v_cvt_pk_bf16_f32 v32, v32, v32")
    e("v_and_b32 v33, 1, v0"); e("v_cmp_eq_u32 vcc, 0, v33")
    e(f"s_mov_b64 {sr(t4,2)}, vcc")
    e("v_cmp_gt_u32 vcc, 144, v0")
    e(f"s_and_b64 vcc, vcc, {sr(t4,2)}")
    e(f"s_and_saveexec_b64 {sr(sEX,2)}, vcc")
    e(f"buffer_store_short v32, v{TV+13}, {sr(rA,4)}, s{t0} offen")
    e(f"s_mov_b64 exec, {sr(sEX,2)}")
    e(f"s_or_b32 s{t1}, s{sS}, s{sW}"); e(f"s_cmp_eq_u32 s{t1}, 0"); e("s_cbranch_scc0 L_end")
    e(f"s_lshl_b32 s{t1}, s{sB}, 8")
    e(f"v_mov_b32 v33, s{sTAG}"); e("v_mov_b32 v34, 0")
    e("s_mov_b64 exec, 1")
    e(f"buffer_store_dword v33, v34, {sr(rWS,4)}, s{t1} offen sc1")
    a.lab("L_end")
    if P["PROF"] == 3:
        stamp(10)
        e(f"s_cmp_eq_u32 s{sW}, 0"); e("s_cbranch_scc0 L_exit")
        e("s_load_dwordx2 s[4:5], s[0:1], 88")
        e("s_waitcnt lgkmcnt(0)")
        mk_srd(rA, 4, None, size=256)
        e("s_mov_b64 exec, 1")
        e("v_mov_b32 v1, 0")
        for i, (st, inv) in enumerate([(0, 1), (0, 0), (3, 1), (3, 0), (4, 1), (4, 0), (10, 1), (10, 0)]):
            if inv: e(f"s_not_b32 s{t0}, s{STAMPS[st]}"); e(f"v_mov_b32 v2, s{t0}")
            else: e(f"v_mov_b32 v2, s{STAMPS[st]}")
            e(f"buffer_atomic_umax v2, v1, {sr(rA,4)}, 0 offen offset:{4*i}")
            e("s_nop 0")
    elif P["PROF"]:
        stamp(10)
        e("s_mov_b64 exec, 1")
        e(f"s_lshl_b32 s{t0}, s2, 3"); e(f"s_add_u32 s{t0}, s{t0}, s{sW}")
        e(f"s_lshl_b32 s{t0}, s{t0}, 6"); e(f"s_add_u32 s{t0}, s{t0}, {WS_PROF}")
        e("v_mov_b32 v1, 0")
        for i in range(11):
            e(f"v_mov_b32 v2, s{STAMPS[i]}")
            e(f"buffer_store_dword v2, v1, {sr(rWS,4)}, s{t0} offen offset:{4*i}")
            e("s_nop 0")
    a.lab("L_exit")
    e("s_endpgm")
    body, n = hazard.fix(a.L)
    nv = 256
    tail = ['.section .rodata,"a"', ".p2align 6", f".amdhsa_kernel {NAME}_kernel",
            f"  .amdhsa_next_free_vgpr {(nv+7)//8*8}", "  .amdhsa_next_free_sgpr 102", f"  .amdhsa_accum_offset {(nv+7)//8*8}",
            "  .amdhsa_group_segment_fixed_size 0", "  .amdhsa_kernarg_size 104", "  .amdhsa_user_sgpr_count 2",
            "  .amdhsa_user_sgpr_kernarg_segment_ptr 1", "  .amdhsa_system_sgpr_workgroup_id_x 1",
            "  .amdhsa_float_denorm_mode_32 3", ".end_amdhsa_kernel"]
    return "\n".join(hdr + body + tail) + "\n"

if __name__ == "__main__":
    out = sys.argv[1]
    kw = {}
    for arg in sys.argv[2:]:
        k, v = arg.split("=")
        kw[k] = int(v) if v.lstrip("-").isdigit() else v.replace("+", " ").replace("none", "")
    open(out, "w").write(gen(**kw))
```

```python
import sys
sys.path.insert(0, "gen")
import hazard
NAME = "parallel_sum__gqa_block_cached__dense_activation_squared_relu__decode"

DEFAULTS = dict(TL=2, NB=1, PRE=0, KVPOL="nt", WPOL="nt", DEBUG=0, SLEEP=1, SPIN=100000, PROF=0, CPF=0, PRIO=0, BAR0=1, PUBFRAC=8, DYN=1, SMAP=1, EARLY=0, BONUS=4, WPOL2="", PMAP=0, T4M=0)

WS_EPOCH = 0
WS_HG    = 0x1000
WS_MLG   = 0x14000
WS_OG    = 0x20000
WS_YG    = 0xA0000
WS_QG    = 0xF0000
WS_CTR   = 0x18000
WS_DBG   = 0x100000
WS_PROF  = 0x1C0000
WS_SIZE  = 0x200000

L_W1  = 0
L_WW  = 49152
L_OP  = 139264
L_HP  = 147456
L_QB  = 149504
L_MLP = 150016
L_VAL = 150144
L_VALH = L_VAL + 512
L_YP  = 151296
L_XN  = L_YP + 4096
L_END = L_XN + 1280

LOG2E = 0x3FB8AA3B
SCALE = 0x3DB504F3

class A:
    def __init__(s): s.L = []
    def e(s, x): s.L.append("  " + x)
    def lab(s, x): s.L.append(x + ":")
    def c(s, x): s.L.append("  ; " + x)
    def raw(s, x): s.L.append(x)
def vr(a, n): return f"v[{a}:{a+n-1}]"
def sr(a, n): return f"s[{a}:{a+n-1}]"

def gen(**kw):
    P = dict(DEFAULTS); P.update(kw)
    TL, NB, KVPOL, WPOL, DEBUG = P["TL"], P["NB"], P["KVPOL"], P["WPOL"], P["DEBUG"]
    NW = 8
    KPOL = P.get("KPOL", KVPOL); VPOL = P.get("VPOL", KVPOL)
    tile_bytes = TL * 1024
    ntiles = (1 << 20) // tile_bytes // NW
    assert ntiles % NB == 0 and TL in (1, 2, 4)
    a = A(); e = a.e; c = a.c
    hdr = []
    hdr.extend([
        "; out = x + Attn(LN(x)) + MLP(LN(x)), one launch, 256 workgroups x 8 waves (one workgroup per CU).",
        "; Kernarg: x, k_cache, v_cache, wq, wo, (B_x unused), w1, b1, w2, b2, out, debug, ws (8-byte pointers).",
        "; Roles of workgroup id: stream role (pair = id>>3, split = id&7) reads 1/8 of the K/V cache of one",
        ";   (batch, kv head); weight role (hkv = (id&7)|((id>>6)&1)<<3, slice = (id>>3)&7) owns one 1/8 slice of",
        ";   wq / w1 / wo / w2 for that head group.  Both roles share batch = id>>7.",
        "; Phases: LayerNorm -> q slice (MFMA) -> hand-off -> flash-decode stream (online softmax with the true",
        ";   running max, scores rounded to bf16 like the reference; last 1/8 of the keys is a shared pool taken",
        ";   with an atomic counter) -> per-workgroup partials -> hand-off -> output projection slice -> hand-off",
        ";   -> final sum.  Hand-offs are 8-byte {value, tag} granules (sc1 stores / sc1 loads, tag verified on",
        ";   every granule); the tag is derived from an epoch word in ws so stale data of earlier launches never matches.",
        "; K/V/weight tiles are used in their natural row-major register layout as the MFMA A operand; the other",
        ";   operand is a diagonal expansion of the vector (q, p, xn, o, h), so no transposes are needed.",
        f"; generator parameters: {P}",
    ])
    hdr.append(f"; @launch grid=(256,1,1) block=(512,1,1) lds={(L_END + 255)//256*256}")
    a.raw('.amdgcn_target "amdgcn-amd-amdhsa--gfx950"')
    a.raw(".text"); a.raw(f".globl {NAME}_kernel"); a.raw(".p2align 8"); a.raw(f".type {NAME}_kernel,@function")
    a.lab(f"{NAME}_kernel")

    pX, pK, pV, pWQ = 8, 10, 12, 14
    pWO, pOUT = 16, 18
    pW1, pB1, pW2, pB2 = 20, 22, 24, 26
    pWS = 28
    sB, sHKV, sS, sPAIR, sW, sTAG = 30, 31, 32, 33, 34, 35
    rK, rV, rWS, rA, rB, rC = 36, 40, 44, 48, 52, 56
    sTOFF, sCNT = 60, 61
    t0, t1, t2, t3 = 62, 63, 64, 65
    sEQ = [66, 68, 70, 72]
    sX1 = 74
    sPS, sSS, sCUR, sNXT, sCTR = 76, 77, 78, 79, 80
    sWT = 82
    sSPIN = 90
    sL2E, sSCL = 91, 92
    sEX = 94
    t4, t5 = 96, 97
    sDOFF, sDLDS, sDM, sDP, sDELTA = 93, 100, 101, 5 if False else 7, 6
    vDQ = 46
    vLANE, vKOFF, vVOFF = 1, 2, 3
    BK = 4; MASK = 8
    vM, vL, vML = 12, 13, 14
    vt = [15, 16, 17, 18, 19]
    ACC = 20
    DB = 24
    SREG = 40
    KV0 = 48
    def kreg(b, j): return (KV0 + b * (8 * TL) if b < NB else 164 + (b - NB) * 8 * TL) + j * 4
    def vreg(b, j): return kreg(b, 0) + 4 * TL + j * 4
    BONUS = P["BONUS"]
    assert 164 + BONUS * 8 * TL <= 256
    PRE = P["PRE"]
    NBT = NB + PRE
    PR0 = KV0 + NBT * 8 * TL
    assert PR0 + 70 <= 164, 'prologue scratch area would overlap the v164+ region'
    WQT = PR0
    XP = PR0 + 20
    SELQ = PR0 + 30
    SELX = PR0 + 38
    SELH = PR0 + 42
    HA = 164
    HB = 200
    vB1, vMISC = PR0 + 62, 45
    D1, D2, HACC = 24, 28, 32
    BQ = [4, 8]

    def mk_srd(r, ptr, off_s=None, size=None, size_s=None):
        if off_s is not None:
            e(f"s_add_u32 s{r}, s{ptr}, s{off_s}"); e(f"s_addc_u32 s{r+1}, s{ptr+1}, 0")
            e(f"s_and_b32 s{r+1}, s{r+1}, 0xffff")
        else:
            e(f"s_mov_b32 s{r}, s{ptr}"); e(f"s_and_b32 s{r+1}, s{ptr+1}, 0xffff")
        if size_s is not None: e(f"s_mov_b32 s{r+2}, s{size_s}")
        else: e(f"s_mov_b32 s{r+2}, {size}")
        e(f"s_mov_b32 s{r+3}, 0x20000")
    def bf16r(d, s_): e(f"v_cvt_pk_bf16_f32 v{d}, 0, v{s_}")
    def cross_rows(x, y, op):
        e(f"v_mov_b32 v{y}, v{x}")
        e(f"v_permlane16_swap_b32 v{x}, v{y}"); e("s_nop 0")
        e(f"{op} v{x}, v{x}, v{y}")
        e(f"v_mov_b32 v{y}, v{x}")
        e(f"v_permlane32_swap_b32 v{x}, v{y}"); e("s_nop 0")
        e(f"{op} v{x}, v{x}, v{y}")
    def wave_reduce(x, y, op):
        for pat in ["quad_perm:[1,0,3,2]", "quad_perm:[2,3,0,1]", "row_half_mirror", "row_mirror"]:
            e(f"{op}_dpp v{x}, v{x}, v{x} {pat} row_mask:0xf bank_mask:0xf")
        cross_rows(x, y, op)
    STAMPS = [3, 0, 1, 98, 99, 10, 11, 12, 13, 14, 15]
    def stamp(i, mode="all"):
        if not P["PROF"]: return
        if mode == "pro" and P["PROF"] != 2: return
        if mode == "tail" and P["PROF"] != 1: return
        e("s_memrealtime s[4:5]"); e("s_waitcnt lgkmcnt(0)"); e(f"s_mov_b32 s{STAMPS[i]}, s4")
    def spin_check(okl):
        e(f"s_sub_u32 s{sSPIN}, s{sSPIN}, 1"); e(f"s_cmp_eq_u32 s{sSPIN}, 0"); e(f"s_cbranch_scc1 {okl}")

    c("---- phase 0: ids, pointers")
    e("s_cmp_ge_u32 s2, 256")
    e("s_cbranch_scc1 L_exit")
    e(f"s_load_dwordx8 {sr(8,8)}, s[0:1], 0")
    e(f"s_load_dwordx2 {sr(pWS,2)}, s[0:1], 96")
    e(f"s_load_dwordx8 {sr(20,8)}, s[0:1], 48")
    e(f"s_load_dwordx2 {sr(pWO,2)}, s[0:1], 32")
    e(f"s_load_dwordx2 {sr(pOUT,2)}, s[0:1], 80")
    if P["CPF"] & 1:
        c("pull the kernel's own code into L2 (read-only, speed only)")
        e("s_getpc_b64 s[4:5]")
        a.lab("L_pc")
        e("v_lshlrev_b32 v46, 7, v0")
        e("v_cmp_gt_u32 vcc, L_exit-L_pc, v46")
        e(f"s_and_saveexec_b64 {sr(sEX,2)}, vcc")
        e("s_cbranch_execz L_nocpf")
        e("global_load_dword v47, v46, s[4:5] nt")
        a.lab("L_nocpf")
        e(f"s_mov_b64 exec, {sr(sEX,2)}")
    stamp(0)
    e(f"s_and_b32 s{t0}, s2, 7")
    e(f"s_lshr_b32 s{t1}, s2, 3")
    e(f"s_and_b32 s{sS}, s{t1}, 7")
    e(f"s_bfe_u32 s{t2}, s{t1}, 0x10003")
    e(f"s_lshr_b32 s{sB}, s{t1}, 4")
    e(f"s_lshl_b32 s{t2}, s{t2}, 3")
    e(f"s_or_b32 s{sHKV}, s{t0}, s{t2}")
    e(f"s_lshl_b32 s{sPAIR}, s{sB}, 4")
    e(f"s_or_b32 s{sPAIR}, s{sPAIR}, s{sHKV}")
    if P["SMAP"]:
        e(f"s_lshr_b32 s{sPS}, s2, 3"); e(f"s_and_b32 s{sSS}, s2, 7")
    else:
        e(f"s_mov_b32 s{sPS}, s{sPAIR}"); e(f"s_mov_b32 s{sSS}, s{sS}")
    e(f"v_and_b32 v{vLANE}, 63, v0")
    e(f"v_lshrrev_b32 v{vt[0]}, 6, v0")
    e(f"v_mul_u32_u24 v5, 24, v{vLANE}")
    e(f"v_readfirstlane_b32 s{sW}, v{vt[0]}")
    vG, vR = vt[1], vt[2]
    e(f"v_lshrrev_b32 v{vG}, 4, v{vLANE}")
    e(f"v_and_b32 v{vR}, 15, v{vLANE}")
    e(f"v_lshrrev_b32 v{vt[3]}, 2, v{vR}")
    e(f"v_mul_u32_u24 v4, 18, v{vG}"); e(f"v_add_u32 v4, v4, v{vt[3]}"); e("v_lshlrev_b32 v4, 13, v4")
    e(f"v_and_b32 v{vt[4]}, 3, v{vR}")
    e(f"v_lshl_add_u32 v4, v{vt[4]}, 4, v4")
    e(f"s_mul_i32 s{t0}, s{sB}, 1152")
    e(f"s_lshl_b32 s{t3}, s{sB}, 8")
    e(f"s_lshl_b32 s{t1}, s{sHKV}, 9"); e(f"s_lshl_b32 s{t2}, s{sS}, 6"); e(f"s_add_u32 s{t1}, s{t1}, s{t2}")
    e(f"s_sub_u32 s{t4}, {576*8192}, s{t1}")
    e(f"s_mul_i32 s{t2}, s{sW}, {72*8192}")
    if P["PRIO"]:
        e(f"s_cmp_ge_u32 s{sW}, 4"); e("s_cbranch_scc0 L_noprio"); e("s_setprio 1"); a.lab("L_noprio")
    e("s_waitcnt lgkmcnt(0)")
    XS = 24
    mk_srd(rA, pX, off_s=t0, size=1152)
    e(f"s_cmp_eq_u32 s{sW}, 0"); e("s_cbranch_scc0 L_nox")
    e(f"buffer_load_dwordx4 {vr(XS,4)}, v5, {sr(rA,4)}, 0 offen nt")
    e(f"buffer_load_dwordx2 {vr(XS+4,2)}, v5, {sr(rA,4)}, 0 offen offset:16 nt")
    a.lab("L_nox")
    mk_srd(rB, pWQ, off_s=t1, size_s=t4)
    for t in range(5):
        e(f"buffer_load_dwordx4 {vr(WQT+4*t,4)}, v4, {sr(rB,4)}, s{t2} offen {WPOL}")
        if t < 4: e(f"s_add_u32 s{t2}, s{t2}, {4*8192}")
    e(f"s_load_dword s{sTAG}, {sr(pWS,2)}, s{t3}")
    stamp(1, "pro")
    c("---- lane constants / masks / selectors")
    e(f"s_mov_b32 s{sL2E}, {LOG2E:#x}")
    e(f"s_mov_b32 s{sSCL}, {SCALE:#x}")
    e(f"v_lshlrev_b32 v{vt[3]}, 8, v{vt[3]}")
    e(f"v_lshl_add_u32 v{vt[3]}, v{vG}, 6, v{vt[3]}")
    e(f"v_lshl_add_u32 v{vKOFF}, v{vt[4]}, 4, v{vt[3]}")
    e(f"v_lshlrev_b32 v{vVOFF}, 4, v{vLANE}")
    e(f"v_mul_u32_u24 v{vMISC}, 36, v{vG}")
    e(f"v_and_b32 v{vt[0]}, 7, v{vLANE}")
    e(f"v_lshrrev_b32 v{vt[1]}, 1, v{vt[0]}")
    for k in range(4): e(f"v_cmp_eq_u32 {sr(sEQ[k],2)}, {k}, v{vt[1]}")
    e(f"v_bfe_u32 v{vt[1]}, v{vLANE}, 3, 1")
    e(f"v_cmp_eq_u32 {sr(sX1,2)}, 1, v{vt[1]}")
    def make_selq(SEL, ta, tb, tc):
        e(f"v_and_b32 v{ta}, 1, v{vLANE}")
        e(f"v_cmp_eq_u32 vcc, 1, v{ta}")
        e(f"v_mov_b32 v{ta}, 0x0c0c0100"); e(f"v_mov_b32 v{tb}, 0x01000c0c")
        e(f"v_cndmask_b32 v{ta}, v{ta}, v{tb}, vcc")
        e(f"v_mov_b32 v{tb}, 0x0c0c0302"); e(f"v_mov_b32 v{tc}, 0x03020c0c")
        e(f"v_cndmask_b32 v{tb}, v{tb}, v{tc}, vcc")
        e(f"v_mov_b32 v{tc}, 0x0c0c0c0c")
        for k in range(4):
            e(f"v_cndmask_b32 v{SEL+k}, v{tc}, v{ta}, {sr(sEQ[k],2)}")
            e(f"v_cndmask_b32 v{SEL+4+k}, v{tc}, v{tb}, {sr(sEQ[k],2)}")
    make_selq(SELQ, 6, 7, 8)
    for k in range(4):
        e(f"v_cndmask_b32 v{SELX+k}, v{SELQ+k}, v{SELQ+4+k}, {sr(sX1,2)}")
    e(f"v_bfe_u32 v9, v{vLANE}, 1, 1")
    e("v_cmp_eq_u32 vcc, 1, v9")
    e(f"v_cndmask_b32 v{SELH+0}, v6, v8, vcc"); e(f"v_cndmask_b32 v{SELH+1}, v8, v6, vcc")
    e(f"v_cndmask_b32 v{SELH+2}, v7, v8, vcc"); e(f"v_cndmask_b32 v{SELH+3}, v8, v7, vcc")
    c("---- K/V tile 0 prefetch")
    e(f"s_lshl_b32 s{t0}, s{sPS}, 23")
    mk_srd(rK, pK, off_s=t0, size=1 << 23)
    mk_srd(rV, pV, off_s=t0, size=1 << 23)
    e(f"s_mul_i32 s{sTOFF}, s{sW}, {tile_bytes}"); e(f"s_lshl_b32 s{t0}, s{sSS}, 20"); e(f"s_add_u32 s{sTOFF}, s{sTOFF}, s{t0}")
    if BONUS: e(f"s_add_u32 s{sTOFF}, s{sTOFF}, {4*BONUS*tile_bytes}")
    def issue_k(b, so=None):
        for j in range(TL):
            e(f"buffer_load_dwordx4 {vr(kreg(b,j),4)}, v{vKOFF}, {sr(rK,4)}, s{so or sTOFF} offen offset:{j*1024} {KPOL}")
    def issue_v(b, so=None):
        for j in range(TL):
            e(f"buffer_load_dwordx4 {vr(vreg(b,j),4)}, v{vVOFF}, {sr(rV,4)}, s{so or sTOFF} offen offset:{j*1024} {VPOL}")
        if so is None: e(f"s_add_u32 s{sTOFF}, s{sTOFF}, {tile_bytes*NW}")
    e("s_barrier")
    def issue_kv_all():
        for b in range(NB):
            issue_k(b); issue_v(b)
    def issue_kv_pre():
        for b in range(NB, NBT):
            issue_k(b); issue_v(b)
    nKV0 = NB * 2 * TL
    e(f"s_cmp_eq_u32 s{sW}, 0"); e("s_cbranch_scc1 L_ln")
    issue_kv_all()
    stamp(2, "pro")
    e("s_branch L_ln_done")
    a.lab("L_ln")
    c("---- LayerNorm by wave 0 (lanes < 48 hold 12 elements each)")
    e("s_waitcnt vmcnt(5)")
    stamp(5, "pro")
    XF = 30
    for i in range(6):
        e(f"v_lshlrev_b32 v{XF+2*i}, 16, v{XS+i}")
        e(f"v_and_b32 v{XF+2*i+1}, 0xffff0000, v{XS+i}")
    e(f"v_pk_add_f32 v[12:13], {vr(XF,2)}, {vr(XF+2,2)}")
    e(f"v_pk_add_f32 v[14:15], {vr(XF+4,2)}, {vr(XF+6,2)}")
    e(f"v_pk_add_f32 v[16:17], {vr(XF+8,2)}, {vr(XF+10,2)}")
    e("v_pk_add_f32 v[12:13], v[12:13], v[14:15]")
    e("v_pk_add_f32 v[12:13], v[12:13], v[16:17]")
    e("v_add_f32 v14, v12, v13")
    wave_reduce(14, 15, "v_add_f32")
    e(f"v_mul_f32 v14, {0xBAE38E39:#x}, v14")
    e("v_mov_b32 v15, v14")
    e(f"v_pk_add_f32 v[12:13], {vr(XF,2)}, v[14:15]")
    e("v_pk_mul_f32 v[16:17], v[12:13], v[12:13]")
    for i in range(1, 6):
        e(f"v_pk_add_f32 v[12:13], {vr(XF+2*i,2)}, v[14:15]")
        e("v_pk_fma_f32 v[16:17], v[12:13], v[12:13], v[16:17]")
    e("v_add_f32 v16, v16, v17")
    e(f"v_cmp_gt_u32 vcc, 48, v{vLANE}")
    e("v_cndmask_b32 v16, 0, v16, vcc")
    wave_reduce(16, 17, "v_add_f32")
    e(f"v_mul_f32 v16, {0x3AE38E39:#x}, v16")
    bf16r(16, 16)
    e(f"v_add_f32 v16, {0x3727C5AC:#x}, v16")
    bf16r(16, 16)
    e("v_sqrt_f32 v16, v16")
    bf16r(16, 16)
    e("v_rcp_f32 v16, v16")
    bf16r(14, 14)
    e("v_mov_b32 v15, v14")
    e("v_mov_b32 v17, v16")
    for i in range(6):
        e(f"v_pk_add_f32 {vr(XF+2*i,2)}, {vr(XF+2*i,2)}, v[14:15]")
    for i in range(6):
        e(f"v_cvt_pk_bf16_f32 v{XS+i}, v{XF+2*i}, v{XF+2*i+1}")
    for i in range(6):
        e(f"v_lshlrev_b32 v{XF+2*i}, 16, v{XS+i}")
        e(f"v_and_b32 v{XF+2*i+1}, 0xffff0000, v{XS+i}")
    for i in range(6):
        e(f"v_pk_mul_f32 {vr(XF+2*i,2)}, {vr(XF+2*i,2)}, v[16:17]")
    for i in range(6):
        e(f"v_cvt_pk_bf16_f32 v{XS+i}, v{XF+2*i}, v{XF+2*i+1}")
    e(f"v_add_u32 v5, {L_XN}, v5")
    e("s_mov_b32 exec_hi, 0xffff")
    for i in range(3): e(f"ds_write_b64 v5, {vr(XS+2*i,2)} offset:{8*i}")
    e("s_mov_b32 exec_hi, -1")
    issue_kv_all()
    e("s_waitcnt lgkmcnt(0)")
    a.lab("L_ln_done")
    e(f"s_mul_i32 s{t0}, s{sW}, 144"); e(f"s_add_u32 s{t0}, s{t0}, {L_XN}")
    e(f"v_add_u32 v{vMISC}, s{t0}, v{vMISC}")
    e("s_barrier")
    for i in range(4): e(f"ds_read2_b32 {vr(XP+2*i,2)}, v{vMISC} offset0:{2*i} offset1:{2*i+1}")
    e(f"ds_read_b32 v{XP+8}, v{vMISC} offset:32")
    e("s_waitcnt lgkmcnt(0)")
    stamp(6, "pro")
    c("---- q slice: 32 columns, 9 MFMAs")
    def bq(setr, pair):
        for k in range(4): e(f"v_perm_b32 v{setr+k}, v{XP+pair}, v{XP+pair}, v{SELX+k}")
    bq(BQ[0], 0); bq(BQ[1], 1)
    e(f"s_waitcnt vmcnt({nKV0})")
    for t in range(5):
        cc = "0" if t == 0 else vr(D1, 4)
        e(f"v_mfma_f32_16x16x32_bf16 {vr(D1,4)}, {vr(WQT+4*t,4)}, {vr(BQ[0],4)}, {cc}")
        if t < 4:
            cc = "0" if t == 0 else vr(D2, 4)
            e(f"v_mfma_f32_16x16x32_bf16 {vr(D2,4)}, {vr(WQT+4*t,4)}, {vr(BQ[1],4)}, {cc}")
            bq(BQ[0], 2*t + 2)
            if t < 3: bq(BQ[1], 2*t + 3)
    stamp(7, "pro")
    e(f"v_lshrrev_b32 v4, 4, v{vLANE}"); e("v_lshlrev_b32 v4, 7, v4")
    e(f"v_and_b32 v5, 7, v{vLANE}"); e("v_lshl_add_u32 v4, v5, 2, v4")
    e(f"s_lshl_b32 s{t0}, s{sW}, 9"); e(f"s_add_u32 s{t0}, s{t0}, {L_OP}")
    e(f"v_add_u32 v4, s{t0}, v4")
    e(f"s_mov_b32 s{t4}, 0"); e(f"s_mov_b32 s{t5}, -1")
    for v in range(4):
        e(f"v_cndmask_b32 v{5+v}, v{D1+v}, v{D2+v}, {sr(t4,2)}")
    e(f"s_mov_b32 s{t4}, 0xff0000ff"); e(f"s_mov_b32 s{t5}, 0xff0000ff")
    e(f"s_mov_b64 exec, {sr(t4,2)}")
    for v in range(4):
        e(f"ds_write_b32 v4, v{5+v} offset:{32*v}")
    e("s_mov_b64 exec, -1")
    mk_srd(rWS, pWS, None, size=WS_SIZE)
    e("s_waitcnt lgkmcnt(0)")
    e(f"s_mul_i32 s{sTAG}, s{sTAG}, 1664525"); e(f"s_add_u32 s{sTAG}, s{sTAG}, 1013904223")
    e(f"s_mov_b32 s{sSPIN}, {P['SPIN']}")
    e("s_barrier")
    stamp(8, "pro")
    e(f"s_cmp_eq_u32 s{sW}, 0"); e("s_cbranch_scc0 L_notw0")
    c("wave 0: reduce + publish the q slice")
    e(f"v_lshrrev_b32 v4, 5, v{vLANE}"); e("v_lshlrev_b32 v4, 11, v4")
    e(f"v_and_b32 v5, 31, v{vLANE}"); e("v_lshl_add_u32 v4, v5, 2, v4"); e(f"v_add_u32 v4, {L_OP}, v4")
    for i in range(16): e(f"ds_read_b32 v{24+i}, v4 offset:{128*i}")
    e("s_waitcnt lgkmcnt(0)")
    idx = [24 + i for i in range(16)]
    while len(idx) > 1:
        nxt = []
        for i in range(0, len(idx), 2):
            e(f"v_add_f32 v{idx[i]}, v{idx[i]}, v{idx[i+1]}"); nxt.append(idx[i])
        idx = nxt
    e("v_mov_b32 v25, v24"); e("v_permlane32_swap_b32 v24, v25"); e("s_nop 0"); e("v_add_f32 v24, v24, v25")
    bf16r(24, 24)
    e(f"v_mov_b32 v25, s{sTAG}")
    e(f"s_lshl_b32 s{t0}, s{sPAIR}, 8"); e(f"s_lshl_b32 s{t1}, s{sS}, 5"); e(f"s_add_u32 s{t0}, s{t0}, s{t1}")
    e(f"s_lshl_b32 s{t0}, s{t0}, 3"); e(f"s_add_u32 s{t0}, s{t0}, {WS_QG}")
    e("v_lshlrev_b32 v5, 3, v5")
    e("s_mov_b32 exec_hi, 0")
    e(f"buffer_store_dwordx2 v[24:25], v5, {sr(rWS,4)}, s{t0} offen sc1")
    e("s_mov_b32 exec_hi, -1")
    if P["DYN"]:
        e(f"s_cmp_eq_u32 s{sSS}, 0"); e("s_cbranch_scc0 L_notw0")
        e(f"s_lshl_b32 s{t0}, s{sPS}, 7"); e(f"s_add_u32 s{t0}, s{t0}, {WS_CTR}")
        e("v_mov_b32 v24, 0"); e(f"v_mov_b32 v26, 0"); e(f"v_mov_b32 v27, s{sTAG}")
        e("s_mov_b64 exec, 1")
        e(f"buffer_store_dwordx2 v[26:27], v24, {sr(rWS,4)}, s{t0} offen sc1")
        e("s_mov_b64 exec, -1")
    a.lab("L_notw0")
    issue_kv_pre()
    c("DMA setup: phase 1 = w1 slice (6 steps), phase 2 = wo/w2 slice (11 steps)")
    e(f"s_mul_i32 s{t0}, s{sHKV}, 576"); e(f"s_mul_i32 s{t1}, s{sS}, 72"); e(f"s_add_u32 s{t0}, s{t0}, s{t1}")
    mk_srd(rA, pB1, None, size=4608*2)
    e(f"v_lshlrev_b32 v16, 1, v{vLANE}")
    e(f"buffer_load_ushort v{vB1}, v16, {sr(rA,4)}, s{t0} offen nt")
    e(f"s_and_b32 s{sDELTA}, s{t0}, 15")
    e(f"s_andn2_b32 s{t0}, s{t0}, 15")
    e(f"s_mul_i32 s{t1}, s{sW}, {72*9216}")
    e(f"s_add_u32 s{sDOFF}, s{t0}, s{t1}")
    mk_srd(rC, pW1, None, size=576*9216)
    e(f"s_mul_i32 s{sDLDS}, s{sW}, 6144")
    if L_W1: e(f"s_add_u32 s{sDLDS}, s{sDLDS}, {L_W1}")
    e(f"s_movk_i32 s{sDM}, 13108"); e(f"s_movk_i32 s{sDP}, {9216-80}")
    e(f"v_mov_b32 v{vDQ}, v{vLANE}")
    def dma_switch():
        e(f"s_cmp_lt_u32 s{sW}, 4")
        e(f"s_cselect_b32 s{rC}, s{pWO}, s{pW2}")
        e(f"s_cselect_b32 s{rC+1}, s{pWO+1}, s{pW2+1}")
        e(f"s_mov_b32 s{t4}, {4096*1152}")
        e(f"s_cselect_b32 s{rC+2}, s{t4}, {4608*1152}")
        e(f"s_and_b32 s{rC+1}, s{rC+1}, 0xffff")
        e(f"s_mov_b32 s{rC+3}, 0x20000")
        e(f"s_lshl_b32 s{t0}, s{sHKV}, 8"); e(f"s_lshl_b32 s{t1}, s{sW}, 6"); e(f"s_add_u32 s{t0}, s{t0}, s{t1}")
        e(f"s_mul_i32 s{t1}, s{sHKV}, 288"); e(f"s_mul_i32 s{t2}, s{sW}, 72"); e(f"s_add_u32 s{t1}, s{t1}, s{t2}")
        e(f"s_sub_u32 s{t1}, s{t1}, 288")
        e(f"s_cmp_lt_u32 s{sW}, 4")
        e(f"s_cselect_b32 s{t0}, s{t0}, s{t1}")
        e(f"s_mul_i32 s{t0}, s{t0}, 1152"); e(f"s_mul_i32 s{t1}, s{sS}, 144"); e(f"s_add_u32 s{sDOFF}, s{t0}, s{t1}")
        e(f"s_mul_i32 s{sDLDS}, s{sW}, 11264"); e(f"s_add_u32 s{sDLDS}, s{sDLDS}, {L_WW}")
        e(f"s_movk_i32 s{sDM}, 7282"); e(f"s_movk_i32 s{sDP}, 1008")
        e(f"v_mov_b32 v{vDQ}, v{vLANE}")
    def dma_step():
        e(f"v_mul_u32_u24 v47, s{sDM}, v{vDQ}"); e("v_lshrrev_b32 v47, 16, v47")
        e(f"v_mul_u32_u24 v47, s{sDP}, v47")
        e(f"v_lshl_add_u32 v47, v{vDQ}, 4, v47")
        e(f"s_mov_b32 m0, s{sDLDS}")
        e(f"v_add_u32 v{vDQ}, 64, v{vDQ}")
        e(f"buffer_load_dwordx4 v47, {sr(rC,4)}, s{sDOFF} offen {P['WPOL2']} lds")
        e(f"s_add_u32 s{sDLDS}, s{sDLDS}, 1024")
    e(f"v_and_b32 v16, 1, v{vLANE}"); e("v_cmp_eq_u32 vcc, 1, v16")
    e("v_mov_b32 v16, 0xffff"); e("v_mov_b32 v17, 0xffff0000")
    e("v_cndmask_b32 v16, v16, v17, vcc")
    for k in range(4): e(f"v_cndmask_b32 v{MASK+k}, 0, v16, {sr(sEQ[k],2)}")
    e(f"v_mov_b32 v{vM}, 0xff800000"); e(f"v_mov_b32 v{vML}, 0xff800000"); e(f"v_mov_b32 v{vL}, 0")
    for v in range(4): e(f"v_mov_b32 v{ACC+v}, 0")
    if BONUS:
        e(f"s_cmp_lt_u32 s{sW}, 4"); e("s_cbranch_scc1 L_nobonus")
        e(f"s_sub_u32 s{t0}, s{sW}, 4"); e(f"s_mul_i32 s{t0}, s{t0}, {BONUS*tile_bytes}")
        e(f"s_lshl_b32 s{t1}, s{sSS}, 20"); e(f"s_add_u32 s{t0}, s{t0}, s{t1}")
        for i in range(BONUS):
            issue_k(NB + i, t0); issue_v(NB + i, t0)
            if i + 1 < BONUS: e(f"s_add_u32 s{t0}, s{t0}, {tile_bytes}")
        a.lab("L_nobonus")
    if P["EARLY"]:
        e(f"s_cmp_lt_u32 s{sW}, 4"); e("s_cbranch_scc1 L_noearly")
        for i in range(P["EARLY"]): dma_step()
        e(f"s_mul_i32 s{sDLDS}, s{sW}, 6144"); e(f"v_mov_b32 v{vDQ}, v{vLANE}")
        a.lab("L_noearly")
    e(f"s_cmp_lt_u32 s{sW}, 4"); e("s_cbranch_scc0 L_pro_join")
    c("waves 0-3: gather q of the group")
    e(f"s_lshl_b32 s{t0}, s{sPS}, 11"); e(f"s_add_u32 s{t0}, s{t0}, {WS_QG}")
    e("v_lshlrev_b32 v4, 3, v0")
    a.lab("L_gather_q")
    e(f"buffer_load_dwordx2 v[6:7], v4, {sr(rWS,4)}, s{t0} offen sc1")
    e("s_waitcnt vmcnt(0)")
    e(f"v_cmp_ne_u32 vcc, s{sTAG}, v7")
    e("s_cbranch_vccz L_q_ok")
    spin_check("L_q_ok")
    if P["SLEEP"]: e(f"s_sleep {P['SLEEP']}")
    e("s_branch L_gather_q")
    a.lab("L_q_ok")
    e(f"v_lshlrev_b32 v4, 1, v0"); e(f"v_add_u32 v4, {L_QB}, v4")
    e("ds_write_b16_d16_hi v4, v6")
    if DEBUG:
        e(f"s_lshl_b32 s{t0}, s2, 10"); e(f"s_add_u32 s{t0}, s{t0}, {WS_DBG}")
        e("v_lshlrev_b32 v7, 2, v0")
        e(f"buffer_store_dword v6, v7, {sr(rWS,4)}, s{t0} offen")
    a.lab("L_pro_join")
    stamp(9, "pro")
    e("s_waitcnt lgkmcnt(0)")
    e("s_barrier")
    c("BK operand: QB + h*256 + (a+4g)*16")
    e(f"v_bfe_u32 v15, v{vLANE}, 3, 1"); e("v_lshlrev_b32 v15, 8, v15")
    e(f"v_lshrrev_b32 v16, 4, v{vLANE}"); e("v_lshl_add_u32 v15, v16, 6, v15")
    e(f"v_and_b32 v16, 3, v{vLANE}"); e("v_lshl_add_u32 v15, v16, 4, v15")
    e(f"v_add_u32 v15, {L_QB}, v15")
    e(f"ds_read_b128 {vr(BK,4)}, v15")
    e("s_waitcnt lgkmcnt(0)")
    stamp(3)

    NOUT = 2 * TL * NB - TL
    vA = PR0 + 64
    RANGE = (1 << 20) // tile_bytes
    PUB = RANGE // P["PUBFRAC"] if P["DYN"] else 0
    PRIV = RANGE - PUB
    OOB = 1 << 23
    def issue_atomic():
        e(f"v_mov_b32 v{vA}, 1"); e(f"v_mov_b32 v{vA+1}, 0"); e(f"v_mov_b32 v{vA+2}, 0")
        e("s_mov_b64 exec, 1")
        e(f"buffer_atomic_add_x2 {vr(vA,2)}, v{vA+2}, {sr(rWS,4)}, s{sCTR} offen sc0")
        e("s_mov_b64 exec, -1")
    WT = 164; TV = 236; B5 = PR0 + 46
    NV = 256

    def pretail():
        c("---- pre-tail: everything of the tail that does not depend on the attention result")
        if P["CPF"] & 2:
            e("s_getpc_b64 s[4:5]")
            a.lab("L_pc2")
            e(f"v_lshlrev_b32 v{TV+14}, 7, v{vLANE}")
            e(f"v_add_u32 v{TV+14}, L_stream_done-L_pc2, v{TV+14}")
            e(f"v_cmp_gt_u32 vcc, L_exit-L_pc2, v{TV+14}")
            e(f"s_and_saveexec_b64 {sr(sEX,2)}, vcc")
            e("s_cbranch_execz L_nocpf2")
            e(f"global_load_dword v{TV+15}, v{TV+14}, s[4:5]")
            a.lab("L_nocpf2")
            e(f"s_mov_b64 exec, {sr(sEX,2)}")
        e(f"v_bfe_u32 v24, v{vLANE}, 3, 1"); e(f"v_lshlrev_b32 v{TV+0}, 9, v24")
        e(f"v_lshrrev_b32 v25, 4, v{vLANE}"); e(f"v_lshl_add_u32 v{TV+0}, v25, 7, v{TV+0}")
        e(f"v_and_b32 v26, 7, v{vLANE}"); e(f"v_lshl_add_u32 v{TV+0}, v26, 2, v{TV+0}")
        e(f"s_lshl_b32 s{t0}, s{sW}, 10"); e(f"s_add_u32 s{t0}, s{t0}, {L_OP}")
        e(f"v_add_u32 v{TV+0}, s{t0}, v{TV+0}")
        e(f"v_lshlrev_b32 v{TV+1}, 3, v24")
        e(f"s_lshl_b32 s{t0}, s{sW}, 4"); e(f"s_add_u32 s{t0}, s{t0}, {L_MLP}")
        e(f"v_add_u32 v{TV+1}, s{t0}, v{TV+1}")
        e(f"v_lshlrev_b32 v{TV+7}, 7, v25"); e(f"v_lshl_add_u32 v{TV+7}, v24, 6, v{TV+7}"); e(f"v_lshl_add_u32 v{TV+7}, v26, 2, v{TV+7}")
        e(f"s_lshl_b32 s{t0}, s{sW}, 9"); e(f"s_add_u32 s{t0}, s{t0}, {L_YP}")
        e(f"v_add_u32 v{TV+7}, s{t0}, v{TV+7}")
        e(f"s_cmp_lt_u32 s{sW}, 4")
        e(f"s_cselect_b32 s{t0}, 16, 18")
        e(f"v_mul_u32_u24 v27, s{t0}, v25")
        e("v_mul_u32_u24 v28, 9, v27")
        e(f"v_and_b32 v29, 15, v{vLANE}"); e("v_min_u32 v29, 8, v29"); e("v_add_u32 v28, v28, v29")
        e("v_lshlrev_b32 v28, 4, v28")
        e(f"s_mul_i32 s{t2}, s{sW}, 11264"); e(f"s_add_u32 s{t2}, s{t2}, {L_WW}")
        e(f"v_add_u32 v28, s{t2}, v28")
        e(f"v_lshlrev_b32 v{TV+2}, 2, v0"); e(f"v_add_u32 v{TV+2}, {L_OP}, v{TV+2}")
        e(f"v_lshlrev_b32 v{TV+3}, 3, v0")
        e(f"v_lshlrev_b32 v{TV+4}, 5, v26"); e(f"v_lshl_add_u32 v{TV+4}, v24, 4, v{TV+4}")
        e(f"v_lshlrev_b32 v{TV+5}, 1, v0"); e(f"v_add_u32 v{TV+5}, {L_VAL}, v{TV+5}")
        e(f"v_lshlrev_b32 v{TV+6}, 5, v25"); e(f"s_lshl_b32 s{t1}, s{sW}, 7"); e(f"s_add_u32 s{t1}, s{t1}, {L_VAL}")
        e(f"v_add_u32 v{TV+6}, s{t1}, v{TV+6}")
        e(f"v_min_u32 v30, 71, v0")
        e(f"v_lshlrev_b32 v{TV+8}, 2, v30"); e(f"v_add_u32 v{TV+8}, {L_YP}, v{TV+8}")
        e(f"v_lshlrev_b32 v{TV+9}, 4, v30")
        e(f"v_min_u32 v30, 143, v0"); e(f"v_lshlrev_b32 v{TV+10}, 3, v30")
        e(f"v_lshrrev_b32 v30, 1, v30"); e(f"v_lshlrev_b32 v{TV+13}, 1, v30")
        e(f"s_cmp_lt_u32 s{sW}, 4"); e("s_cbranch_scc0 L_pt_b")
        c("waves 0-3")
        for j in range(16): e(f"ds_read_b128 {vr(WT+4*j,4)}, v28 offset:{144*j}")
        e(f"s_mul_i32 s{t0}, s{sB}, 1152"); e(f"s_mul_i32 s{t1}, s{sS}, 144"); e(f"s_add_u32 s{t0}, s{t0}, s{t1}")
        mk_srd(rA, pX, None, size=2304)
        mk_srd(rB, pB2, None, size=1152)
        e(f"buffer_load_ushort v{TV+11}, v{TV+13}, {sr(rA,4)}, s{t0} offen nt")
        e(f"buffer_load_ushort v{TV+12}, v{TV+13}, {sr(rB,4)}, s{t1} offen nt")
        mk_srd(rA, pOUT, None, size=2304)
        e("s_waitcnt lgkmcnt(0)")
        e("s_branch L_pt_done")
        a.lab("L_pt_b")
        c("waves 4-7: MLP down projection for this column slice (72 hidden rows per wave)")
        e(f"s_mul_i32 s{t0}, s{sPAIR}, 288"); e(f"s_mul_i32 s{t1}, s{sW}, 72"); e(f"s_add_u32 s{t0}, s{t0}, s{t1}")
        e(f"s_sub_u32 s{t0}, s{t0}, 288"); e(f"s_lshl_b32 s{t0}, s{t0}, 3"); e(f"s_add_u32 s{t0}, s{t0}, {WS_HG}")
        e(f"v_lshlrev_b32 v30, 3, v{vLANE}")
        e(f"v_and_b32 v31, 7, v{vLANE}"); e("v_lshlrev_b32 v31, 3, v31")
        for j in range(18): e(f"ds_read_b128 {vr(WT+4*j,4)}, v28 offset:{144*j}")
        a.lab("L_gather_h")
        e(f"buffer_load_dwordx2 v[32:33], v30, {sr(rWS,4)}, s{t0} offen sc1")
        e(f"buffer_load_dwordx2 v[34:35], v31, {sr(rWS,4)}, s{t0} offen offset:512 sc1")
        e("s_waitcnt vmcnt(0)")
        e(f"v_xor_b32 v36, s{sTAG}, v33"); e(f"v_xor_b32 v37, s{sTAG}, v35"); e("v_or_b32 v36, v36, v37")
        e("v_cmp_ne_u32 vcc, 0, v36")
        e("s_cbranch_vccz L_h_ok")
        spin_check("L_h_ok")
        if P["SLEEP"]: e(f"s_sleep {P['SLEEP']}")
        e("s_branch L_gather_h")
        a.lab("L_h_ok")
        e(f"s_mul_i32 s{t1}, s{sW}, 144"); e(f"s_add_u32 s{t1}, s{t1}, {L_VALH - 576}")
        e(f"v_lshlrev_b32 v36, 1, v{vLANE}"); e(f"v_add_u32 v36, s{t1}, v36")
        e("ds_write_b16_d16_hi v36, v32")
        e(f"v_and_b32 v37, 7, v{vLANE}"); e("v_lshlrev_b32 v37, 1, v37"); e(f"v_add_u32 v37, s{t1}, v37")
        e("ds_write_b16_d16_hi v37, v34 offset:128")
        e("v_lshlrev_b32 v27, 1, v27"); e(f"v_add_u32 v27, s{t1}, v27")
        e("s_waitcnt lgkmcnt(0)")
        VPB = 32
        for t in range(9): e(f"ds_read_b32 v{VPB+t}, v27 offset:{4*t}")
        e("s_waitcnt lgkmcnt(0)")
        BB = 24
        def b5(j):
            for k in range(4):
                e(f"v_perm_b32 v{B5+4*(j%4)+k}, v{VPB+(j>>1)}, v{VPB+(j>>1)}, v{SELQ+(j&1)*4+k}")
        b5(0); b5(1); b5(2)
        for j in range(18):
            cc = "0" if j == 0 else vr(24, 4)
            e(f"v_mfma_f32_16x16x32_bf16 {vr(24,4)}, {vr(WT+4*j,4)}, {vr(B5+4*(j%4),4)}, {cc}")
            if j + 3 < 18: b5(j + 3)
        e(f"v_cndmask_b32 v28, v24, v26, {sr(sX1,2)}")
        e(f"v_cndmask_b32 v29, v25, v27, {sr(sX1,2)}")
        e(f"ds_write_b32 v{TV+7}, v28"); e(f"ds_write_b32 v{TV+7}, v29 offset:32")
        e("s_waitcnt lgkmcnt(0)")
        a.lab("L_pt_done")
    uid = [0]
    def tile(b, waits, dma=False, reissue=True, mode="S"):
        uid[0] += 1; u = uid[0]
        if waits: e(f"s_waitcnt vmcnt({NOUT})")
        for j in range(TL):
            e(f"v_mfma_f32_16x16x32_bf16 {vr(DB+4*j,4)}, {vr(kreg(b,j),4)}, {vr(BK,4)}, 0")
        if dma: dma_step()
        if mode == "D":
            e(f"v_readfirstlane_b32 s{t0}, v{vA}"); e(f"v_readfirstlane_b32 s{t1}, v{vA+1}")
            e(f"s_cmp_lg_u32 s{t1}, s{sTAG}"); e("s_cbranch_scc1 L_ctr_retry")
            a.lab("L_ctr_ok")
            lg = PUB.bit_length() - 1
            if P["PMAP"]:
                e(f"s_and_b32 s{t1}, s{t0}, 7"); e(f"s_lshr_b32 s{t2}, s{t0}, 3")
            else:
                e(f"s_lshr_b32 s{t1}, s{t0}, {lg}"); e(f"s_and_b32 s{t2}, s{t0}, {PUB-1}")
            e(f"s_lshl_b32 s{t1}, s{t1}, 20"); e(f"s_add_u32 s{t2}, s{t2}, {PRIV}")
            e(f"s_mul_i32 s{t2}, s{t2}, {tile_bytes}"); e(f"s_add_u32 s{sNXT}, s{t1}, s{t2}")
            e(f"s_cmp_ge_u32 s{t0}, {8*PUB}")
            e(f"s_cselect_b32 s{sNXT}, {OOB}, s{sNXT}")
            e(f"s_cbranch_scc1 L_dskipk")
            issue_k(b, sNXT)
            issue_atomic()
            a.lab("L_dskipk")
        elif reissue:
            issue_k(b)
            if mode == "SA": issue_atomic()
        U = [SREG + j for j in range(TL)]
        if TL == 4:
            for j in range(TL):
                e(f"v_mov_b32_dpp v{U[j]}, v{DB+4*j} quad_perm:[0,0,0,0] row_mask:0xf bank_mask:0xf")
            for q in range(1, 4):
                for j in range(TL):
                    e(f"v_add_f32_dpp v{U[j]}, v{DB+4*j+q}, v{U[j]} quad_perm:[{q},{q},{q},{q}] row_mask:0xf bank_mask:0xf")
        else:
            W = [SREG + 4 + j for j in range(TL)]
            for j in range(TL):
                e(f"v_mov_b32_dpp v{U[j]}, v{DB+4*j} quad_perm:[0,0,0,0] row_mask:0xf bank_mask:0xf")
            for j in range(TL):
                e(f"v_mov_b32_dpp v{W[j]}, v{DB+4*j+2} quad_perm:[2,2,2,2] row_mask:0xf bank_mask:0xf")
            for j in range(TL):
                e(f"v_add_f32_dpp v{U[j]}, v{DB+4*j+1}, v{U[j]} quad_perm:[1,1,1,1] row_mask:0xf bank_mask:0xf")
            for j in range(TL):
                e(f"v_add_f32_dpp v{W[j]}, v{DB+4*j+3}, v{W[j]} quad_perm:[3,3,3,3] row_mask:0xf bank_mask:0xf")
            for j in range(TL):
                e(f"v_add_f32 v{U[j]}, v{U[j]}, v{W[j]}")
        for j in range(TL): bf16r(U[j], U[j])
        for j in range(TL): e(f"v_mul_f32 v{U[j]}, s{sSCL}, v{U[j]}")
        for j in range(TL): bf16r(U[j], U[j])
        m2 = vt[0]
        if TL == 1: e(f"v_max_f32 v{m2}, v{vM}, v{U[0]}")
        else:
            e(f"v_max3_f32 v{m2}, v{vM}, v{U[0]}, v{U[1]}")
            j = 2
            while j < TL:
                e(f"v_max3_f32 v{m2}, v{m2}, v{U[j]}, v{U[j+1]}"); j += 2
        cross_rows(m2, vt[1], "v_max_f32")
        e(f"v_mul_f32 v{vt[1]}, s{sL2E}, v{m2}")
        e(f"v_mov_b32 v{vM}, v{m2}")
        e(f"v_sub_f32 v{vt[2]}, v{vML}, v{vt[1]}")
        for j in range(TL): e(f"v_fma_f32 v{U[j]}, v{U[j]}, s{sL2E}, -v{vt[1]}")
        e(f"v_exp_f32 v{vt[2]}, v{vt[2]}")
        for j in range(TL): e(f"v_exp_f32 v{U[j]}, v{U[j]}")
        e(f"v_mov_b32 v{vML}, v{vt[1]}")
        e(f"v_fma_f32 v{vL}, v{vL}, v{vt[2]}, v{U[0]}")
        for v in range(4): e(f"v_mul_f32 v{ACC+v}, v{ACC+v}, v{vt[2]}")
        for j in range(1, TL): e(f"v_add_f32 v{vL}, v{vL}, v{U[j]}")
        for j in range(TL): e(f"v_cvt_pk_bf16_f32 v{U[j]}, v{U[j]}, v{U[j]}")
        for j in range(TL):
            for k in range(4): e(f"v_and_b32 v{DB+4*j+k}, v{U[j]}, v{MASK+k}")
        if mode == "D":
            e(f"s_cmp_ge_u32 s{sNXT}, {OOB}"); e("s_cbranch_scc1 L_dlast")
            e(f"s_waitcnt vmcnt({NOUT + 1})")
            for j in range(TL):
                e(f"v_mfma_f32_16x16x32_bf16 {vr(ACC,4)}, {vr(vreg(b,j),4)}, {vr(DB+4*j,4)}, {vr(ACC,4)}")
            issue_v(b, sNXT)
            e("s_branch L_loopD")
            a.lab("L_dlast")
            e("s_waitcnt vmcnt(0)")
            for j in range(TL):
                e(f"v_mfma_f32_16x16x32_bf16 {vr(ACC,4)}, {vr(vreg(b,j),4)}, {vr(DB+4*j,4)}, {vr(ACC,4)}")
            return
        if waits: e(f"s_waitcnt vmcnt({NOUT + (1 if mode == 'SA' else 0)})")
        for j in range(TL):
            e(f"v_mfma_f32_16x16x32_bf16 {vr(ACC,4)}, {vr(vreg(b,j),4)}, {vr(DB+4*j,4)}, {vr(ACC,4)}")
        if reissue: issue_v(b)
    c("---- peeled first tiles (landed: covered by earlier waits for waves 0-3; wait for the others)")
    if BONUS:
        e(f"s_cmp_lt_u32 s{sW}, 4"); e("s_cbranch_scc1 L_peel_lo")
        e(f"s_waitcnt vmcnt({1 + 2*TL*BONUS})")
        tile(0, False)
        for i in range(BONUS):
            e(f"s_waitcnt vmcnt({2*TL*(BONUS - i)})")
            tile(NB + i, False, reissue=False)
        e("s_branch L_peel_done")
        a.lab("L_peel_lo")
    e("s_waitcnt vmcnt(1)")
    for b in range(NB): tile(b, False)
    for b in range(NB, NBT): tile(b, False, reissue=False)
    if BONUS: a.lab("L_peel_done")
    N1, N2 = 6, 11
    assert NB == 1
    c("---- loop A: tiles + DMA of w1 (6 steps) then wo/w2 (11 steps)")
    e(f"s_mov_b32 s{sCNT}, {N1 + N2}")
    a.lab("L_loopA")
    e(f"s_cmp_eq_u32 s{sCNT}, {N2}"); e("s_cbranch_scc0 L_noswitch")
    dma_switch()
    a.lab("L_noswitch")
    tile(0, True, dma=True)
    e(f"s_sub_u32 s{sCNT}, s{sCNT}, 1"); e(f"s_cmp_lg_u32 s{sCNT}, 0"); e("s_cbranch_scc1 L_loopA")
    c("---- hidden slice: 18 MFMAs 16x16x16")
    e(f"v_lshrrev_b32 v24, 4, v{vLANE}"); e("v_mul_u32_u24 v24, 1440, v24")
    e(f"v_and_b32 v25, 15, v{vLANE}"); e("v_min_u32 v25, 8, v25"); e("v_lshl_add_u32 v24, v25, 3, v24")
    e(f"s_mul_i32 s{t0}, s{sW}, 6144"); e(f"s_add_u32 s{t0}, s{t0}, s{sDELTA}")
    if L_W1: e(f"s_add_u32 s{t0}, s{t0}, {L_W1}")
    e(f"v_add_u32 v24, s{t0}, v24")
    for j in range(18): e(f"ds_read_b64 {vr(HA+2*j,2)}, v24 offset:{80*j}")
    def hb(j):
        for k in range(2):
            e(f"v_perm_b32 v{HB+2*(j%4)+k}, v{XP+(j>>1)}, v{XP+(j>>1)}, v{SELH+(j&1)*2+k}")
    hb(0); hb(1); hb(2)
    e("s_waitcnt lgkmcnt(0)")
    for j in range(18):
        cc = "0" if j == 0 else vr(HACC, 4)
        e(f"v_mfma_f32_16x16x16_bf16 {vr(HACC,4)}, {vr(HA+2*j,2)}, {vr(HB+2*(j%4),2)}, {cc}")
        if j + 3 < 18: hb(j + 3)
    e(f"s_lshl_b32 s{t0}, s{sW}, 8"); e(f"s_add_u32 s{t0}, s{t0}, {L_HP}")
    e(f"v_lshlrev_b32 v26, 2, v{vLANE}"); e(f"v_add_u32 v26, s{t0}, v26")
    e(f"v_bfe_u32 v25, v{vLANE}, 2, 2")
    e(f"v_cmp_eq_u32 vcc, 1, v25"); e(f"v_cmp_eq_u32 {sr(t4,2)}, 2, v25"); e(f"v_cmp_eq_u32 {sr(sEX,2)}, 3, v25")
    e(f"v_cndmask_b32 v27, v{HACC}, v{HACC+1}, vcc")
    e(f"v_cndmask_b32 v27, v27, v{HACC+2}, {sr(t4,2)}")
    e(f"v_cndmask_b32 v27, v27, v{HACC+3}, {sr(sEX,2)}")
    e("ds_write_b32 v26, v27")
    e("s_waitcnt lgkmcnt(0)")
    e("s_barrier")
    e(f"s_cmp_eq_u32 s{sW}, 4"); e("s_cbranch_scc0 L_noh")
    c("wave 4: reduce + publish hidden slice")
    e(f"v_lshlrev_b32 v24, 2, v{vLANE}"); e(f"v_add_u32 v24, {L_HP}, v24")
    for w in range(8): e(f"ds_read_b32 v{25+w}, v24 offset:{256*w}")
    e("s_waitcnt lgkmcnt(0)")
    for w in range(1, 8): e(f"v_add_f32 v25, v25, v{25+w}")
    bf16r(25, 25)
    e(f"v_lshlrev_b32 v26, 16, v{vB1}")
    e("v_add_f32 v25, v25, v26"); bf16r(25, 25)
    e("v_max_f32 v25, 0, v25"); e("v_mul_f32 v24, v25, v25"); bf16r(24, 24)
    e(f"v_mov_b32 v25, s{sTAG}")
    e(f"s_mul_i32 s{t0}, s{sPAIR}, 288"); e(f"s_mul_i32 s{t1}, s{sS}, 36"); e(f"s_add_u32 s{t0}, s{t0}, s{t1}")
    e(f"s_lshl_b32 s{t0}, s{t0}, 3"); e(f"s_add_u32 s{t0}, s{t0}, {WS_HG}")
    e(f"v_lshlrev_b32 v26, 3, v{vLANE}")
    e(f"v_cmp_gt_u32 vcc, 36, v{vLANE}")
    e(f"s_and_saveexec_b64 {sr(sEX,2)}, vcc")
    e(f"buffer_store_dwordx2 v[24:25], v26, {sr(rWS,4)}, s{t0} offen sc1")
    e(f"s_mov_b64 exec, {sr(sEX,2)}")
    a.lab("L_noh")
    nA = N1 + N2
    c("---- main loop")
    assert (PRIV - 4*BONUS) % NW == 0
    NSTAT = (PRIV - 4*BONUS) // NW
    if P["DYN"]:
        nS = NSTAT - NBT - nA - 2
    else:
        nS = NSTAT - NBT - nA
    assert nS > 0
    e(f"s_mov_b32 s{sCNT}, {nS}")
    e(f"s_lshl_b32 s{sCTR}, s{sPS}, 7"); e(f"s_add_u32 s{sCTR}, s{sCTR}, {WS_CTR}")
    e(f"v_mov_b32 v{vA+2}, 0")
    a.raw(".p2align 6")
    a.lab("L_loop")
    tile(0, True)
    e(f"s_sub_u32 s{sCNT}, s{sCNT}, 1")
    e(f"s_cmp_lg_u32 s{sCNT}, 0")
    e("s_cbranch_scc1 L_loop")
    pretail()
    if P["DYN"]:
        tile(0, True, mode="SA")
        a.raw(".p2align 6")
        a.lab("L_loopD")
        tile(0, True, mode="D")
        e("s_branch L_stream_done")
        a.lab("L_ctr_retry")
        c("counter not initialised yet (tag mismatch): retry the grab")
        e("s_waitcnt vmcnt(0)")
        spin_check("L_ctr_giveup")
        if P["SLEEP"]: e(f"s_sleep {P['SLEEP']}")
        issue_atomic()
        e("s_waitcnt vmcnt(0)")
        e(f"v_readfirstlane_b32 s{t0}, v{vA}"); e(f"v_readfirstlane_b32 s{t1}, v{vA+1}")
        e(f"s_cmp_lg_u32 s{t1}, s{sTAG}"); e("s_cbranch_scc1 L_ctr_retry")
        e("s_branch L_ctr_ok")
        a.lab("L_ctr_giveup")
        e(f"s_mov_b32 s{t0}, {8*PUB}")
        e("s_branch L_ctr_ok")
        a.lab("L_stream_done")
    else:
        pass

    c("---- T1: combine the 8 waves of the workgroup")
    e("s_waitcnt vmcnt(0)")
    stamp(4)
    cross_rows(vL, vt[0], "v_add_f32")
    for v in range(4): e(f"ds_write_b32 v{TV+0}, v{ACC+v} offset:{32*v}")
    e(f"v_mov_b32 v26, v{vM}"); e(f"v_mov_b32 v27, v{vL}")
    e("s_mov_b64 exec, 0x101")
    e(f"ds_write_b64 v{TV+1}, v[26:27]")
    e("s_mov_b64 exec, -1")
    e("s_waitcnt lgkmcnt(0)")
    e("s_barrier")
    e(f"s_cmp_lt_u32 s{sW}, 4"); e("s_cbranch_scc0 L_bpub")
    c("waves 0-3: WG partial for (h = w>>1, t)")
    e(f"s_lshr_b32 s{t0}, s{sW}, 1")
    e(f"s_lshl_b32 s{t1}, s{t0}, 3"); e(f"s_add_u32 s{t1}, s{t1}, {L_MLP}")
    e(f"v_mov_b32 v24, s{t1}")
    for w in range(8): e(f"ds_read_b64 {vr(28+2*w,2)}, v24 offset:{16*w}")
    for w in range(8): e(f"ds_read_b32 v{44+w}, v{TV+2} offset:{1024*w}")
    e(f"s_lshl_b32 s{t1}, s{sPS}, 3"); e(f"s_or_b32 s{t1}, s{t1}, s{sSS}")
    e(f"s_lshl_b32 s{t2}, s{t1}, 11"); e(f"s_add_u32 s{t2}, s{t2}, {WS_OG}")
    e(f"v_mov_b32 v53, s{sTAG}")
    e("s_waitcnt lgkmcnt(8)")
    e("v_max3_f32 v26, v28, v30, v32"); e("v_max3_f32 v26, v26, v34, v36"); e("v_max3_f32 v26, v26, v38, v40"); e("v_max_f32 v26, v26, v42")
    for w in range(8): e(f"v_sub_f32 v{28+2*w}, v{28+2*w}, v26")
    for w in range(8): e(f"v_mul_f32 v{28+2*w}, s{sL2E}, v{28+2*w}")
    for w in range(8): e(f"v_exp_f32 v{28+2*w}, v{28+2*w}")
    e("s_waitcnt lgkmcnt(0)")
    e("v_mul_f32 v52, v28, v44"); e("v_mul_f32 v27, v28, v29")
    for w in range(1, 8):
        e(f"v_fmac_f32 v52, v{28+2*w}, v{44+w}"); e(f"v_fmac_f32 v27, v{28+2*w}, v{29+2*w}")
    e(f"buffer_store_dwordx2 v[52:53], v{TV+3}, {sr(rWS,4)}, s{t2} offen sc1")
    e(f"s_and_b32 s{t2}, s{sW}, 1"); e(f"s_cmp_eq_u32 s{t2}, 0"); e("s_cbranch_scc0 L_ml_done")
    e(f"v_cmp_eq_u32 vcc, 1, v{vLANE}")
    e(f"s_lshl_b32 s{t2}, s{t1}, 5"); e(f"s_lshl_b32 s{t3}, s{t0}, 3"); e(f"s_add_u32 s{t2}, s{t2}, s{t3}"); e(f"s_add_u32 s{t2}, s{t2}, {WS_MLG}")
    e("v_cndmask_b32 v56, v26, v27, vcc"); e(f"v_mov_b32 v57, s{sTAG}")
    e(f"v_lshlrev_b32 v58, 4, v{vLANE}")
    e("s_mov_b64 exec, 3")
    e(f"buffer_store_dwordx2 v[56:57], v58, {sr(rWS,4)}, s{t2} offen sc1")
    e("s_mov_b64 exec, -1")
    a.lab("L_ml_done")
    stamp(5, "tail")
    c("T4: poll ML granules of the group for head h")
    e(f"s_lshl_b32 s{t2}, s{sPAIR}, 8"); e(f"s_lshl_b32 s{t3}, s{t0}, 3"); e(f"s_add_u32 s{t2}, s{t2}, s{t3}"); e(f"s_add_u32 s{t2}, s{t2}, {WS_MLG}")
    e(f"s_lshl_b32 s{t3}, s{sPAIR}, 14"); e(f"s_add_u32 s{t3}, s{t3}, {WS_OG}")
    def weights():
        e("v_mov_b32 v44, v26")
        e("v_max_f32_dpp v44, v44, v44 quad_perm:[1,0,3,2] row_mask:0xf bank_mask:0xf")
        e("v_max_f32_dpp v44, v44, v44 quad_perm:[2,3,0,1] row_mask:0xf bank_mask:0xf")
        e("v_max_f32_dpp v44, v44, v44 row_half_mirror row_mask:0xf bank_mask:0xf")
        e("v_mov_b32_dpp v45, v26 row_ror:8 row_mask:0xf bank_mask:0xf")
        e("v_sub_f32 v46, v26, v44"); e(f"v_mul_f32 v46, s{sL2E}, v46"); e("v_exp_f32 v46, v46")
        e("v_mul_f32 v47, v46, v45")
        e("v_add_f32_dpp v47, v47, v47 quad_perm:[1,0,3,2] row_mask:0xf bank_mask:0xf")
        e("v_add_f32_dpp v47, v47, v47 quad_perm:[2,3,0,1] row_mask:0xf bank_mask:0xf")
        e("v_add_f32_dpp v47, v47, v47 row_half_mirror row_mask:0xf bank_mask:0xf")
        e("v_rcp_f32 v47, v47")
        e("v_mul_f32 v46, v46, v47")
        for s_ in range(8): e(f"v_readlane_b32 s{sWT+s_}, v46, {s_}")
    if P["T4M"]:
        sHAVE = sCNT
        e(f"s_mov_b32 s{sHAVE}, 0")
        a.lab("L_t4")
        e(f"buffer_load_dwordx2 v[26:27], v{TV+4}, {sr(rWS,4)}, s{t2} offen sc1")
        for s_ in range(8):
            e(f"s_bitcmp1_b32 s{sHAVE}, {s_}"); e(f"s_cbranch_scc1 L_t4a{s_}")
            e(f"s_add_u32 s{t0}, s{t3}, {2048*s_}")
            e(f"buffer_load_dwordx2 {vr(28+2*s_,2)}, v{TV+3}, {sr(rWS,4)}, s{t0} offen sc1")
            a.lab(f"L_t4a{s_}")
        e("s_waitcnt vmcnt(0)")
        for s_ in range(8):
            e(f"v_cmp_ne_u32 vcc, s{sTAG}, v{29+2*s_}")
            e("s_cmp_eq_u64 vcc, 0")
            e(f"s_cselect_b32 s{t0}, {1 << s_}, 0")
            e(f"s_or_b32 s{sHAVE}, s{sHAVE}, s{t0}")
        e(f"v_cmp_ne_u32 vcc, s{sTAG}, v27")
        e("s_cmp_eq_u64 vcc, 0")
        e(f"s_cselect_b32 s{t0}, 0x100, 0")
        e(f"s_or_b32 s{t0}, s{t0}, s{sHAVE}")
        e(f"s_cmp_eq_u32 s{t0}, 0x1ff"); e("s_cbranch_scc1 L_ml_ok")
        spin_check("L_ml_ok")
        e(f"s_bcnt1_i32_b32 s{t0}, s{sHAVE}"); e(f"s_cmp_ge_u32 s{t0}, 6"); e("s_cbranch_scc1 L_t4")
        e("s_sleep 6")
        e("s_branch L_t4")
        a.lab("L_ml_ok")
        stamp(6, "tail")
        weights()
    else:
        a.lab("L_poll_ml")
        e(f"buffer_load_dwordx2 v[26:27], v{TV+4}, {sr(rWS,4)}, s{t2} offen sc1")
        e("s_waitcnt vmcnt(0)")
        e(f"v_cmp_ne_u32 vcc, s{sTAG}, v27")
        e("s_cbranch_vccz L_ml_ok")
        spin_check("L_ml_ok")
        if P["SLEEP"]: e(f"s_sleep {P['SLEEP']}")
        e("s_branch L_poll_ml")
        a.lab("L_ml_ok")
        stamp(6, "tail")
        a.lab("L_gather_o")
        e(f"s_mov_b32 s{t2}, s{t3}")
        for s_ in range(8):
            e(f"buffer_load_dwordx2 {vr(28+2*s_,2)}, v{TV+3}, {sr(rWS,4)}, s{t2} offen sc1")
            if s_ < 7: e(f"s_add_u32 s{t2}, s{t2}, 2048")
        e("v_mov_b32 v44, v26")
        e("v_max_f32_dpp v44, v44, v44 quad_perm:[1,0,3,2] row_mask:0xf bank_mask:0xf")
        e("v_max_f32_dpp v44, v44, v44 quad_perm:[2,3,0,1] row_mask:0xf bank_mask:0xf")
        e("v_max_f32_dpp v44, v44, v44 row_half_mirror row_mask:0xf bank_mask:0xf")
        e("v_mov_b32_dpp v45, v26 row_ror:8 row_mask:0xf bank_mask:0xf")
        e("v_sub_f32 v46, v26, v44"); e(f"v_mul_f32 v46, s{sL2E}, v46"); e("v_exp_f32 v46, v46")
        e("v_mul_f32 v47, v46, v45")
        e("v_add_f32_dpp v47, v47, v47 quad_perm:[1,0,3,2] row_mask:0xf bank_mask:0xf")
        e("v_add_f32_dpp v47, v47, v47 quad_perm:[2,3,0,1] row_mask:0xf bank_mask:0xf")
        e("v_add_f32_dpp v47, v47, v47 row_half_mirror row_mask:0xf bank_mask:0xf")
        e("v_rcp_f32 v47, v47")
        e("v_mul_f32 v46, v46, v47")
        for s_ in range(8): e(f"v_readlane_b32 s{sWT+s_}, v46, {s_}")
        e("s_waitcnt vmcnt(0)")
        e(f"v_xor_b32 v48, s{sTAG}, v29")
        for s_ in range(1, 8):
            e(f"v_xor_b32 v49, s{sTAG}, v{29+2*s_}"); e("v_or_b32 v48, v48, v49")
        e("v_cmp_ne_u32 vcc, 0, v48")
        e("s_cbranch_vccz L_o_ok")
        spin_check("L_o_ok")
        e("s_branch L_gather_o")
    a.lab("L_o_ok")
    e(f"v_mul_f32 v48, s{sWT}, v28")
    for s_ in range(1, 8): e(f"v_fmac_f32 v48, s{sWT+s_}, v{28+2*s_}")
    e("v_cvt_pk_bf16_f32 v48, v48, v48")
    e(f"ds_write_b16 v{TV+5}, v48")
    if DEBUG:
        e(f"v_lshlrev_b32 v50, 16, v48")
        e(f"s_lshl_b32 s{t0}, s2, 10"); e(f"s_add_u32 s{t0}, s{t0}, {WS_DBG + 0x40000}")
        e("v_lshlrev_b32 v51, 2, v0")
        e(f"buffer_store_dword v50, v51, {sr(rWS,4)}, s{t0} offen")
    e("s_waitcnt lgkmcnt(0)")
    e("s_barrier")
    stamp(7, "tail")
    c("---- T5: attention output projection slice (64 rows per wave)")
    VP = 32
    e(f"ds_read_b128 {vr(VP,4)}, v{TV+6}"); e(f"ds_read_b128 {vr(VP+4,4)}, v{TV+6} offset:16")
    e(f"s_lshl_b32 s{t2}, s{sB}, 3"); e(f"s_or_b32 s{t2}, s{t2}, s{sS}"); e(f"s_lshl_b32 s{t2}, s{t2}, 4")
    e(f"s_mul_i32 s{t3}, s{t2}, 1152"); e(f"s_add_u32 s{t3}, s{t3}, {WS_YG}")
    e(f"s_mul_i32 s{t2}, s{sHKV}, 1152"); e(f"s_add_u32 s{t2}, s{t2}, s{t3}")
    def b5(j):
        for k in range(4):
            e(f"v_perm_b32 v{B5+4*(j%4)+k}, v{VP+(j>>1)}, v{VP+(j>>1)}, v{SELQ+(j&1)*4+k}")
    e("s_waitcnt lgkmcnt(0)")
    b5(0); b5(1); b5(2)
    for j in range(16):
        y = 20 if j % 2 == 0 else 24
        cc = "0" if j < 2 else vr(y, 4)
        e(f"v_mfma_f32_16x16x32_bf16 {vr(y,4)}, {vr(WT+4*j,4)}, {vr(B5+4*(j%4),4)}, {cc}")
        if j + 3 < 16: b5(j + 3)
    for v in range(4): e(f"v_add_f32 v{20+v}, v{20+v}, v{24+v}")
    e(f"v_cndmask_b32 v28, v20, v22, {sr(sX1,2)}")
    e(f"v_cndmask_b32 v29, v21, v23, {sr(sX1,2)}")
    e(f"ds_write_b32 v{TV+7}, v28"); e(f"ds_write_b32 v{TV+7}, v29 offset:32")
    e("s_waitcnt lgkmcnt(0)")
    e("s_barrier")
    e(f"s_cmp_lt_u32 s{sW}, 3"); e("s_cbranch_scc0 L_end")
    e(f"s_cmp_lt_u32 s{sW}, 2"); e("s_cbranch_scc0 L_ypub_done")
    c("threads t<72: sum the 4 partials, publish kind A")
    for w in range(4): e(f"ds_read_b32 v{28+w}, v{TV+8} offset:{512*w}")
    e("v_cmp_gt_u32 vcc, 72, v0")
    e("s_waitcnt lgkmcnt(0)")
    e("v_add_f32 v28, v28, v29"); e("v_add_f32 v30, v30, v31"); e("v_add_f32 v28, v28, v30")
    e(f"v_mov_b32 v29, s{sTAG}")
    e(f"s_and_saveexec_b64 {sr(sEX,2)}, vcc")
    e(f"buffer_store_dwordx2 v[28:29], v{TV+9}, {sr(rWS,4)}, s{t2} offen sc1")
    e(f"s_mov_b64 exec, {sr(sEX,2)}")
    a.lab("L_ypub_done")
    stamp(8, "tail")
    if P["PROF"] == 1: e("s_mov_b32 s14, 0")
    e(f"s_cmp_eq_u32 s{sHKV}, s{sS}"); e("s_cbranch_scc0 L_end")
    e("s_branch L_final")
    a.lab("L_bpub")
    c("waves 4,5: sum the 4 MLP partials, publish kind B; waves 4-7 end")
    e(f"s_cmp_lt_u32 s{sW}, 6"); e("s_cbranch_scc0 L_end")
    e(f"v_subrev_u32 v24, 256, v0"); e("v_min_u32 v25, 71, v24")
    e(f"v_lshlrev_b32 v26, 2, v25"); e(f"v_add_u32 v26, {L_YP + 2048}, v26")
    for w in range(4): e(f"ds_read_b32 v{28+w}, v26 offset:{512*w}")
    e(f"s_lshl_b32 s{t2}, s{sB}, 3"); e(f"s_or_b32 s{t2}, s{t2}, s{sS}"); e(f"s_lshl_b32 s{t2}, s{t2}, 4")
    e(f"s_add_u32 s{t2}, s{t2}, s{sHKV}"); e(f"s_mul_i32 s{t2}, s{t2}, 1152"); e(f"s_add_u32 s{t2}, s{t2}, {WS_YG + 8}")
    e("v_lshlrev_b32 v25, 4, v25")
    e("v_cmp_gt_u32 vcc, 72, v24")
    e("s_waitcnt lgkmcnt(0)")
    e("v_add_f32 v28, v28, v29"); e("v_add_f32 v30, v30, v31"); e("v_add_f32 v28, v28, v30")
    e(f"v_mov_b32 v29, s{sTAG}")
    e(f"s_and_saveexec_b64 {sr(sEX,2)}, vcc")
    e(f"buffer_store_dwordx2 v[28:29], v25, {sr(rWS,4)}, s{t2} offen sc1")
    e(f"s_mov_b64 exec, {sr(sEX,2)}")
    if P["PROF"] == 1: e("s_mov_b32 s14, 0")
    e("s_branch L_end")
    a.lab("L_final")
    c("---- T6: final reducer for (b, s)")
    G6 = 48
    a.lab("L_gather_y")
    e(f"s_mov_b32 s{t2}, s{t3}")
    for k in range(16):
        e(f"buffer_load_dwordx2 {vr(G6+2*k,2)}, v{TV+10}, {sr(rWS,4)}, s{t2} offen sc1")
        if k < 15: e(f"s_add_u32 s{t2}, s{t2}, 1152")
    e("s_waitcnt vmcnt(0)")
    e(f"v_xor_b32 v32, s{sTAG}, v{G6+1}")
    for k in range(1, 16):
        e(f"v_xor_b32 v33, s{sTAG}, v{G6+2*k+1}"); e("v_or_b32 v32, v32, v33")
    e("v_cmp_ne_u32 vcc, 0, v32")
    e("s_cbranch_vccz L_y_ok")
    spin_check("L_y_ok")
    e("s_branch L_gather_y")
    a.lab("L_y_ok")
    stamp(9, "tail")
    idx = [G6 + 2*k for k in range(16)]
    while len(idx) > 1:
        nxt = []
        for i in range(0, len(idx), 2):
            e(f"v_add_f32 v{idx[i]}, v{idx[i]}, v{idx[i+1]}"); nxt.append(idx[i])
        idx = nxt
    bf16r(32, G6)
    e("v_mov_b32_dpp v33, v32 quad_perm:[1,0,3,2] row_mask:0xf bank_mask:0xf")
    e(f"v_lshlrev_b32 v41, 16, v{TV+11}"); e(f"v_lshlrev_b32 v42, 16, v{TV+12}")
    e(f"s_mul_i32 s{t0}, s{sB}, 1152"); e(f"s_mul_i32 s{t1}, s{sS}, 144"); e(f"s_add_u32 s{t0}, s{t0}, s{t1}")
    e("v_add_f32 v32, v41, v32"); bf16r(32, 32)
    e("v_add_f32 v33, v33, v42"); bf16r(33, 33)
    e("v_add_f32 v32, v32, v33"); e("v_cvt_pk_bf16_f32 v32, v32, v32")
    e("v_and_b32 v33, 1, v0"); e("v_cmp_eq_u32 vcc, 0, v33")
    e(f"s_mov_b64 {sr(t4,2)}, vcc")
    e("v_cmp_gt_u32 vcc, 144, v0")
    e(f"s_and_b64 vcc, vcc, {sr(t4,2)}")
    e(f"s_and_saveexec_b64 {sr(sEX,2)}, vcc")
    e(f"buffer_store_short v32, v{TV+13}, {sr(rA,4)}, s{t0} offen")
    e(f"s_mov_b64 exec, {sr(sEX,2)}")
    e(f"s_or_b32 s{t1}, s{sS}, s{sW}"); e(f"s_cmp_eq_u32 s{t1}, 0"); e("s_cbranch_scc0 L_end")
    e(f"s_lshl_b32 s{t1}, s{sB}, 8")
    e(f"v_mov_b32 v33, s{sTAG}"); e("v_mov_b32 v34, 0")
    e("s_mov_b64 exec, 1")
    e(f"buffer_store_dword v33, v34, {sr(rWS,4)}, s{t1} offen sc1")
    a.lab("L_end")
    if P["PROF"] == 3:
        stamp(10)
        e(f"s_cmp_eq_u32 s{sW}, 0"); e("s_cbranch_scc0 L_exit")
        e("s_load_dwordx2 s[4:5], s[0:1], 88")
        e("s_waitcnt lgkmcnt(0)")
        mk_srd(rA, 4, None, size=256)
        e("s_mov_b64 exec, 1")
        e("v_mov_b32 v1, 0")
        for i, (st, inv) in enumerate([(0, 1), (0, 0), (3, 1), (3, 0), (4, 1), (4, 0), (10, 1), (10, 0)]):
            if inv: e(f"s_not_b32 s{t0}, s{STAMPS[st]}"); e(f"v_mov_b32 v2, s{t0}")
            else: e(f"v_mov_b32 v2, s{STAMPS[st]}")
            e(f"buffer_atomic_umax v2, v1, {sr(rA,4)}, 0 offen offset:{4*i}")
            e("s_nop 0")
    elif P["PROF"]:
        stamp(10)
        e("s_mov_b64 exec, 1")
        e(f"s_lshl_b32 s{t0}, s2, 3"); e(f"s_add_u32 s{t0}, s{t0}, s{sW}")
        e(f"s_lshl_b32 s{t0}, s{t0}, 6"); e(f"s_add_u32 s{t0}, s{t0}, {WS_PROF}")
        e("v_mov_b32 v1, 0")
        for i in range(11):
            e(f"v_mov_b32 v2, s{STAMPS[i]}")
            e(f"buffer_store_dword v2, v1, {sr(rWS,4)}, s{t0} offen offset:{4*i}")
            e("s_nop 0")
    a.lab("L_exit")
    e("s_endpgm")
    body, n = hazard.fix(a.L)
    nv = 256
    tail = ['.section .rodata,"a"', ".p2align 6", f".amdhsa_kernel {NAME}_kernel",
            f"  .amdhsa_next_free_vgpr {(nv+7)//8*8}", "  .amdhsa_next_free_sgpr 102", f"  .amdhsa_accum_offset {(nv+7)//8*8}",
            "  .amdhsa_group_segment_fixed_size 0", "  .amdhsa_kernarg_size 104", "  .amdhsa_user_sgpr_count 2",
            "  .amdhsa_user_sgpr_kernarg_segment_ptr 1", "  .amdhsa_system_sgpr_workgroup_id_x 1",
            "  .amdhsa_float_denorm_mode_32 3", ".end_amdhsa_kernel"]
    return "\n".join(hdr + body + tail) + "\n"

if __name__ == "__main__":
    out = sys.argv[1]
    kw = {}
    for arg in sys.argv[2:]:
        k, v = arg.split("=")
        kw[k] = int(v) if v.lstrip("-").isdigit() else v.replace("+", " ").replace("none", "")
    open(out, "w").write(gen(**kw))
```
